```python
import torch

def _softmax(x, axis=-1):
    return torch.softmax(x, dim=axis)
def _gelu(x):
    return torch.nn.functional.gelu(x, approximate="tanh")
def _silu(x):
    return torch.nn.functional.silu(x)
def _sigmoid(x):
    return torch.sigmoid(x)
def _layernorm(x, axis=-1, eps=1e-5):
    m = x.mean(dim=axis, keepdim=True)
    v = x.var(dim=axis, keepdim=True, unbiased=False)
    return (x - m) / torch.sqrt(v + eps)
def _scatter_add(tgt, idx, src, axis=0):
    return tgt.clone().index_add_(axis, idx, src)
def _segment_sum(src, seg, n):
    out = torch.zeros((n,) + src.shape[1:], dtype=src.dtype)
    return out.index_add_(0, seg, src)
def _pad(x, pw):
    flat = tuple(v for pair in reversed(pw) for v in pair)
    return torch.nn.functional.pad(x, flat)

kernel_name = 'parallel_sum__softmax_full_mha__glu_gated_reglu__prompt'

def setup_inputs():

    _w = (lambda a: (lambda t: t.to(torch.bfloat16) if t.is_floating_point() else t)(torch.as_tensor(a)))
    def _A_setup():
        B, S, D = 1, 2048, 512
        return {
            "x": _w((lambda *s: torch.randn(*s, dtype=torch.bfloat16) * 0.05)(B, S, D)),
            "wqkv": _w((lambda *s: torch.randn(*s, dtype=torch.bfloat16) * 0.05)(D, 3 * D)),
            "wo": _w((lambda *s: torch.randn(*s, dtype=torch.bfloat16) * 0.05)(D, D)),
        }
    _A_in = _A_setup()

    def _B_setup():
        B, S, D, F = 1, 2048, 512, 1792
        return {
            "x": _w((lambda *s: torch.randn(*s, dtype=torch.bfloat16) * 0.05)(B, S, D)),
            "W_gate": _w((lambda *s: torch.randn(*s, dtype=torch.bfloat16) * 0.4)(D, F) * (2.0 / D) ** 0.5),
            "W_up": _w((lambda *s: torch.randn(*s, dtype=torch.bfloat16) * 0.4)(D, F) * (2.0 / D) ** 0.5),
            "W_down": _w((lambda *s: torch.randn(*s, dtype=torch.bfloat16) * 0.4)(F, D) * (1.0 / F) ** 0.5),
        }
    _B_in = _B_setup()

    return {
        "A_x": _A_in["x"],
        "A_wqkv": _A_in["wqkv"],
        "A_wo": _A_in["wo"],
        "B_x": _B_in["x"],
        "B_W_gate": _B_in["W_gate"],
        "B_W_up": _B_in["W_up"],
        "B_W_down": _B_in["W_down"],
    }

def reference(A_x, A_wqkv, A_wo, B_x, B_W_gate, B_W_up, B_W_down):
    def _A_ref(x, wqkv, wo):
        B, S, D = x.shape
        H = 32; Dh = D // H
        qkv = (lambda x, *d: x.permute(*d))((x @ wqkv).reshape(B, S, 3, H, Dh), 2, 0, 3, 1, 4)
        q, k, v = qkv[0], qkv[1], qkv[2]
        scale = Dh ** -0.5
        scores = torch.einsum("bhqd,bhkd->bhqk", q, k) * scale
        p = _softmax(scores, axis=-1)
        o = torch.einsum("bhqk,bhkd->bhqd", p, v)
        return (lambda x, *d: x.permute(*d))(o, 0, 2, 1, 3).reshape(B, S, D) @ wo

    def _B_ref(x, W_gate, W_up, W_down):
        gate = torch.einsum("bsd,df->bsf", x, W_gate)
        up = torch.einsum("bsd,df->bsf", x, W_up)
        gate = gate * (lambda x, dt: x.to(dt))(gate > 0, gate.dtype)
        h = gate * up
        return torch.einsum("bsf,fd->bsd", h, W_down)

    x = A_x
    xn = _layernorm(x, axis=-1)
    return x + _A_ref(xn, A_wqkv, A_wo) + _B_ref(xn, B_W_gate, B_W_up, B_W_down)
```

```python
import re, sys

TRANS = ("v_exp_", "v_log_", "v_rcp_", "v_rsq_", "v_sqrt_", "v_sin_", "v_cos_")


def regs(tok):
    tok = tok.strip()
    tok = tok.lstrip("-")
    m = re.fullmatch(r"abs\((.*)\)", tok) or re.fullmatch(r"\|(.*)\|", tok)
    if m:
        tok = m.group(1)
    m = re.fullmatch(r"([vsa])(\d+)", tok)
    if m:
        return {(m.group(1), int(m.group(2)))}
    m = re.fullmatch(r"([vsa])\[(\d+):(\d+)\]", tok)
    if m:
        return {(m.group(1), i) for i in range(int(m.group(2)), int(m.group(3)) + 1)}
    if tok in ("vcc", "vcc_lo", "vcc_hi"):
        return {("x", "vcc")}
    if tok in ("exec", "exec_lo", "exec_hi"):
        return {("x", "exec")}
    if tok == "m0":
        return {("x", "m0")}
    return set()


class I:
    def __init__(self, text, idx):
        self.text = text
        self.idx = idx
        p = text.split(None, 1)
        self.op = p[0]
        rest = p[1] if len(p) > 1 else ""
        self.ops = [o.strip() for o in rest.split(",")] if rest else []
        self.mods = ""
        if self.ops:
            q = self.ops[-1].split(None, 1)
            if len(q) > 1 and not self.op.startswith("s_waitcnt"):
                self.ops[-1] = q[0]
                self.mods = q[1]
        if "quad_perm" in rest or "op_sel" in rest or "neg_" in rest:
            m = re.match(r"(.*?)\s+((?:quad_perm|op_sel|neg_|row_).*)$", rest)
            self.ops = [o.strip() for o in m.group(1).split(",")]
            self.mods = m.group(2)
        op = self.op
        self.mfma = op.startswith("v_mfma") or op.startswith("v_smfmac")
        self.valu = op.startswith("v_") and not self.mfma
        self.trans = op.startswith(TRANS)
        self.dot = op.startswith("v_dot")
        self.ds = op.startswith("ds_")
        self.vmem = op.startswith("buffer_") or op.startswith("global_")
        self.smem = op.startswith("s_load") or op.startswith("s_memtime") or op.startswith("s_memrealtime")
        self.salu = op.startswith("s_") and not self.smem
        self.dpp = "quad_perm" in self.mods or "row_" in self.mods
        self.lds_dma = self.vmem and re.search(r"\blds\b", self.mods) is not None
        self.w, self.r = set(), set()
        self.srcA = self.srcB = self.srcC = self.addr = self.data = set()
        R = [regs(o) for o in self.ops]
        if self.mfma:
            self.w = R[0]
            self.srcA, self.srcB, self.srcC = R[1], R[2], R[3]
            self.r = R[1] | R[2] | R[3]
            self.passes = 8 if "32x32" in op else 4
        elif self.valu:
            if op == "v_nop":
                pass
            elif op.startswith("v_permlane") and "swap" in op:
                self.w = R[0] | R[1]
                self.r = R[0] | R[1]
            elif op.startswith(("v_add_co", "v_addc_co", "v_sub_co", "v_subb_co")):
                self.w = R[0] | R[1]
                self.r = set().union(*R[2:])
            else:
                self.w = R[0]
                self.r = set().union(*R[1:]) if len(R) > 1 else set()
                if op.startswith(("v_fmac", "v_dot2c", "v_writelane")) or self.dpp:
                    self.r |= R[0]
                if op.startswith("v_cndmask") and len(R) == 3:
                    self.r |= {("x", "vcc")}
        elif self.ds:
            if op.startswith("ds_read") or op.startswith("ds_bpermute") or "rtn" in op:
                self.w = R[0]
                self.r = set().union(*R[1:])
            else:
                self.r = set().union(*R)
        elif self.vmem:
            if op.startswith("buffer_inv") or op.startswith("buffer_wbl2"):
                pass
            elif self.lds_dma:
                self.r = set().union(*R) | {("x", "m0")}
            elif "load" in op:
                self.w = R[0]
                self.r = set().union(*R[1:])
            elif "store" in op:
                self.r = set().union(*R)
                self.data = R[0] if op.startswith("buffer_") else R[1]
                self.wide = op.endswith("x4") or op.endswith("x3")
            else:
                self.r = set().union(*R)
                if "sc0" in self.mods:
                    self.w = R[0]
        elif self.smem:
            self.w = R[0]
            self.r = set().union(*R[1:]) if len(R) > 1 else set()
        elif self.salu:
            if op.startswith(("s_cmp", "s_bitcmp")):
                self.r = set().union(*R)
            elif op.startswith(("s_waitcnt", "s_nop", "s_barrier", "s_endpgm", "s_branch", "s_cbranch", "s_setprio", "s_sleep")):
                if "vcc" in op:
                    self.r = {("x", "vcc")}
                if "exec" in op:
                    self.r = {("x", "exec")}
            elif "saveexec" in op:
                self.w = R[0] | {("x", "exec")}
                self.r = R[1] | {("x", "exec")}
            else:
                self.w = R[0] if R else set()
                self.r = set().union(*R[1:]) if len(R) > 1 else set()
                if op.startswith(("s_addk", "s_mulk", "s_cmov")):
                    self.r |= R[0]

    def states(self):
        if self.op == "s_nop":
            return int(self.ops[0], 0) + 1
        return 1


def parse(asm):
    ins, labels = [], {}
    in_text = True
    for raw in asm.splitlines():
        s = raw.split(";")[0].strip()
        if not s:
            continue
        if s.startswith(".section") or s.startswith(".amdhsa_kernel"):
            in_text = False
        if s == ".text":
            in_text = True
        if s.startswith(".") or not in_text:
            continue
        m = re.fullmatch(r"([\w.$]+):", s)
        if m:
            labels[m.group(1)] = len(ins)
            continue
        ins.append(I(s, len(ins)))
    return ins, labels


def cfg(ins, labels):
    succ = [[] for _ in ins]
    for i, x in enumerate(ins):
        if x.op == "s_endpgm":
            continue
        if x.op == "s_branch":
            succ[i].append(labels[x.ops[0]])
            continue
        if x.op.startswith("s_cbranch"):
            succ[i].append(labels[x.ops[0]])
        if i + 1 < len(ins):
            succ[i].append(i + 1)
    pred = [[] for _ in ins]
    for i, s in enumerate(succ):
        for j in s:
            pred[j].append(i)
    return succ, pred


def need(p, c):
    n = 0
    vw = {r for r in p.w if r[0] in "va"}
    sw = {r for r in p.w if r[0] == "s" or r == ("x", "vcc")}
    if p.valu:
        if c.mfma and vw & c.r:
            n = max(n, 2)
        if c.valu and vw & c.r:
            if p.trans and not c.trans:
                n = max(n, 1)
            if c.op.startswith("v_permlane") or c.dpp:
                n = max(n, 2)
            if c.op.startswith(("v_readfirstlane", "v_readlane")):
                n = max(n, 1)
        if p.dot and vw & (c.r | c.w):
            if c.op == p.op:
                others = set().union(*[regs(o) for o in c.ops[1:3]])
                if vw & others:
                    n = max(n, 3)
            else:
                n = max(n, 3)
        if sw:
            if c.vmem and sw & c.r:
                n = max(n, 5)
            if c.valu and sw & c.r:
                n = max(n, 4 if c.op.startswith(("v_readlane", "v_writelane")) else 2)
            if c.salu and sw & c.r:
                n = max(n, 1)
        if p.trans and (c.vmem or c.ds) and vw & c.r:
            n = max(n, 1)
    if p.mfma:
        big = 12 if p.passes == 8 else 8
        if c.mfma:
            if p.w & (c.srcA | c.srcB):
                n = max(n, big)
            if p.w & c.srcC:
                if not (p.w == c.srcC and p.passes == c.passes):
                    n = max(n, big - 2)
        elif (c.valu or c.vmem or c.ds) and p.w & (c.r | c.w):
            n = max(n, big)
        if c.valu and p.srcC & c.w:
            n = max(n, 7 if p.passes == 8 else 3)
    if p.vmem and "store" in p.op and getattr(p, "wide", False):
        if p.data & c.w:
            n = max(n, 2 if c.valu else 1)
    if p.salu and ("x", "m0") in p.w and c.lds_dma:
        n = max(n, 1)
    return n


def check_hazards(ins, labels):
    succ, pred = cfg(ins, labels)
    errs = []
    for c in ins:
        stack = [(q, 0) for q in pred[c.idx]]
        seen = {}
        while stack:
            j, d = stack.pop()
            if seen.get(j, 99) <= d:
                continue
            seen[j] = d
            p = ins[j]
            k = need(p, c)
            if k > d:
                errs.append("hazard: need %d have %d: [%d] %s  ->  [%d] %s" % (k, d, j, p.text, c.idx, c.text))
            d2 = d + p.states()
            if d2 < 13:
                for q in pred[j]:
                    stack.append((q, d2))
    return errs


def check_waits(ins, labels, entries):
    succ, pred = cfg(ins, labels)
    errs = set()
    seen = set()
    stack = [(labels[e], (), ()) for e in entries]
    steps = 0
    while stack:
        pc, vm, lg = stack.pop()
        while True:
            key = (pc, vm, lg)
            if key in seen:
                break
            seen.add(key)
            steps += 1
            if steps > 3000000:
                errs.add("wait checker: state explosion")
                return sorted(errs)
            x = ins[pc]
            if x.op == "s_waitcnt":
                t = x.text
                m = re.search(r"vmcnt\((\d+)\)", t)
                if m:
                    n = int(m.group(1))
                    vm = vm[len(vm) - n:] if n < len(vm) and n > 0 else (() if n == 0 else vm)
                m = re.search(r"lgkmcnt\((\d+)\)", t)
                if m:
                    n = int(m.group(1))
                    if n > 0 and any(e[0] == "smem" for e in lg):
                        ds = [e for e in lg if e[0] == "ds"]
                        keep = set(id(e) for e in ds[max(0, len(ds) - n):])
                        lg = tuple(e for e in lg if e[0] == "smem" or id(e) in keep)
                    else:
                        lg = lg[len(lg) - n:] if n < len(lg) and n > 0 else (() if n == 0 else lg)
            else:
                touched = x.r | x.w
                for q in (vm, lg):
                    for e in q:
                        ov = e[1] & touched
                        if ov:
                            if not (ov & x.r) and ((q is vm and x.vmem) or (q is lg and x.ds and e[0] == "ds")):
                                continue
                            errs.add("wait: [%d] %s touches %s still in flight from [%d] %s" % (pc, x.text, sorted(ov)[:2], e[2], ins[e[2]].text))
                if x.vmem:
                    vm = (vm + (("vm", frozenset(x.w), pc),))
                    if len(vm) > 63:
                        errs.add("vmcnt overflow at [%d] %s" % (pc, x.text))
                        vm = vm[-63:]
                elif x.ds:
                    lg = (lg + (("ds", frozenset(x.w), pc),))
                    if len(lg) > 40:
                        lg = lg[-40:]
                elif x.smem:
                    lg = (lg + (("smem", frozenset(x.w), pc),))
            s = succ[pc]
            if not s:
                break
            for j in s[:-1]:
                stack.append((j, vm, lg))
            pc = s[-1]
    return sorted(errs)


def check(asm, entries):
    ins, labels = parse(asm)
    e = check_hazards(ins, labels)
    e += check_waits(ins, labels, entries)
    return e


if __name__ == "__main__":
    asm = open(sys.argv[1]).read()
    errs = check(asm, sys.argv[2:])
    for e in errs:
        print(e)
    print("%d problems" % len(errs))
```

```python
import sys, os, math, struct
sys.path.insert(0, os.path.dirname(os.path.abspath(__file__)))
import check

NAME = "parallel_sum__softmax_full_mha__glu_gated_reglu__prompt"

WS_Q = 0
WS_KV = 2 << 20
WS_O = 6 << 20
WS_H = 8 << 20
WS_FLAG = 16 << 20
WS_SIZE = 17 << 20

L_XN = 0
L_W = 65536
L_RING = 65536
L_ATT = 139264

S_X, S_WQ, S_WG, S_WU, S_WD, S_WO, S_OUT, S_WS, S_KV = 24, 28, 32, 36, 40, 44, 48, 52, 56
sW = 60
sRB, sCB, sHEAD, sQB, sRB2, sCB2, sCNT = 61, 62, 63, 64, 65, 66, 67
sA, sB, sC, sD, sE, sF = 68, 69, 70, 71, 72, 73
sMASK = 76


def f2u(x):
    return struct.unpack("<I", struct.pack("<f", x))[0]


def vr(b, n=1):
    return "v%d" % b if n == 1 else "v[%d:%d]" % (b, b + n - 1)


def sr(b, n=1):
    return "s%d" % b if n == 1 else "s[%d:%d]" % (b, b + n - 1)


class G:
    def __init__(self, opts):
        self.L = []
        self.o = opts
        self.cc = " sc1" if opts.get("sc1") else ""

    def __call__(self, *lines):
        for l in lines:
            self.L.extend(l.split("\n"))

    def label(self, n):
        self.L.append(n + ":")

    def mfma(self, d, a, b, c=None):
        cs = "0" if c == 0 else vr(d, 16)
        self("v_mfma_f32_32x32x16_bf16 %s, %s, %s, %s" % (vr(d, 16), vr(a, 4), vr(b, 4), cs))

    def srd(self, s, ptr, nbytes):
        self("s_mov_b32 s%d, s%d" % (s, ptr), "s_mov_b32 s%d, s%d" % (s + 1, ptr + 1),
             "s_mov_b32 s%d, 0x%x" % (s + 2, nbytes), "s_mov_b32 s%d, 0x20000" % (s + 3))

    def prologue(self, end):
        g = self
        g("s_cmp_ge_u32 s2, 0x100", "s_cbranch_scc1 %s" % end)
        g("s_load_dwordx4 s[4:7], s[0:1], 0", "s_load_dwordx2 s[8:9], s[0:1], 16",
          "s_load_dwordx8 s[12:19], s[0:1], 32", "s_load_dwordx4 s[20:23], s[0:1], 64")
        g("v_lshrrev_b32 v1, 6, v0", "v_and_b32 v0, 63, v0")
        g("s_and_b32 s3, s2, 7", "s_lshr_b32 s10, s2, 3")
        g("v_readfirstlane_b32 s11, v1")
        g("s_and_b32 s%d, s3, 3" % sCB, "s_lshl_b32 s%d, s%d, 1" % (sCB, sCB), "s_and_b32 s%d, s10, 1" % sA,
          "s_or_b32 s%d, s%d, s%d" % (sCB, sCB, sA))
        g("s_lshr_b32 s%d, s3, 2" % sRB, "s_lshl_b32 s%d, s%d, 4" % (sRB, sRB), "s_lshr_b32 s%d, s10, 1" % sA,
          "s_or_b32 s%d, s%d, s%d" % (sRB, sRB, sA))
        g("s_lshl_b32 s%d, s3, 2" % sHEAD, "s_and_b32 s%d, s10, 3" % sA, "s_or_b32 s%d, s%d, s%d" % (sHEAD, sHEAD, sA),
          "s_lshr_b32 s%d, s10, 2" % sQB)
        g("s_lshl_b32 s%d, s3, 2" % sRB2, "s_lshr_b32 s%d, s10, 3" % sA, "s_or_b32 s%d, s%d, s%d" % (sRB2, sRB2, sA),
          "s_and_b32 s%d, s10, 7" % sCB2)
        g("s_and_b32 s%d, s11, 3" % sW)
        g("s_waitcnt lgkmcnt(0)")
        g.srd(S_X, 4, 2048 * 1024)
        g.srd(S_WQ, 6, 512 * 3072)
        g.srd(S_WG, 12, 512 * 3584)
        g.srd(S_WU, 14, 512 * 3584)
        g.srd(S_WD, 16, 1792 * 1024)
        g.srd(S_WO, 8, 512 * 1024)
        g.srd(S_OUT, 18, 2048 * 1024)
        g.srd(S_WS, 22, WS_SIZE)

    def role_ln(self):
        g = self
        X = lambda e, i: 16 + 32 * e + 4 * i
        vXo, vWa = 4, 5
        SUM, SQ = (6, 8), (7, 9)
        RI, NB = (10, 12), (11, 13)
        T = 80
        g("v_lshrrev_b32 v2, 3, v0", "v_and_b32 v3, 7, v0")
        g("v_lshlrev_b32 v4, 10, v2", "v_lshl_add_u32 v4, v3, 4, v4")
        g("s_lshl_b32 s%d, s%d, 16" % (sA, sRB), "s_lshl_b32 s%d, s%d, 14" % (sB, sW),
          "s_add_u32 s%d, s%d, s%d" % (sA, sA, sB), "s_add_u32 s%d, s%d, 0x2000" % (sB, sA))
        for e in range(2):
            for i in range(8):
                g("buffer_load_dwordx4 %s, v4, %s, s%d offen offset:%d" % (vr(X(e, i), 4), sr(S_X, 4), sA + e, 128 * i))
        g("v_xor_b32 v5, v2, v3", "v_lshlrev_b32 v5, 4, v5", "v_lshl_add_u32 v5, v3, 9, v5")
        g("s_lshr_b32 s%d, s%d, 1" % (sC, sW), "s_lshl_b32 s%d, s%d, 15" % (sC, sC),
          "s_and_b32 s%d, s%d, 1" % (sD, sW), "s_lshl_b32 s%d, s%d, 8" % (sD, sD), "s_add_u32 s%d, s%d, s%d" % (sC, sC, sD))
        g("v_add_u32 v5, s%d, v5" % sC)
        g("s_mov_b32 s%d, 0x3f803f80" % sC, "s_mov_b32 s%d, 0xffff0000" % sD)
        for r in (6, 7, 8, 9):
            g("v_mov_b32 v%d, 0" % r)
        for e in range(2):
            for i in range(8):
                g("s_waitcnt vmcnt(%d)" % (15 - 8 * e - i))
                for k in range(4):
                    x = X(e, i) + k
                    g("v_dot2c_f32_bf16 v%d, s%d, v%d" % (SUM[e], sC, x), "v_dot2c_f32_bf16 v%d, v%d, v%d" % (SQ[e], x, x))
        for dpp in ("quad_perm:[1,0,3,2]", "quad_perm:[2,3,0,1]", "row_half_mirror"):
            for r in (6, 7, 8, 9):
                g("v_add_f32_dpp v%d, v%d, v%d %s row_mask:0xf bank_mask:0xf" % (r, r, r, dpp))
        inv = "0x%x" % f2u(1.0 / 512)
        eps = "0x%x" % f2u(1e-5)
        for e in range(2):
            g("v_mul_f32 v%d, %s, v%d" % (SUM[e], inv, SUM[e]), "v_mul_f32 v%d, %s, v%d" % (SQ[e], inv, SQ[e]))
        for e in range(2):
            g("v_fma_f32 v%d, -v%d, v%d, v%d" % (SQ[e], SUM[e], SUM[e], SQ[e]))
        for e in range(2):
            g("v_max_f32 v%d, 0, v%d" % (SQ[e], SQ[e]))
        for e in range(2):
            g("v_cvt_pk_bf16_f32 v%d, v%d, v%d" % (SQ[e], SUM[e], SQ[e]))
        for e in range(2):
            g("v_lshlrev_b32 v%d, 16, v%d" % (SUM[e], SQ[e]), "v_and_b32 v%d, s%d, v%d" % (SQ[e], sD, SQ[e]))
        for e in range(2):
            g("v_add_f32 v%d, %s, v%d" % (SQ[e], eps, SQ[e]))
        g("v_cvt_pk_bf16_f32 v7, v7, v9", "v_and_b32 v9, s%d, v7" % sD, "v_lshlrev_b32 v7, 16, v7")
        g("v_sqrt_f32 v7, v7", "v_sqrt_f32 v9, v9", "s_nop 0")
        g("v_cvt_pk_bf16_f32 v7, v7, v9", "v_and_b32 v9, s%d, v7" % sD, "v_lshlrev_b32 v7, 16, v7")
        g("v_rcp_f32 v%d, v7" % RI[0], "v_rcp_f32 v%d, v9" % RI[1], "s_nop 0")
        for e in range(2):
            g("v_mul_f32 v%d, v%d, v%d" % (NB[e], SUM[e], RI[e]))
        for i in range(8):
            for e in range(2):
                for k in range(4):
                    x = X(e, i) + k
                    t = T + 2 * k
                    g("v_lshlrev_b32 v%d, 16, v%d" % (t, x), "v_and_b32 v%d, s%d, v%d" % (t + 1, sD, x))
                    g("v_fma_f32 v%d, v%d, v%d, -v%d" % (t, t, RI[e], NB[e]), "v_fma_f32 v%d, v%d, v%d, -v%d" % (t + 1, t + 1, RI[e], NB[e]))
                    g("v_cvt_pk_bf16_f32 v%d, v%d, v%d" % (x, t, t + 1))
                g("ds_write_b128 v5, %s offset:%d" % (vr(X(e, i), 4), i * 4096 + e * 128))
            g("s_waitcnt lgkmcnt(0)", "s_barrier")

    def role_qkv(self):
        g = self
        AQ, AK, AV = 16, 32, 48
        WB = (64, 76)
        XB = (88, 92)
        vXr = 4
        vT = (8, 9)
        vD = 96
        g("v_lshrrev_b32 v2, 3, v0", "v_and_b32 v3, 7, v0")
        g("v_lshrrev_b32 v1, 2, v0", "v_and_b32 v1, 4, v1", "v_xor_b32 v3, v3, v1")
        g("s_lshl_b32 s%d, s%d, 4" % (sA, sW), "v_add_u32 v2, s%d, v2" % sA, "v_mul_u32_u24 v2, 0xc00, v2")
        g("s_lshl_b32 s%d, s%d, 7" % (sA, sCB), "v_lshl_add_u32 v2, v3, 4, v2", "v_add_u32 v%d, s%d, v2" % (vD, sA))
        for seg in range(3):
            for e in range(2):
                if seg or e:
                    g("v_add_u32 v%d, 0x%x, v%d" % (vD + 2 * seg + e, seg * 1024 + e * (8 * 3072 - 1024), vD))
        g("s_mul_i32 s%d, s%d, 0x1800" % (sC, sW), "s_add_u32 s%d, s%d, 0x%x" % (sC, sC, L_W))

        def dma(st):
            g("s_mov_b32 s%d, 0x%x" % (sA, st * 64 * 3072))
            for seg in range(3):
                g("s_add_u32 m0, s%d, 0x%x" % (sC, (st & 3) * 24576 + seg * 2048))
                if seg:
                    g("s_nop 0")
                else:
                    g("s_nop 0")
                g("buffer_load_dwordx4 v%d, %s, s%d offen lds" % (vD + 2 * seg, sr(S_WQ, 4), sA))
                g("buffer_load_dwordx4 v%d, %s, s%d offen offset:1024 lds" % (vD + 2 * seg + 1, sr(S_WQ, 4), sA))
        for st in range(4):
            dma(st)
        g("v_lshrrev_b32 v1, 5, v0")
        g("s_and_b32 s%d, s%d, 1" % (sA, sW), "s_lshl_b32 s%d, s%d, 15" % (sE, sA))
        g("v_xor_b32 v2, v0, v1")
        for q in range(4):
            g("v_xor_b32 v3, %d, v2" % (2 * q), "v_lshlrev_b32 v3, 4, v3", "v_add_u32 v3, 0x%x, v3" % (q * 1024),
              "v_add_u32 v%d, s%d, v3" % (vXr + q, sE))
        g("v_bfe_u32 v2, v0, 2, 2")
        g("v_lshl_add_u32 v3, v1, 3, v2", "v_lshlrev_b32 v3, 7, v3")
        g("v_lshrrev_b32 v2, 1, v2", "s_lshr_b32 s%d, s%d, 1" % (sA, sW), "v_xor_b32 v2, s%d, v2" % sA,
          "v_lshl_add_u32 v3, v2, 6, v3")
        g("v_bfe_u32 v2, v0, 4, 1", "v_lshl_add_u32 v3, v2, 5, v3", "v_and_b32 v2, 3, v0", "v_lshl_add_u32 v3, v2, 3, v3")
        g("v_add_u32 v%d, 0x%x, v3" % (vT[0], L_W), "v_add_u32 v%d, 0x%x, v3" % (vT[1], L_W + 49152))

        def reads(n):
            st, ks = n >> 2, n & 3
            b = n & 1
            slot = st & 3
            L = ["ds_read_b128 %s, v%d offset:%d" % (vr(XB[b], 4), vXr + ks, st * 4096)]
            for seg in range(3):
                for p in range(2):
                    L.append("ds_read_b64_tr_b16 %s, v%d offset:%d" % (vr(WB[b] + 4 * seg + 2 * p, 2), vT[slot >> 1],
                                                                      (slot & 1) * 24576 + ks * 6144 + seg * 2048 + p * 512))
            return L

        def mm(n):
            b = n & 1
            c = 0 if n == 0 else None
            return [(AQ, WB[b], XB[b], c), (AK, WB[b] + 4, XB[b], c), (AV, XB[b], WB[b] + 8, c)]
        g("s_waitcnt vmcnt(18)", "s_barrier")
        g(*reads(0))
        for n in range(32):
            st, ks = n >> 2, n & 3
            M = mm(n)
            if ks == 3 and st < 7:
                infl = min(3, 7 - st) - 1 if st >= 1 else 2
                infl = len([x for x in range(st + 2, min(8, st + 4))])
                g("s_waitcnt vmcnt(%d) lgkmcnt(0)" % (6 * infl), "s_barrier")
                R = reads(n + 1)
                g.mfma(*M[0])
                g(*R[:4])
                g.mfma(*M[1])
                g(*R[4:])
                g.mfma(*M[2])
                if st + 4 < 8:
                    dma(st + 4)
            else:
                R = reads(n + 1) if n + 1 < 32 else []
                g("s_waitcnt lgkmcnt(0)")
                g.mfma(*M[0])
                g(*R[:4])
                g.mfma(*M[1])
                g(*R[4:])
                g.mfma(*M[2])
        g("s_lshl_b32 s%d, s%d, 1" % (sA, sRB), "s_and_b32 s%d, s%d, 1" % (sB, sW), "s_add_u32 s%d, s%d, s%d" % (sA, sA, sB))
        g("s_lshl_b32 s%d, s%d, 2" % (sB, sCB), "s_and_b32 s%d, s%d, 2" % (sC, sW), "s_add_u32 s%d, s%d, s%d" % (sB, sB, sC))
        g("s_lshl_b32 s%d, s%d, 6" % (sB, sB), "s_add_u32 s%d, s%d, s%d" % (sB, sB, sA))
        g("s_lshl_b32 s%d, s%d, 10" % (sA, sB), "s_add_u32 s%d, s%d, 0x10000" % (sC, sA))
        g("s_lshl_b32 s%d, s%d, 11" % (sB, sB), "s_add_u32 s%d, s%d, 0x%x" % (sB, sB, WS_KV), "s_add_u32 s%d, s%d, 0x20000" % (sD, sB))
        g("v_lshlrev_b32 v10, 4, v0")
        g("v_bfe_u32 v2, v0, 4, 1", "v_lshlrev_b32 v2, 17, v2", "v_lshl_add_u32 v2, v1, 8, v2", "v_and_b32 v3, 15, v0",
          "v_lshl_add_u32 v11, v3, 4, v2")
        sc = "0x%x" % f2u(0.25 * math.log2(math.e))
        g("s_mov_b32 s%d, %s" % (sF, sc))
        P = 64
        for k in range(16):
            g("v_mul_f32 v%d, s%d, v%d" % (AQ + k, sF, AQ + k))
        for k in range(8):
            g("v_cvt_pk_bf16_f32 v%d, v%d, v%d" % (P + k, AQ + 2 * k, AQ + 2 * k + 1))
            if k == 3:
                g("buffer_store_dwordx4 %s, v10, %s, s%d offen%s" % (vr(P, 4), sr(S_WS, 4), sA, g.cc))
        g("buffer_store_dwordx4 %s, v10, %s, s%d offen%s" % (vr(P + 4, 4), sr(S_WS, 4), sC, g.cc))
        for k in range(8):
            g("v_cvt_pk_bf16_f32 v%d, v%d, v%d" % (P + 8 + k, AK + 2 * k, AK + 2 * k + 1))
            if k == 3:
                g("buffer_store_dwordx4 %s, v10, %s, s%d offen%s" % (vr(P + 8, 4), sr(S_WS, 4), sB, g.cc))
        g("buffer_store_dwordx4 %s, v10, %s, s%d offen%s" % (vr(P + 12, 4), sr(S_WS, 4), sD, g.cc))
        for k in range(8):
            g("v_cvt_pk_bf16_f32 v%d, v%d, v%d" % (P + 16 + k, AV + 2 * k, AV + 2 * k + 1))
            if k == 3:
                g("buffer_store_dwordx4 %s, v11, %s, s%d offen offset:1024%s" % (vr(P + 16, 4), sr(S_WS, 4), sB, g.cc))
        g("buffer_store_dwordx4 %s, v11, %s, s%d offen offset:1536%s" % (vr(P + 20, 4), sr(S_WS, 4), sB, g.cc))

    def role_gu(self, done):
        g = self
        ACC = lambda tt, j: 128 + 16 * (4 * tt + j)
        AB = (16, 32)
        BB = (48, 56)
        vXr = 4
        vTg = 112
        vG = 116
        g("s_cmp_eq_u32 s%d, 7" % sCB, "s_cbranch_scc1 %s" % done)
        g("v_lshrrev_b32 v2, 3, v0", "v_mul_u32_u24 v2, 0xe00, v2")
        g("s_lshl_b32 s%d, s%d, 2" % (sA, sCB), "s_add_u32 s%d, s%d, s%d" % (sA, sA, sW), "s_lshl_b32 s%d, s%d, 7" % (sB, sA))
        g("v_add_u32 v2, s%d, v2" % sB)
        g("v_lshrrev_b32 v3, 3, v0", "v_and_b32 v3, 2, v3", "v_xor_b32 v3, v3, v0", "v_and_b32 v3, 7, v3")
        g("v_lshl_add_u32 v%d, v3, 4, v2" % vG, "v_xor_b32 v3, 4, v3", "v_lshl_add_u32 v%d, v3, 4, v2" % (vG + 2))
        g("v_add_u32 v%d, 0x%x, v%d" % (vG + 1, 8 * 3584 - 1024, vG), "v_add_u32 v%d, 0x%x, v%d" % (vG + 3, 8 * 3584 - 1024, vG + 2))
        g("s_lshl_b32 s%d, s%d, 14" % (sC, sW), "s_add_u32 s%d, s%d, 0x%x" % (sC, sC, L_RING))
        g("s_mov_b32 s%d, 0" % sD)

        def dma(slot):
            L = []
            for gg in range(2):
                L.append("s_add_u32 m0, s%d, 0x%x" % (sC, slot * 4096 + gg * 2048))
                L.append("s_nop 0")
                L.append("buffer_load_dwordx4 v%d, %s, s%d offen lds" % (vG + 2 * gg, sr(S_WG + 4 * gg, 4), sD))
                L.append("buffer_load_dwordx4 v%d, %s, s%d offen offset:1024 lds" % (vG + 2 * gg + 1, sr(S_WG + 4 * gg, 4), sD))
            L.append("s_add_u32 s%d, s%d, 0x%x" % (sD, sD, 16 * 3584))
            return L
        for s in range(4):
            g(*dma(s))
        g("v_lshrrev_b32 v1, 5, v0", "v_bfe_u32 v2, v0, 2, 2", "v_lshl_add_u32 v3, v1, 3, v2", "v_lshlrev_b32 v3, 7, v3")
        g("v_bfe_u32 v8, v0, 4, 1", "v_lshl_add_u32 v3, v8, 11, v3", "v_and_b32 v9, 3, v0", "v_lshl_add_u32 v3, v9, 3, v3")
        g("v_add_u32 v3, s%d, v3" % sC)
        g("v_lshrrev_b32 v2, 1, v2", "v_lshl_add_u32 v2, v8, 1, v2")
        for j in range(4):
            g("v_xor_b32 v8, %d, v2" % j, "v_lshl_add_u32 v%d, v8, 5, v3" % (vTg + j))
        for q in range(4):
            g("v_subrev_u32 v%d, s%d, v%d" % (vXr + q, sE, vXr + q))
        g("s_lshl_b32 s%d, s%d, 1" % (sB, sRB), "s_mul_i32 s%d, s%d, 112" % (sB, sB), "s_lshl_b32 s%d, s%d, 2" % (sA, sA),
          "s_add_u32 s%d, s%d, s%d" % (sA, sA, sB), "s_lshl_b32 s%d, s%d, 10" % (sA, sA), "s_add_u32 s%d, s%d, 0x%x" % (sA, sA, WS_H),
          "s_add_u32 s%d, s%d, 0x%x" % (sB, sA, 112 * 1024))

        def reads(u, nxt_iter=False):
            b = u & 1
            L = []
            L.append("ds_read_b128 %s, v%d offset:%d" % (vr(BB[b], 4), vXr + u, 0))
            for p in range(2):
                L.append("ds_read_b64_tr_b16 %s, v%d offset:%d" % (vr(AB[b] + 2 * p, 2), vTg, u * 4096 + p * 512))
            L.append("ds_read_b128 %s, v%d offset:%d" % (vr(BB[b] + 4, 4), vXr + u, 32768))
            for j in range(1, 4):
                for p in range(2):
                    L.append("ds_read_b64_tr_b16 %s, v%d offset:%d" % (vr(AB[b] + 4 * j + 2 * p, 2), vTg + j, u * 4096 + p * 512))
            L.append("v_add_u32 v%d, 0x1000, v%d" % (vXr + u, vXr + u))
            return L

        def step(u, first=False):
            b = u & 1
            c = 0 if first else None
            M = [(ACC(tt, j), AB[b] + 4 * j, BB[b] + 4 * tt, c) for j in range(4) for tt in range(2)]
            R = reads((u + 1) & 3)
            D = dma(u)
            g("s_waitcnt lgkmcnt(0)")
            g.mfma(*M[0])
            g(*D[:4])
            g.mfma(*M[1])
            g(*D[4:])
            g.mfma(*M[2])
            g("s_waitcnt vmcnt(12)")
            g(*R[0:3])
            g.mfma(*M[3])
            g(*R[3:6])
            g.mfma(*M[4])
            g(*R[6:8])
            g.mfma(*M[5])
            g(*R[8:10])
            g.mfma(*M[6])
            g(R[10])
            g.mfma(*M[7])
        g("s_waitcnt vmcnt(12)")
        g(*reads(0))
        g("s_mov_b32 s%d, 8" % sCNT)
        step(0, first=True)
        g("s_branch L_gu_1")
        g.label("L_gu_0")
        step(0)
        g.label("L_gu_1")
        step(1)
        step(2)
        step(3)
        g("s_sub_u32 s%d, s%d, 1" % (sCNT, sCNT), "s_cmp_lg_u32 s%d, 0" % sCNT, "s_cbranch_scc1 L_gu_0")
        g("s_waitcnt vmcnt(0) lgkmcnt(0)")
        g("v_lshlrev_b32 v10, 4, v0")
        g("s_nop 7")
        order = [(tt, j) for j in range(4) for tt in range(2)]
        for n, (tt, j) in enumerate(order):
            a = ACC(tt, j)
            P = 16 + 4 * n
            for k in range(8):
                g("v_max_f32 v%d, 0, v%d" % (a + k, a + k))
            for k in range(8):
                g("v_mul_f32 v%d, v%d, v%d" % (a + k, a + k, a + 8 + k))
            for k in range(4):
                g("v_cvt_pk_bf16_f32 v%d, v%d, v%d" % (P + k, a + 2 * k, a + 2 * k + 1))
            g("buffer_store_dwordx4 %s, v10, %s, s%d offen offset:%d%s" % (vr(P, 4), sr(S_WS, 4), sA + tt, j * 1024, g.cc))

    def role_attn(self):
        g = self
        O = lambda i: 128 + 16 * i
        Q = lambda i: 16 + 4 * i
        S = (32, 48)
        P = 64
        KB = lambda b: 72 + 12 * b
        VB = lambda b, t: 72 + 12 * b + 4 + 4 * t
        vL, vV = 4, 5
        cc = g.cc
        g("v_lshlrev_b32 v4, 4, v0")
        g("v_lshrrev_b32 v1, 5, v0", "v_and_b32 v2, 15, v0", "v_lshlrev_b32 v2, 4, v2", "v_lshl_add_u32 v5, v1, 8, v2")
        g("s_and_b32 s%d, s%d, 1" % (sA, sW), "s_lshr_b32 s%d, s%d, 1" % (sB, sW))
        g("s_lshl_b32 s%d, s%d, 3" % (sC, sQB), "s_lshl_b32 s%d, s%d, 2" % (sA, sA), "s_add_u32 s%d, s%d, s%d" % (sC, sC, sA))
        g("s_lshl_b32 s%d, s%d, 6" % (sD, sHEAD))
        g("s_lshl_b32 s%d, s%d, 5" % (sA, sB), "s_add_u32 s%d, s%d, s%d" % (sA, sA, sD), "s_lshl_b32 s%d, s%d, 11" % (sA, sA),
          "s_add_u32 s%d, s%d, 0x%x" % (sA, sA, WS_KV))
        g("s_add_u32 s%d, s22, s%d" % (S_KV, sA), "s_addc_u32 s%d, s23, 0" % (S_KV + 1), "s_mov_b32 s%d, 0x10000" % (S_KV + 2),
          "s_mov_b32 s%d, 0x20000" % (S_KV + 3))
        g("s_lshl_b32 s%d, s%d, 1" % (sB, sB), "s_add_u32 s%d, s%d, s%d" % (sE, sC, sB), "s_xor_b32 s%d, s%d, 2" % (sF, sE))
        g("s_add_u32 s%d, s%d, s%d" % (sA, sE, sD), "s_lshl_b32 s%d, s%d, 10" % (sA, sA))
        g("s_add_u32 s%d, s%d, s%d" % (sB, sF, sD), "s_lshl_b32 s%d, s%d, 10" % (sB, sB))
        g("s_mov_b32 s%d, 0xffff" % sMASK, "s_mov_b32 s%d, 0xffff" % (sMASK + 1))
        for b in range(4):
            for k in range(8):
                g("v_mov_b32 v%d, 0x3f803f80" % (VB(b, 0) + k))
        self.attn_wait_inputs()
        for i in range(4):
            g("buffer_load_dwordx4 %s, v4, %s, s%d offen offset:%d%s" % (vr(Q(i), 4), sr(S_WS, 4), sA + (i >> 1), (i & 1) * 1024, cc))
        g("s_mov_b32 s%d, 0" % sD)

        def loads(b0):
            L = []
            for t in range(2):
                L.append("buffer_load_dwordx4 %s, v4, %s, s%d offen offset:%d%s" % (vr(KB(b0 + t), 4), sr(S_KV, 4), sD, t * 2048, cc))
            L.append("s_mov_b64 exec, %s" % sr(sMASK, 2))
            for t in range(2):
                for hh in range(2):
                    L.append("buffer_load_dwordx4 %s, v5, %s, s%d offen offset:%d%s" % (vr(VB(b0 + t, hh), 4), sr(S_KV, 4), sD, t * 2048 + 1024 + hh * 512, cc))
            L.append("s_mov_b64 exec, -1")
            L.append("s_add_u32 s%d, s%d, 0x1000" % (sD, sD))
            return L
        g(*loads(0))
        for k in range(64):
            g("v_mov_b32 v%d, 0" % (O(0) + k))
        g("s_mov_b32 s%d, 8" % sCNT)
        g("s_waitcnt vmcnt(5)")
        g.mfma(S[0], KB(0), Q(0), 0)
        g("s_waitcnt vmcnt(0)", "s_nop 9")

        def e(n, k):
            s = S[n & 1] + k
            g("v_exp_f32 v%d, v%d" % (s, s))

        def c(n, k):
            s = S[n & 1] + 2 * k
            g("v_cvt_pk_bf16_f32 v%d, v%d, v%d" % (P + k, s, s + 1))

        def head(n):
            nn = (n + 1) & 15
            if n in (7, 15):
                g("s_waitcnt vmcnt(0)")
            g.mfma(S[nn & 1], KB(nn >> 2), Q(nn & 3), 0)
            e(n, 0); e(n, 1); e(n, 2); c(n, 0); e(n, 3); e(n, 4); c(n, 1); e(n, 5)

        def m2(n):
            pn = (n - 1) & 15
            g.mfma(O(pn & 3), VB(pn >> 2, 1), P + 4)

        def tail(n):
            X = loads(2) if n == 0 else (loads(0) if n == 8 else [])
            X = X + [None] * 9
            def x(i):
                if X[i]:
                    g(X[i])
            e(n, 6); x(0); c(n, 2); e(n, 7); x(1); e(n, 8); c(n, 3)
            for i in range(2, 8):
                x(i)
            e(n, 9); e(n, 10)
            g.mfma(O(n & 3), VB(n >> 2, 0), P)
            x(8)
            c(n, 4); e(n, 11); e(n, 12); c(n, 5); e(n, 13); e(n, 14); e(n, 15); c(n, 6); c(n, 7)
        head(0)
        g("s_branch L_at_entry")
        g.label("L_at_loop")
        head(0)
        m2(0)
        g.label("L_at_entry")
        tail(0)
        for n in range(1, 16):
            head(n)
            m2(n)
            if n == 15:
                g("s_sub_u32 s%d, s%d, 1" % (sCNT, sCNT))
            tail(n)
        g("s_cmp_lg_u32 s%d, 0" % sCNT, "s_cbranch_scc1 L_at_loop")
        m2(0)
        g("s_xor_b32 s%d, s%d, 2" % (sA, sW), "s_mul_i32 s%d, s%d, 0x1200" % (sA, sA), "s_add_u32 s%d, s%d, 0x%x" % (sA, sA, g.o["l_att"]))
        g("s_mul_i32 s%d, s%d, 0x1200" % (sB, sW), "s_add_u32 s%d, s%d, 0x%x" % (sB, sB, g.o["l_att"]))
        g("v_add_u32 v6, s%d, v4" % sA, "v_add_u32 v7, s%d, v4" % sB)
        g("v_lshlrev_b32 v8, 2, v0", "v_add_u32 v9, s%d, v8" % sB, "v_add_u32 v8, s%d, v8" % sA)
        g("ds_write_b128 v6, %s" % vr(O(2), 4), "ds_write_b128 v6, %s offset:1024" % vr(O(2) + 4, 4), "ds_write_b32 v8, v%d offset:2048" % (O(2) + 8))
        g("s_nop 1")
        g("ds_write_b128 v6, %s offset:2304" % vr(O(3), 4), "ds_write_b128 v6, %s offset:3328" % vr(O(3) + 4, 4),
          "ds_write_b32 v8, v%d offset:4352" % (O(3) + 8))
        g("s_waitcnt lgkmcnt(0)")
        self.attn_pair_sync()
        T = 32
        g("ds_read_b128 %s, v7" % vr(T, 4), "ds_read_b128 %s, v7 offset:1024" % vr(T + 4, 4), "ds_read_b32 v%d, v9 offset:2048" % (T + 8))
        g("ds_read_b128 %s, v7 offset:2304" % vr(T + 12, 4), "ds_read_b128 %s, v7 offset:3328" % vr(T + 16, 4), "ds_read_b32 v%d, v9 offset:4352" % (T + 20))
        g("s_lshl_b32 s%d, s%d, 5" % (sA, sE), "s_add_u32 s%d, s%d, s%d" % (sA, sA, sHEAD), "s_lshl_b32 s%d, s%d, 10" % (sA, sA),
          "s_add_u32 s%d, s%d, 0x%x" % (sA, sA, WS_O), "s_add_u32 s%d, s%d, 0x8000" % (sB, sA))
        g("s_waitcnt lgkmcnt(3)")
        for k in range(9):
            g("v_add_f32 v%d, v%d, v%d" % (O(0) + k, O(0) + k, T + k))
        g("s_waitcnt lgkmcnt(0)")
        for k in range(9):
            g("v_add_f32 v%d, v%d, v%d" % (O(1) + k, O(1) + k, T + 12 + k))
        g("v_subrev_u32 v10, 0x21800000, v%d" % (O(0) + 8), "v_subrev_u32 v11, 0x21800000, v%d" % (O(1) + 8), "v_max_u32 v10, v10, v11")
        g("v_cmp_lt_u32 vcc, 0x3c000000, v10", "s_nop 1", "s_and_b64 vcc, exec, vcc", "s_cbranch_vccnz L_at_slow")
        g.label("L_at_norm")
        g("v_rcp_f32 v10, v%d" % (O(0) + 8), "v_rcp_f32 v11, v%d" % (O(1) + 8), "s_nop 0")
        for i in range(2):
            for k in range(8):
                g("v_mul_f32 v%d, v%d, v%d" % (O(i) + k, O(i) + k, 10 + i))
            for k in range(4):
                g("v_cvt_pk_bf16_f32 v%d, v%d, v%d" % (T + 4 * i + k, O(i) + 2 * k, O(i) + 2 * k + 1))
            g("buffer_store_dwordx4 %s, v4, %s, s%d offen%s" % (vr(T + 4 * i, 4), sr(S_WS, 4), sA + i, cc))

    def role_attn_slow(self):
        g = self
        O = lambda i: 128 + 16 * i
        Q = lambda i: 16 + 4 * i
        S0, P, KB0, V0, V1 = 32, 64, 72, 76, 80
        cc = g.cc
        g.label("L_at_slow")
        g("s_lshl_b32 s%d, s%d, 17" % (sC, sHEAD), "s_add_u32 s%d, s%d, 0x%x" % (sC, sC, WS_KV))
        g("s_add_u32 s%d, s22, s%d" % (S_KV, sC), "s_addc_u32 s%d, s23, 0" % (S_KV + 1), "s_mov_b32 s%d, 0x20000" % (S_KV + 2),
          "s_mov_b32 s%d, 0x20000" % (S_KV + 3))
        g("s_mov_b32 s%d, 0" % sCNT)
        g.label("L_sl_tile")
        g("v_mov_b32 v12, 0xff800000", "s_mov_b32 s%d, 0" % sD)
        g.label("L_sl_max")
        g("buffer_load_dwordx4 %s, v4, %s, s%d offen%s" % (vr(KB0, 4), sr(S_KV, 4), sD, cc), "s_waitcnt vmcnt(0)")
        g.mfma(S0, KB0, Q(0), 0)
        g("s_nop 11")
        for k in range(8):
            g("v_max3_f32 v12, v12, v%d, v%d" % (S0 + 2 * k, S0 + 2 * k + 1))
        g("s_add_u32 s%d, s%d, 0x800" % (sD, sD), "s_cmp_lt_u32 s%d, 0x20000" % sD, "s_cbranch_scc1 L_sl_max")
        g("v_mov_b32 v13, v12", "s_nop 1", "v_permlane32_swap_b32 v12, v13", "s_nop 1", "v_max_f32 v12, v12, v13")
        for k in range(16):
            g("v_mov_b32 v%d, 0" % (O(0) + k))
        g("s_mov_b32 s%d, 0" % sD)
        g.label("L_sl_acc")
        g("buffer_load_dwordx4 %s, v4, %s, s%d offen%s" % (vr(KB0, 4), sr(S_KV, 4), sD, cc))
        g("s_mov_b64 exec, %s" % sr(sMASK, 2))
        g("buffer_load_dwordx4 %s, v5, %s, s%d offen offset:1024%s" % (vr(V0, 4), sr(S_KV, 4), sD, cc))
        g("buffer_load_dwordx4 %s, v5, %s, s%d offen offset:1536%s" % (vr(V1, 4), sr(S_KV, 4), sD, cc))
        g("s_mov_b64 exec, -1", "s_waitcnt vmcnt(0)")
        g.mfma(S0, KB0, Q(0), 0)
        g("s_nop 11")
        for k in range(16):
            g("v_sub_f32 v%d, v%d, v12" % (S0 + k, S0 + k))
        for k in range(16):
            g("v_exp_f32 v%d, v%d" % (S0 + k, S0 + k))
        g("s_nop 0")
        for k in range(8):
            g("v_cvt_pk_bf16_f32 v%d, v%d, v%d" % (P + k, S0 + 2 * k, S0 + 2 * k + 1))
        g("s_nop 1")
        g.mfma(O(0), V0, P)
        g.mfma(O(0), V1, P + 4)
        g("s_add_u32 s%d, s%d, 0x800" % (sD, sD), "s_cmp_lt_u32 s%d, 0x20000" % sD, "s_cbranch_scc1 L_sl_acc")
        g("s_nop 11")
        g("s_cmp_eq_u32 s%d, 1" % sCNT, "s_cbranch_scc1 L_sl_done")
        for k in range(9):
            g("v_mov_b32 v%d, v%d" % (O(2) + k, O(0) + k))
        for k in range(4):
            g("v_mov_b32 v%d, v%d" % (Q(0) + k, Q(1) + k))
        g("s_mov_b32 s%d, 1" % sCNT, "s_branch L_sl_tile")
        g.label("L_sl_done")
        for k in range(9):
            g("v_mov_b32 v%d, v%d" % (O(1) + k, O(0) + k), "v_mov_b32 v%d, v%d" % (O(0) + k, O(2) + k))
        g("s_branch L_at_norm")

    def attn_wait_inputs(self):
        pass

    def attn_pair_sync(self):
        self("s_barrier")

    def down_wait_h(self):
        pass

    def down_wait_o(self):
        pass

    def role_down(self):
        g = self
        ACC = lambda ln, lt: 128 + 16 * (ln + 2 * lt)
        HB = lambda slot, lt: 32 + 8 * slot + 4 * lt
        AB = (16, 24)
        vH = (4, 5)
        vT = (6, 7)
        vD = (8, 9)
        vX = 10
        cc = g.cc
        R = 7
        g("v_lshrrev_b32 v2, 3, v0", "v_lshrrev_b32 v3, 2, v0", "v_and_b32 v3, 4, v3", "v_xor_b32 v3, v3, v0", "v_and_b32 v3, 7, v3")
        g("v_lshlrev_b32 v2, 10, v2", "v_lshl_add_u32 v2, v3, 4, v2", "s_lshl_b32 s%d, s%d, 7" % (sA, sCB2),
          "v_add_u32 v8, s%d, v2" % sA, "v_add_u32 v9, 0x1c00, v8")
        g("s_lshl_b32 s%d, s%d, 14" % (sC, sW), "s_add_u32 s%d, s%d, 0x%x" % (sC, sC, g.o["l_ring"]))
        g("s_mul_i32 s%d, s%d, 0x%x" % (sD, sW, 28 * 16384))
        g("s_lshr_b32 s%d, s%d, 1" % (sA, sW), "s_mul_i32 s%d, s%d, 0x%x" % (sB, sA, 112 * 1024), "v_lshlrev_b32 v1, 4, v0",
          "v_add_u32 v4, s%d, v1" % sB, "s_xor_b32 s%d, s%d, 0x%x" % (sB, sB, 112 * 1024), "v_add_u32 v5, s%d, v1" % sB)
        g("s_mul_i32 s%d, s%d, 0x%x" % (sE, sRB2, 224 * 1024), "s_mul_i32 s%d, s%d, 0x%x" % (sB, sW, 28 * 1024),
          "s_add_u32 s%d, s%d, s%d" % (sE, sE, sB), "s_add_u32 s%d, s%d, 0x%x" % (sE, sE, WS_H))

        def wdma(slot, srd, soff, inc):
            return ["s_add_u32 m0, s%d, 0x%x" % (sC, slot * 2048), "s_nop 0",
                    "buffer_load_dwordx4 v8, %s, s%d offen lds" % (sr(srd, 4), soff),
                    "buffer_load_dwordx4 v9, %s, s%d offen offset:1024 lds" % (sr(srd, 4), soff),
                    "s_add_u32 s%d, s%d, 0x%x" % (soff, soff, inc)]

        def hload(slot):
            return ["buffer_load_dwordx4 %s, v4, %s, s%d offen%s" % (vr(HB(slot, 0), 4), sr(S_WS, 4), sE, cc),
                    "buffer_load_dwordx4 %s, v5, %s, s%d offen%s" % (vr(HB(slot, 1), 4), sr(S_WS, 4), sE, cc),
                    "s_add_u32 s%d, s%d, 0x400" % (sE, sE)]
        g("v_and_b32 v2, 31, v0", "v_lshrrev_b32 v3, 5, v0", "v_lshlrev_b32 v2, 10, v2")
        g("s_lshl_b32 s%d, s%d, 1" % (sB, sRB2), "s_add_u32 s%d, s%d, s%d" % (sB, sB, sA), "s_lshl_b32 s%d, s%d, 15" % (sB, sB))
        g("s_lshl_b32 s%d, s%d, 1" % (sF, sCB2), "s_and_b32 s%d, s%d, 1" % (sA, sW), "s_add_u32 s%d, s%d, s%d" % (sF, sF, sA),
          "s_lshl_b32 s%d, s%d, 6" % (sF, sF), "s_add_u32 s74, s%d, s%d" % (sB, sF))
        g("v_lshl_add_u32 v10, v3, 3, v2", "v_lshl_add_u32 v11, v3, 4, v2")
        for i in range(4):
            g("buffer_load_dwordx2 %s, v10, %s, s74 offen offset:%d" % (vr(96 + 2 * i, 2), sr(S_X, 4), 16 * i))
        g("v_bfe_u32 v2, v0, 2, 2", "v_lshl_add_u32 v3, v3, 2, v2", "v_lshlrev_b32 v3, 7, v3")
        g("v_bfe_u32 v12, v0, 4, 1", "v_lshl_add_u32 v3, v12, 5, v3", "v_and_b32 v12, 3, v0", "v_lshl_add_u32 v3, v12, 3, v3")
        g("v_add_u32 v3, s%d, v3" % sC, "v_lshrrev_b32 v2, 1, v2", "v_xor_b32 v2, s%d, v2" % sA)
        g("v_lshl_add_u32 v6, v2, 6, v3", "v_xor_b32 v2, 1, v2", "v_lshl_add_u32 v7, v2, 6, v3")
        for s in range(R):
            g(*wdma(s, S_WD, sD, 16384))
        self.down_wait_h()
        for s in range(R):
            g(*hload(s))
        g("s_waitcnt vmcnt(28)")
        g("s_mov_b32 s%d, 0xffff0000" % sA)
        for k in range(8):
            g("v_lshlrev_b32 v%d, 16, v%d" % (ACC(0, 0) + 2 * k, 96 + k), "v_and_b32 v%d, s%d, v%d" % (ACC(0, 0) + 2 * k + 1, sA, 96 + k))

        def treads(slot, b):
            return ["ds_read_b64_tr_b16 %s, v%d offset:%d" % (vr(AB[b] + 4 * ln + 2 * p, 2), vT[ln], slot * 2048 + p * 1024)
                    for ln in range(2) for p in range(2)]

        def mms(hslot, b, first=False):
            return [(ACC(ln, lt), AB[b] + 4 * ln, HB(hslot, lt), (0 if first and (ln or lt) else None)) for ln in range(2) for lt in range(2)]
        g("s_waitcnt vmcnt(14)")
        g(*treads(0, 0))
        def step(u, par, vmwait, refill, first=False, nxt=True):
            M = mms(u, par, first)
            if vmwait is not None:
                g("s_waitcnt vmcnt(%d) lgkmcnt(0)" % vmwait)
            else:
                g("s_waitcnt lgkmcnt(0)")
            Rd = treads(nxt, par ^ 1) if nxt is not None else []
            g.mfma(*M[0])
            g(*Rd[:2])
            g.mfma(*M[1])
            g(*Rd[2:])
            g.mfma(*M[2])
            g(*refill[:len(refill) // 2])
            g.mfma(*M[3])
            g(*refill[len(refill) // 2:])
        for s in range(R):
            need_h = 2 * (R - 1 - s) + 4 * s
            if s == R - 1:
                need_h = min(need_h, 4 * (R - 2) + 2)
            ref = wdma(s, S_WD, sD, 16384)[:] + hload(s)
            step(s, s & 1, need_h, ref, first=(s == 0), nxt=(s + 1) % R)
        for it in range(2):
            for s in range(R):
                gs = R * (it + 1) + s
                ref = wdma(s, S_WD, sD, 16384) + hload(s)
                step(s, gs & 1, 4 * (R - 2) + 2, ref, nxt=(s + 1) % R)
        g("s_lshl_b32 s%d, s%d, 17" % (sF, sW))
        for s in range(R):
            gs = 3 * R + s
            if s < R - 1:
                vm = 2 + 4 * (R - 2 - s) + 2 * s
                nxt = s + 1
            else:
                vm = 2 * (R - 1) - 2 if False else 2 * s
                nxt = None
            ref = wdma(s, S_WO, sF, 16384)
            step(s, gs & 1, vm, ref, nxt=nxt)
        g(*wdma(7, S_WO, sF, 16384))
        g("s_lshl_b32 s%d, s%d, 16" % (sE, sRB2), "s_lshl_b32 s%d, s%d, 13" % (sB, sW), "s_add_u32 s%d, s%d, s%d" % (sE, sE, sB),
          "s_add_u32 s%d, s%d, 0x%x" % (sE, sE, WS_O), "s_add_u32 s%d, s%d, 0x1000" % (sB, sE))
        g("s_lshr_b32 s%d, s%d, 1" % (sA, sW), "s_lshl_b32 s%d, s%d, 15" % (sA, sA), "v_add_u32 v4, s%d, v1" % sA,
          "s_xor_b32 s%d, s%d, 0x8000" % (sA, sA), "v_add_u32 v5, s%d, v1" % sA)
        self.down_wait_o()
        for s in range(8):
            for lt in range(2):
                g("buffer_load_dwordx4 %s, v%d, %s, s%d offen offset:%d%s" % (vr(HB(s, lt), 4), vH[lt], sr(S_WS, 4), sE if s < 4 else sB, (s & 3) * 1024, cc))
        g("s_waitcnt vmcnt(16)")
        g(*treads(0, 0))
        for s in range(8):
            step(s, s & 1, 14 - 2 * s, [], nxt=(s + 1 if s < 7 else None))
        g("v_add_u32 v2, s%d, v1" % sC)
        for k in range(1, 4):
            g("s_xor_b32 s%d, s%d, %d" % (sA, sW, k), "s_lshl_b32 s%d, s%d, 14" % (sA, sA), "s_add_u32 s%d, s%d, 0x%x" % (sA, sA, g.o["l_ring"]),
              "v_add_u32 v%d, s%d, v1" % (12 + k, sA))
        for k in (2, 1, 3):
            a = ACC(k & 1, k >> 1)
            if k == 3:
                g("s_nop 1")
            for i in range(4):
                g("ds_write_b128 v2, %s offset:%d" % (vr(a + 4 * i, 4), (k - 1) * 4096 + i * 1024))
        g("s_waitcnt lgkmcnt(0)", "s_barrier")
        for k in range(1, 4):
            for i in range(4):
                g("ds_read_b128 %s, v%d offset:%d" % (vr(32 + 16 * (k - 1) + 4 * i, 4), 12 + k, (k - 1) * 4096 + i * 1024))
        a = ACC(0, 0)
        for k in range(1, 4):
            g("s_waitcnt lgkmcnt(%d)" % (4 * (3 - k)))
            for i in range(16):
                g("v_add_f32 v%d, v%d, v%d" % (a + i, a + i, 32 + 16 * (k - 1) + i))
        for k in range(8):
            g("v_cvt_pk_bf16_f32 v%d, v%d, v%d" % (16 + k, a + 2 * k, a + 2 * k + 1))
        g("s_nop 0")
        g("v_permlane32_swap_b32 v16, v18", "v_permlane32_swap_b32 v17, v19", "v_permlane32_swap_b32 v20, v22", "v_permlane32_swap_b32 v21, v23")
        g("buffer_store_dwordx4 v[16:19], v11, %s, s74 offen" % sr(S_OUT, 4), "buffer_store_dwordx4 v[20:23], v11, %s, s74 offen offset:32" % sr(S_OUT, 4))


HEADER = """; Kernarg layout (80 bytes, pointers only):
"""


def kd(name, vgpr=256, sgpr=96):
    return """.amdhsa_kernel %s
  .amdhsa_next_free_vgpr %d
  .amdhsa_next_free_sgpr %d
  .amdhsa_accum_offset %d
  .amdhsa_group_segment_fixed_size 0
  .amdhsa_kernarg_size 80
  .amdhsa_user_sgpr_count 2
  .amdhsa_user_sgpr_kernarg_segment_ptr 1
  .amdhsa_system_sgpr_workgroup_id_x 1
.end_amdhsa_kernel
""" % (name, vgpr, sgpr, (vgpr + 3) // 4 * 4)


def kernel_head(g, name):
    g(".globl %s" % name, ".p2align 8", ".type %s,@function" % name)
    g.label(name)


def build_v1(extra=0):
    launches = [("k1_kernel", 512, 163840), ("k2_kernel", 256, 18432), ("k3_kernel", 256, 65536)]
    launches += [("k0_kernel", 256, 0)] * extra
    out = HEADER
    for n, b, l in launches:
        out += "; @launch kernel=%s grid=(256,1,1) block=(%d,1,1) lds=%d\n" % (n, b, l)
    out += '.amdgcn_target "amdgcn-amd-amdhsa--gfx950"\n.text\n'
    g = G(dict(l_att=0, l_ring=0))
    kernel_head(g, "k1_kernel")
    g.prologue("L_k1_end")
    g("s_cmp_ge_u32 s11, 4", "s_cbranch_scc1 L_k1_ln")
    g.role_qkv()
    g.role_gu("L_k1_end")
    g("s_endpgm")
    g.label("L_k1_ln")
    g.role_ln()
    g.label("L_k1_end")
    g("s_endpgm")
    kernel_head(g, "k2_kernel")
    g.prologue("L_k2_end")
    g.role_attn()
    g.label("L_k2_end")
    g("s_endpgm")
    g.role_attn_slow()
    kernel_head(g, "k3_kernel")
    g.prologue("L_k3_end")
    g.role_down()
    g.label("L_k3_end")
    g("s_endpgm")
    names = ["k1_kernel", "k2_kernel", "k3_kernel"]
    if extra:
        kernel_head(g, "k0_kernel")
        g("s_endpgm")
        names.append("k0_kernel")
    body = "\n".join(("" if l.endswith(":") or l.startswith(".") else "  ") + l for l in g.L)
    out += body + "\n" + '.section .rodata,"a"\n'
    for n in names:
        out += ".p2align 6\n" + kd(n)
    return out, names


if __name__ == "__main__":
    mode = sys.argv[1]
    dst = sys.argv[2]
    if mode.startswith("v1"):
        asm, names = build_v1(int(mode[3:] or 0) if len(mode) > 2 else 0)
    errs = check.check(asm, names)
    for e in errs:
        print(e)
    print("%d checker problems, %d lines" % (len(errs), asm.count("\n")))
    open(dst, "w").write(asm)
```

```python
import sys, os, math, struct
sys.path.insert(0, os.path.dirname(os.path.abspath(__file__)))
import check

NAME = "parallel_sum__softmax_full_mha__glu_gated_reglu__prompt"

WS_Q = 0
WS_KV = 2 << 20
WS_O = 6 << 20
WS_H = 8 << 20
WS_FLAG = 16 << 20
WS_SIZE = 17 << 20

L_XN = 0
L_W = 65536
L_RING = 65536
L_ATT = 139264

S_X, S_WQ, S_WG, S_WU, S_WD, S_WO, S_OUT, S_WS, S_KV = 24, 28, 32, 36, 40, 44, 48, 52, 56
sW = 60
sRB, sCB, sHEAD, sQB, sRB2, sCB2, sCNT = 61, 62, 63, 64, 65, 66, 67
sA, sB, sC, sD, sE, sF = 68, 69, 70, 71, 72, 73
sMASK = 76


def f2u(x):
    return struct.unpack("<I", struct.pack("<f", x))[0]


def vr(b, n=1):
    return "v%d" % b if n == 1 else "v[%d:%d]" % (b, b + n - 1)


def sr(b, n=1):
    return "s%d" % b if n == 1 else "s[%d:%d]" % (b, b + n - 1)


class G:
    def __init__(self, opts):
        self.L = []
        self.o = opts
        self.cc = " sc1" if opts.get("sc1") else ""

    def __call__(self, *lines):
        for l in lines:
            self.L.extend(l.split("\n"))

    def label(self, n):
        self.L.append(n + ":")

    def mfma(self, d, a, b, c=None):
        cs = "0" if c == 0 else vr(d, 16)
        self("v_mfma_f32_32x32x16_bf16 %s, %s, %s, %s" % (vr(d, 16), vr(a, 4), vr(b, 4), cs))

    def srd(self, s, ptr, nbytes):
        self("s_mov_b32 s%d, s%d" % (s, ptr), "s_mov_b32 s%d, s%d" % (s + 1, ptr + 1),
             "s_mov_b32 s%d, 0x%x" % (s + 2, nbytes), "s_mov_b32 s%d, 0x20000" % (s + 3))

    def stamp(self, slot):
        if self.o.get("stamps"):
            self("%s s[%d:%d]" % ("s_memtime" if self.o.get("stamps") == 2 else "s_memrealtime", 78 + 2 * slot, 79 + 2 * slot))

    def stamp_init(self):
        if self.o.get("stamps"):
            for k in range(1, 12):
                self("s_mov_b32 s%d, 0" % (78 + 2 * k))

    def stamp_dump(self, base):
        if not self.o.get("stamps"):
            return
        g = self
        g("s_waitcnt vmcnt(0)")
        g.stamp(11)
        g("s_lshl_b32 s3, s2, 3", "s_add_u32 s3, s3, s11", "s_lshl_b32 s3, s3, 6",
          "s_add_u32 s3, s3, 0x%x" % (WS_FLAG + 65536 + base * 131072), "s_waitcnt lgkmcnt(0)", "v_mov_b32 v1, 0", "s_mov_b64 exec, 1")
        for k in range(12):
            g("v_mov_b32 v2, s%d" % (78 + 2 * k), "buffer_store_dword v2, v1, %s, s3 offen offset:%d" % (sr(S_WS, 4), 4 * k))

    def prologue(self, end):
        g = self
        g.stamp(0)
        g("s_cmp_ge_u32 s2, 0x100", "s_cbranch_scc1 %s" % end)
        g.stamp_init()
        g("s_load_dwordx4 s[4:7], s[0:1], 0", "s_load_dwordx2 s[8:9], s[0:1], 16",
          "s_load_dwordx8 s[12:19], s[0:1], 32", "s_load_dwordx4 s[20:23], s[0:1], 64")
        g("v_lshrrev_b32 v1, 6, v0", "v_and_b32 v0, 63, v0")
        g("s_and_b32 s3, s2, 7", "s_lshr_b32 s10, s2, 3")
        g("v_readfirstlane_b32 s11, v1")
        g("s_and_b32 s%d, s3, 3" % sCB, "s_lshl_b32 s%d, s%d, 1" % (sCB, sCB), "s_and_b32 s%d, s10, 1" % sA,
          "s_or_b32 s%d, s%d, s%d" % (sCB, sCB, sA))
        g("s_lshr_b32 s%d, s3, 2" % sRB, "s_lshl_b32 s%d, s%d, 4" % (sRB, sRB), "s_lshr_b32 s%d, s10, 1" % sA,
          "s_or_b32 s%d, s%d, s%d" % (sRB, sRB, sA))
        g("s_lshl_b32 s%d, s3, 2" % sHEAD, "s_and_b32 s%d, s10, 3" % sA, "s_or_b32 s%d, s%d, s%d" % (sHEAD, sHEAD, sA),
          "s_lshr_b32 s%d, s10, 2" % sQB)
        g("s_lshl_b32 s%d, s3, 2" % sRB2, "s_lshr_b32 s%d, s10, 3" % sA, "s_or_b32 s%d, s%d, s%d" % (sRB2, sRB2, sA),
          "s_and_b32 s%d, s10, 7" % sCB2)
        g("s_and_b32 s%d, s11, 3" % sW)
        g("s_waitcnt lgkmcnt(0)")
        g.srd(S_X, 4, 2048 * 1024)
        g.srd(S_WQ, 6, 512 * 3072)
        g.srd(S_WG, 12, 512 * 3584)
        g.srd(S_WU, 14, 512 * 3584)
        g.srd(S_WD, 16, 1792 * 1024)
        g.srd(S_WO, 8, 512 * 1024)
        g.srd(S_OUT, 18, 2048 * 1024)
        g.srd(S_WS, 22, WS_SIZE)
        g.stamp(1)

    def role_ln(self):
        g = self
        X = lambda e, i: 16 + 32 * e + 4 * i
        vXo, vWa = 4, 5
        SUM, SQ = (6, 8), (7, 9)
        RI, NB = (10, 12), (11, 13)
        T = 80
        g("v_lshrrev_b32 v2, 3, v0", "v_and_b32 v3, 7, v0")
        g("v_lshlrev_b32 v4, 10, v2", "v_lshl_add_u32 v4, v3, 4, v4")
        g("s_lshl_b32 s%d, s%d, 16" % (sA, sRB), "s_lshl_b32 s%d, s%d, 14" % (sB, sW),
          "s_add_u32 s%d, s%d, s%d" % (sA, sA, sB), "s_add_u32 s%d, s%d, 0x2000" % (sB, sA))
        for e in range(2):
            for i in range(8):
                g("buffer_load_dwordx4 %s, v4, %s, s%d offen offset:%d" % (vr(X(e, i), 4), sr(S_X, 4), sA + e, 128 * i))
        g("v_xor_b32 v5, v2, v3", "v_lshlrev_b32 v5, 4, v5", "v_lshl_add_u32 v5, v3, 9, v5")
        g("s_lshr_b32 s%d, s%d, 1" % (sC, sW), "s_lshl_b32 s%d, s%d, 15" % (sC, sC),
          "s_and_b32 s%d, s%d, 1" % (sD, sW), "s_lshl_b32 s%d, s%d, 8" % (sD, sD), "s_add_u32 s%d, s%d, s%d" % (sC, sC, sD))
        g("v_add_u32 v5, s%d, v5" % sC)
        g("s_mov_b32 s%d, 0x3f803f80" % sC, "s_mov_b32 s%d, 0xffff0000" % sD)
        for r in (6, 7, 8, 9):
            g("v_mov_b32 v%d, 0" % r)
        for e in range(2):
            for i in range(8):
                g("s_waitcnt vmcnt(%d)" % (15 - 8 * e - i))
                for k in range(4):
                    x = X(e, i) + k
                    g("v_dot2c_f32_bf16 v%d, s%d, v%d" % (SUM[e], sC, x), "v_dot2c_f32_bf16 v%d, v%d, v%d" % (SQ[e], x, x))
        g.stamp(2)
        for dpp in ("quad_perm:[1,0,3,2]", "quad_perm:[2,3,0,1]", "row_half_mirror"):
            for r in (6, 7, 8, 9):
                g("v_add_f32_dpp v%d, v%d, v%d %s row_mask:0xf bank_mask:0xf" % (r, r, r, dpp))
        inv = "0x%x" % f2u(1.0 / 512)
        eps = "0x%x" % f2u(1e-5)
        for e in range(2):
            g("v_mul_f32 v%d, %s, v%d" % (SUM[e], inv, SUM[e]), "v_mul_f32 v%d, %s, v%d" % (SQ[e], inv, SQ[e]))
        for e in range(2):
            g("v_fma_f32 v%d, -v%d, v%d, v%d" % (SQ[e], SUM[e], SUM[e], SQ[e]))
        for e in range(2):
            g("v_max_f32 v%d, 0, v%d" % (SQ[e], SQ[e]))
        for e in range(2):
            g("v_cvt_pk_bf16_f32 v%d, v%d, v%d" % (SQ[e], SUM[e], SQ[e]))
        for e in range(2):
            g("v_lshlrev_b32 v%d, 16, v%d" % (SUM[e], SQ[e]), "v_and_b32 v%d, s%d, v%d" % (SQ[e], sD, SQ[e]))
        for e in range(2):
            g("v_add_f32 v%d, %s, v%d" % (SQ[e], eps, SQ[e]))
        g("v_cvt_pk_bf16_f32 v7, v7, v9", "v_and_b32 v9, s%d, v7" % sD, "v_lshlrev_b32 v7, 16, v7")
        g("v_sqrt_f32 v7, v7", "v_sqrt_f32 v9, v9", "s_nop 0")
        g("v_cvt_pk_bf16_f32 v7, v7, v9", "v_and_b32 v9, s%d, v7" % sD, "v_lshlrev_b32 v7, 16, v7")
        g("v_rcp_f32 v%d, v7" % RI[0], "v_rcp_f32 v%d, v9" % RI[1], "s_nop 0")
        for e in range(2):
            g("v_mul_f32 v%d, v%d, v%d" % (NB[e], SUM[e], RI[e]))
        for i in range(8):
            for e in range(2):
                for k in range(4):
                    x = X(e, i) + k
                    t = T + 2 * k
                    g("v_lshlrev_b32 v%d, 16, v%d" % (t, x), "v_and_b32 v%d, s%d, v%d" % (t + 1, sD, x))
                    g("v_fma_f32 v%d, v%d, v%d, -v%d" % (t, t, RI[e], NB[e]), "v_fma_f32 v%d, v%d, v%d, -v%d" % (t + 1, t + 1, RI[e], NB[e]))
                    g("v_cvt_pk_bf16_f32 v%d, v%d, v%d" % (x, t, t + 1))
                g("ds_write_b128 v5, %s offset:%d" % (vr(X(e, i), 4), i * 4096 + e * 128))
            g("s_waitcnt lgkmcnt(0)", "s_barrier")

    def role_qkv(self):
        g = self
        AQ, AK, AV = 16, 32, 48
        WB = (64, 76)
        XB = (88, 92)
        vXr = 4
        vT = (8, 9)
        vD = 96
        g("v_lshrrev_b32 v2, 3, v0", "v_and_b32 v3, 7, v0")
        g("v_lshrrev_b32 v1, 2, v0", "v_and_b32 v1, 4, v1", "v_xor_b32 v3, v3, v1")
        g("s_lshl_b32 s%d, s%d, 4" % (sA, sW), "v_add_u32 v2, s%d, v2" % sA, "v_mul_u32_u24 v2, 0xc00, v2")
        g("s_lshl_b32 s%d, s%d, 7" % (sA, sCB), "v_lshl_add_u32 v2, v3, 4, v2", "v_add_u32 v%d, s%d, v2" % (vD, sA))
        for seg in range(3):
            for e in range(2):
                if seg or e:
                    g("v_add_u32 v%d, 0x%x, v%d" % (vD + 2 * seg + e, seg * 1024 + e * (8 * 3072 - 1024), vD))
        g("s_mul_i32 s%d, s%d, 0x1800" % (sC, sW), "s_add_u32 s%d, s%d, 0x%x" % (sC, sC, L_W))

        def dma(st):
            g("s_mov_b32 s%d, 0x%x" % (sA, st * 64 * 3072))
            for seg in range(3):
                g("s_add_u32 m0, s%d, 0x%x" % (sC, (st & 3) * 24576 + seg * 2048))
                if seg:
                    g("s_nop 0")
                else:
                    g("s_nop 0")
                g("buffer_load_dwordx4 v%d, %s, s%d offen lds" % (vD + 2 * seg, sr(S_WQ, 4), sA))
                g("buffer_load_dwordx4 v%d, %s, s%d offen offset:1024 lds" % (vD + 2 * seg + 1, sr(S_WQ, 4), sA))
        for st in range(4):
            dma(st)
        g("v_lshrrev_b32 v1, 5, v0")
        g("s_and_b32 s%d, s%d, 1" % (sA, sW), "s_lshl_b32 s%d, s%d, 15" % (sE, sA))
        g("v_xor_b32 v2, v0, v1")
        for q in range(4):
            g("v_xor_b32 v3, %d, v2" % (2 * q), "v_lshlrev_b32 v3, 4, v3", "v_add_u32 v3, 0x%x, v3" % (q * 1024),
              "v_add_u32 v%d, s%d, v3" % (vXr + q, sE))
        g("v_bfe_u32 v2, v0, 2, 2")
        g("v_lshl_add_u32 v3, v1, 3, v2", "v_lshlrev_b32 v3, 7, v3")
        g("v_lshrrev_b32 v2, 1, v2", "s_lshr_b32 s%d, s%d, 1" % (sA, sW), "v_xor_b32 v2, s%d, v2" % sA,
          "v_lshl_add_u32 v3, v2, 6, v3")
        g("v_bfe_u32 v2, v0, 4, 1", "v_lshl_add_u32 v3, v2, 5, v3", "v_and_b32 v2, 3, v0", "v_lshl_add_u32 v3, v2, 3, v3")
        g("v_add_u32 v%d, 0x%x, v3" % (vT[0], L_W), "v_add_u32 v%d, 0x%x, v3" % (vT[1], L_W + 49152))

        def reads(n):
            st, ks = n >> 2, n & 3
            b = n & 1
            slot = st & 3
            L = ["ds_read_b128 %s, v%d offset:%d" % (vr(XB[b], 4), vXr + ks, st * 4096)]
            for seg in range(3):
                for p in range(2):
                    L.append("ds_read_b64_tr_b16 %s, v%d offset:%d" % (vr(WB[b] + 4 * seg + 2 * p, 2), vT[slot >> 1],
                                                                      (slot & 1) * 24576 + ks * 6144 + seg * 2048 + p * 512))
            return L

        def mm(n):
            b = n & 1
            c = 0 if n == 0 else None
            return [(AQ, WB[b], XB[b], c), (AK, WB[b] + 4, XB[b], c), (AV, XB[b], WB[b] + 8, c)]
        g("s_waitcnt vmcnt(18)")
        g.stamp(2)
        g("s_barrier")
        g.stamp(3)
        g(*reads(0))
        for n in range(32):
            st, ks = n >> 2, n & 3
            M = mm(n)
            if ks == 3 and st < 7:
                infl = min(3, 7 - st) - 1 if st >= 1 else 2
                infl = len([x for x in range(st + 2, min(8, st + 4))])
                g("s_waitcnt vmcnt(%d) lgkmcnt(0)" % (6 * infl), "s_barrier")
                R = reads(n + 1)
                g.mfma(*M[0])
                g(*R[:4])
                g.mfma(*M[1])
                g(*R[4:])
                g.mfma(*M[2])
                if st + 4 < 8:
                    dma(st + 4)
            else:
                R = reads(n + 1) if n + 1 < 32 else []
                g("s_waitcnt lgkmcnt(0)")
                g.mfma(*M[0])
                g(*R[:4])
                g.mfma(*M[1])
                g(*R[4:])
                g.mfma(*M[2])
        g.stamp(4)
        g("s_lshl_b32 s%d, s%d, 1" % (sA, sRB), "s_and_b32 s%d, s%d, 1" % (sB, sW), "s_add_u32 s%d, s%d, s%d" % (sA, sA, sB))
        g("s_lshl_b32 s%d, s%d, 2" % (sB, sCB), "s_and_b32 s%d, s%d, 2" % (sC, sW), "s_add_u32 s%d, s%d, s%d" % (sB, sB, sC))
        g("s_lshl_b32 s%d, s%d, 6" % (sB, sB), "s_add_u32 s%d, s%d, s%d" % (sB, sB, sA))
        g("s_lshl_b32 s%d, s%d, 10" % (sA, sB), "s_add_u32 s%d, s%d, 0x10000" % (sC, sA))
        g("s_lshl_b32 s%d, s%d, 11" % (sB, sB), "s_add_u32 s%d, s%d, 0x%x" % (sB, sB, WS_KV), "s_add_u32 s%d, s%d, 0x20000" % (sD, sB))
        g("v_lshlrev_b32 v10, 4, v0")
        g("v_bfe_u32 v2, v0, 4, 1", "v_lshlrev_b32 v2, 17, v2", "v_lshl_add_u32 v2, v1, 8, v2", "v_and_b32 v3, 15, v0",
          "v_lshl_add_u32 v11, v3, 4, v2")
        sc = "0x%x" % f2u(0.25 * math.log2(math.e))
        g("s_mov_b32 s%d, %s" % (sF, sc))
        P = 64
        for k in range(16):
            g("v_mul_f32 v%d, s%d, v%d" % (AQ + k, sF, AQ + k))
        for k in range(8):
            g("v_cvt_pk_bf16_f32 v%d, v%d, v%d" % (P + k, AQ + 2 * k, AQ + 2 * k + 1))
            if k == 3:
                g("buffer_store_dwordx4 %s, v10, %s, s%d offen%s" % (vr(P, 4), sr(S_WS, 4), sA, g.cc))
        g("buffer_store_dwordx4 %s, v10, %s, s%d offen%s" % (vr(P + 4, 4), sr(S_WS, 4), sC, g.cc))
        for k in range(8):
            g("v_cvt_pk_bf16_f32 v%d, v%d, v%d" % (P + 8 + k, AK + 2 * k, AK + 2 * k + 1))
            if k == 3:
                g("buffer_store_dwordx4 %s, v10, %s, s%d offen%s" % (vr(P + 8, 4), sr(S_WS, 4), sB, g.cc))
        g("buffer_store_dwordx4 %s, v10, %s, s%d offen%s" % (vr(P + 12, 4), sr(S_WS, 4), sD, g.cc))
        for k in range(8):
            g("v_cvt_pk_bf16_f32 v%d, v%d, v%d" % (P + 16 + k, AV + 2 * k, AV + 2 * k + 1))
            if k == 3:
                g("buffer_store_dwordx4 %s, v11, %s, s%d offen offset:1024%s" % (vr(P + 16, 4), sr(S_WS, 4), sB, g.cc))
        g("buffer_store_dwordx4 %s, v11, %s, s%d offen offset:1536%s" % (vr(P + 20, 4), sr(S_WS, 4), sB, g.cc))

    def role_gu(self, done):
        g = self
        ACC = lambda tt, j: 128 + 16 * (4 * tt + j)
        AB = (16, 32)
        BB = (48, 56)
        vXr = 4
        vTg = 112
        vG = 116
        g("s_cmp_eq_u32 s%d, 7" % sCB, "s_cbranch_scc1 %s" % done)
        g("v_lshrrev_b32 v2, 3, v0", "v_mul_u32_u24 v2, 0xe00, v2")
        g("s_lshl_b32 s%d, s%d, 2" % (sA, sCB), "s_add_u32 s%d, s%d, s%d" % (sA, sA, sW), "s_lshl_b32 s%d, s%d, 7" % (sB, sA))
        g("v_add_u32 v2, s%d, v2" % sB)
        g("v_lshrrev_b32 v3, 3, v0", "v_and_b32 v3, 2, v3", "v_xor_b32 v3, v3, v0", "v_and_b32 v3, 7, v3")
        g("v_lshl_add_u32 v%d, v3, 4, v2" % vG, "v_xor_b32 v3, 4, v3", "v_lshl_add_u32 v%d, v3, 4, v2" % (vG + 2))
        g("v_add_u32 v%d, 0x%x, v%d" % (vG + 1, 8 * 3584 - 1024, vG), "v_add_u32 v%d, 0x%x, v%d" % (vG + 3, 8 * 3584 - 1024, vG + 2))
        g("s_lshl_b32 s%d, s%d, 14" % (sC, sW), "s_add_u32 s%d, s%d, 0x%x" % (sC, sC, L_RING))
        g("s_mov_b32 s%d, 0" % sD)

        def dma(slot):
            L = []
            for gg in range(2):
                L.append("s_add_u32 m0, s%d, 0x%x" % (sC, slot * 4096 + gg * 2048))
                L.append("s_nop 0")
                L.append("buffer_load_dwordx4 v%d, %s, s%d offen lds" % (vG + 2 * gg, sr(S_WG + 4 * gg, 4), sD))
                L.append("buffer_load_dwordx4 v%d, %s, s%d offen offset:1024 lds" % (vG + 2 * gg + 1, sr(S_WG + 4 * gg, 4), sD))
            L.append("s_add_u32 s%d, s%d, 0x%x" % (sD, sD, 16 * 3584))
            return L
        for s in range(4):
            g(*dma(s))
        g("v_lshrrev_b32 v1, 5, v0", "v_bfe_u32 v2, v0, 2, 2", "v_lshl_add_u32 v3, v1, 3, v2", "v_lshlrev_b32 v3, 7, v3")
        g("v_bfe_u32 v8, v0, 4, 1", "v_lshl_add_u32 v3, v8, 11, v3", "v_and_b32 v9, 3, v0", "v_lshl_add_u32 v3, v9, 3, v3")
        g("v_add_u32 v3, s%d, v3" % sC)
        g("v_lshrrev_b32 v2, 1, v2", "v_lshl_add_u32 v2, v8, 1, v2")
        for j in range(4):
            g("v_xor_b32 v8, %d, v2" % j, "v_lshl_add_u32 v%d, v8, 5, v3" % (vTg + j))
        for q in range(4):
            g("v_subrev_u32 v%d, s%d, v%d" % (vXr + q, sE, vXr + q))
        g("s_lshl_b32 s%d, s%d, 1" % (sB, sRB), "s_mul_i32 s%d, s%d, 112" % (sB, sB), "s_lshl_b32 s%d, s%d, 2" % (sA, sA),
          "s_add_u32 s%d, s%d, s%d" % (sA, sA, sB), "s_lshl_b32 s%d, s%d, 10" % (sA, sA), "s_add_u32 s%d, s%d, 0x%x" % (sA, sA, WS_H),
          "s_add_u32 s%d, s%d, 0x%x" % (sB, sA, 112 * 1024))

        def reads(u, nxt_iter=False):
            b = u & 1
            L = []
            L.append("ds_read_b128 %s, v%d offset:%d" % (vr(BB[b], 4), vXr + u, 0))
            for p in range(2):
                L.append("ds_read_b64_tr_b16 %s, v%d offset:%d" % (vr(AB[b] + 2 * p, 2), vTg, u * 4096 + p * 512))
            L.append("ds_read_b128 %s, v%d offset:%d" % (vr(BB[b] + 4, 4), vXr + u, 32768))
            for j in range(1, 4):
                for p in range(2):
                    L.append("ds_read_b64_tr_b16 %s, v%d offset:%d" % (vr(AB[b] + 4 * j + 2 * p, 2), vTg + j, u * 4096 + p * 512))
            L.append("v_add_u32 v%d, 0x1000, v%d" % (vXr + u, vXr + u))
            return L

        def step(u, first=False):
            b = u & 1
            c = 0 if first else None
            M = [(ACC(tt, j), AB[b] + 4 * j, BB[b] + 4 * tt, c) for j in range(4) for tt in range(2)]
            R = reads((u + 1) & 3)
            D = dma(u)
            g("s_waitcnt lgkmcnt(0)")
            g.mfma(*M[0])
            g(*D[:4])
            g.mfma(*M[1])
            g(*D[4:])
            g.mfma(*M[2])
            g("s_waitcnt vmcnt(12)")
            g(*R[0:3])
            g.mfma(*M[3])
            g(*R[3:6])
            g.mfma(*M[4])
            g(*R[6:8])
            g.mfma(*M[5])
            g(*R[8:10])
            g.mfma(*M[6])
            g(R[10])
            g.mfma(*M[7])
        g.stamp(5)
        g("s_waitcnt vmcnt(12)")
        g.stamp(6)
        g(*reads(0))
        g("s_mov_b32 s%d, 8" % sCNT)
        step(0, first=True)
        g("s_branch L_gu_1")
        g.label("L_gu_0")
        step(0)
        g.label("L_gu_1")
        step(1)
        step(2)
        step(3)
        g("s_sub_u32 s%d, s%d, 1" % (sCNT, sCNT), "s_cmp_lg_u32 s%d, 0" % sCNT, "s_cbranch_scc1 L_gu_0")
        g("s_waitcnt vmcnt(0) lgkmcnt(0)")
        g.stamp(7)
        g("v_lshlrev_b32 v10, 4, v0")
        g("s_nop 7")
        order = [(tt, j) for j in range(4) for tt in range(2)]
        for n, (tt, j) in enumerate(order):
            a = ACC(tt, j)
            P = 16 + 4 * n
            for k in range(8):
                g("v_max_f32 v%d, 0, v%d" % (a + k, a + k))
            for k in range(8):
                g("v_mul_f32 v%d, v%d, v%d" % (a + k, a + k, a + 8 + k))
            for k in range(4):
                g("v_cvt_pk_bf16_f32 v%d, v%d, v%d" % (P + k, a + 2 * k, a + 2 * k + 1))
            g("buffer_store_dwordx4 %s, v10, %s, s%d offen offset:%d%s" % (vr(P, 4), sr(S_WS, 4), sA + tt, j * 1024, g.cc))

    def role_attn(self):
        g = self
        O = lambda i: 128 + 16 * i
        Q = lambda i: 16 + 4 * i
        S = (32, 48)
        P = 64
        KB = lambda b: 72 + 12 * b
        VB = lambda b, t: 72 + 12 * b + 4 + 4 * t
        vL, vV = 4, 5
        cc = g.cc
        g("v_lshlrev_b32 v4, 4, v0")
        g("v_lshrrev_b32 v1, 5, v0", "v_and_b32 v2, 15, v0", "v_lshlrev_b32 v2, 4, v2", "v_lshl_add_u32 v5, v1, 8, v2")
        g("s_and_b32 s%d, s%d, 1" % (sA, sW), "s_lshr_b32 s%d, s%d, 1" % (sB, sW))
        g("s_lshl_b32 s%d, s%d, 3" % (sC, sQB), "s_lshl_b32 s%d, s%d, 2" % (sA, sA), "s_add_u32 s%d, s%d, s%d" % (sC, sC, sA))
        g("s_lshl_b32 s%d, s%d, 6" % (sD, sHEAD))
        g("s_lshl_b32 s%d, s%d, 5" % (sA, sB), "s_add_u32 s%d, s%d, s%d" % (sA, sA, sD), "s_lshl_b32 s%d, s%d, 11" % (sA, sA),
          "s_add_u32 s%d, s%d, 0x%x" % (sA, sA, WS_KV))
        g("s_add_u32 s%d, s22, s%d" % (S_KV, sA), "s_addc_u32 s%d, s23, 0" % (S_KV + 1), "s_mov_b32 s%d, 0x10000" % (S_KV + 2),
          "s_mov_b32 s%d, 0x20000" % (S_KV + 3))
        g("s_lshl_b32 s%d, s%d, 1" % (sB, sB), "s_add_u32 s%d, s%d, s%d" % (sE, sC, sB), "s_xor_b32 s%d, s%d, 2" % (sF, sE))
        g("s_add_u32 s%d, s%d, s%d" % (sA, sE, sD), "s_lshl_b32 s%d, s%d, 10" % (sA, sA))
        g("s_add_u32 s%d, s%d, s%d" % (sB, sF, sD), "s_lshl_b32 s%d, s%d, 10" % (sB, sB))
        g("s_mov_b32 s%d, 0xffff" % sMASK, "s_mov_b32 s%d, 0xffff" % (sMASK + 1))
        for b in range(4):
            for k in range(8):
                g("v_mov_b32 v%d, 0x3f803f80" % (VB(b, 0) + k))
        self.attn_wait_inputs()
        for i in range(4):
            g("buffer_load_dwordx4 %s, v4, %s, s%d offen offset:%d%s" % (vr(Q(i), 4), sr(S_WS, 4), sA + (i >> 1), (i & 1) * 1024, cc))
        g("s_mov_b32 s%d, 0" % sD)

        def loads(b0):
            L = []
            for t in range(2):
                L.append("buffer_load_dwordx4 %s, v4, %s, s%d offen offset:%d%s" % (vr(KB(b0 + t), 4), sr(S_KV, 4), sD, t * 2048, cc))
            L.append("s_mov_b64 exec, %s" % sr(sMASK, 2))
            for t in range(2):
                for hh in range(2):
                    L.append("buffer_load_dwordx4 %s, v5, %s, s%d offen offset:%d%s" % (vr(VB(b0 + t, hh), 4), sr(S_KV, 4), sD, t * 2048 + 1024 + hh * 512, cc))
            L.append("s_mov_b64 exec, -1")
            L.append("s_add_u32 s%d, s%d, 0x1000" % (sD, sD))
            return L
        g(*loads(0))
        for k in range(64):
            g("v_mov_b32 v%d, 0" % (O(0) + k))
        g("s_mov_b32 s%d, 8" % sCNT)
        g("s_waitcnt vmcnt(5)")
        g.mfma(S[0], KB(0), Q(0), 0)
        g("s_waitcnt vmcnt(0)", "s_nop 9")
        g.stamp(4)

        def e(n, k):
            s = S[n & 1] + k
            g("v_exp_f32 v%d, v%d" % (s, s))

        def c(n, k):
            s = S[n & 1] + 2 * k
            g("v_cvt_pk_bf16_f32 v%d, v%d, v%d" % (P + k, s, s + 1))

        def head(n):
            nn = (n + 1) & 15
            if n in (7, 15):
                g("s_waitcnt vmcnt(0)")
            g.mfma(S[nn & 1], KB(nn >> 2), Q(nn & 3), 0)
            e(n, 0); e(n, 1); e(n, 2); c(n, 0); e(n, 3); e(n, 4); c(n, 1); e(n, 5)

        def m2(n):
            pn = (n - 1) & 15
            g.mfma(O(pn & 3), VB(pn >> 2, 1), P + 4)

        def tail(n):
            X = loads(2) if n == 0 else (loads(0) if n == 8 else [])
            X = X + [None] * 9
            def x(i):
                if X[i]:
                    g(X[i])
            e(n, 6); x(0); c(n, 2); e(n, 7); x(1); e(n, 8); c(n, 3)
            for i in range(2, 8):
                x(i)
            e(n, 9); e(n, 10)
            g.mfma(O(n & 3), VB(n >> 2, 0), P)
            x(8)
            c(n, 4); e(n, 11); e(n, 12); c(n, 5); e(n, 13); e(n, 14); e(n, 15); c(n, 6); c(n, 7)
        head(0)
        g("s_branch L_at_entry")
        g.label("L_at_loop")
        head(0)
        m2(0)
        g.label("L_at_entry")
        tail(0)
        for n in range(1, 16):
            head(n)
            m2(n)
            if n == 15:
                g("s_sub_u32 s%d, s%d, 1" % (sCNT, sCNT))
            tail(n)
        g("s_cmp_lg_u32 s%d, 0" % sCNT, "s_cbranch_scc1 L_at_loop")
        m2(0)
        g.stamp(5)
        g("s_xor_b32 s%d, s%d, 2" % (sA, sW), "s_mul_i32 s%d, s%d, 0x1200" % (sA, sA), "s_add_u32 s%d, s%d, 0x%x" % (sA, sA, g.o["l_att"]))
        g("s_mul_i32 s%d, s%d, 0x1200" % (sB, sW), "s_add_u32 s%d, s%d, 0x%x" % (sB, sB, g.o["l_att"]))
        g("v_add_u32 v6, s%d, v4" % sA, "v_add_u32 v7, s%d, v4" % sB)
        g("v_lshlrev_b32 v8, 2, v0", "v_add_u32 v9, s%d, v8" % sB, "v_add_u32 v8, s%d, v8" % sA)
        g("ds_write_b128 v6, %s" % vr(O(2), 4), "ds_write_b128 v6, %s offset:1024" % vr(O(2) + 4, 4), "ds_write_b32 v8, v%d offset:2048" % (O(2) + 8))
        g("s_nop 1")
        g("ds_write_b128 v6, %s offset:2304" % vr(O(3), 4), "ds_write_b128 v6, %s offset:3328" % vr(O(3) + 4, 4),
          "ds_write_b32 v8, v%d offset:4352" % (O(3) + 8))
        g("s_waitcnt lgkmcnt(0)")
        self.attn_pair_sync()
        T = 32
        g("ds_read_b128 %s, v7" % vr(T, 4), "ds_read_b128 %s, v7 offset:1024" % vr(T + 4, 4), "ds_read_b32 v%d, v9 offset:2048" % (T + 8))
        g("ds_read_b128 %s, v7 offset:2304" % vr(T + 12, 4), "ds_read_b128 %s, v7 offset:3328" % vr(T + 16, 4), "ds_read_b32 v%d, v9 offset:4352" % (T + 20))
        g("s_lshl_b32 s%d, s%d, 5" % (sA, sE), "s_add_u32 s%d, s%d, s%d" % (sA, sA, sHEAD), "s_lshl_b32 s%d, s%d, 10" % (sA, sA),
          "s_add_u32 s%d, s%d, 0x%x" % (sA, sA, WS_O), "s_add_u32 s%d, s%d, 0x8000" % (sB, sA))
        g("s_waitcnt lgkmcnt(3)")
        for k in range(9):
            g("v_add_f32 v%d, v%d, v%d" % (O(0) + k, O(0) + k, T + k))
        g("s_waitcnt lgkmcnt(0)")
        for k in range(9):
            g("v_add_f32 v%d, v%d, v%d" % (O(1) + k, O(1) + k, T + 12 + k))
        g("v_subrev_u32 v10, 0x21800000, v%d" % (O(0) + 8), "v_subrev_u32 v11, 0x21800000, v%d" % (O(1) + 8), "v_max_u32 v10, v10, v11")
        g("v_cmp_lt_u32 vcc, 0x3c000000, v10", "s_nop 1", "s_and_b64 vcc, exec, vcc", "s_cbranch_vccnz L_at_slow")
        g.label("L_at_norm")
        g("v_rcp_f32 v10, v%d" % (O(0) + 8), "v_rcp_f32 v11, v%d" % (O(1) + 8), "s_nop 0")
        for i in range(2):
            for k in range(8):
                g("v_mul_f32 v%d, v%d, v%d" % (O(i) + k, O(i) + k, 10 + i))
            for k in range(4):
                g("v_cvt_pk_bf16_f32 v%d, v%d, v%d" % (T + 4 * i + k, O(i) + 2 * k, O(i) + 2 * k + 1))
            g("buffer_store_dwordx4 %s, v4, %s, s%d offen%s" % (vr(T + 4 * i, 4), sr(S_WS, 4), sA + i, cc))

    def role_attn_slow(self):
        g = self
        O = lambda i: 128 + 16 * i
        Q = lambda i: 16 + 4 * i
        S0, P, KB0, V0, V1 = 32, 64, 72, 76, 80
        cc = g.cc
        g.label("L_at_slow")
        g("s_lshl_b32 s%d, s%d, 17" % (sC, sHEAD), "s_add_u32 s%d, s%d, 0x%x" % (sC, sC, WS_KV))
        g("s_add_u32 s%d, s22, s%d" % (S_KV, sC), "s_addc_u32 s%d, s23, 0" % (S_KV + 1), "s_mov_b32 s%d, 0x20000" % (S_KV + 2),
          "s_mov_b32 s%d, 0x20000" % (S_KV + 3))
        g("s_mov_b32 s%d, 0" % sCNT)
        g.label("L_sl_tile")
        g("v_mov_b32 v12, 0xff800000", "s_mov_b32 s%d, 0" % sD)
        g.label("L_sl_max")
        g("buffer_load_dwordx4 %s, v4, %s, s%d offen%s" % (vr(KB0, 4), sr(S_KV, 4), sD, cc), "s_waitcnt vmcnt(0)")
        g.mfma(S0, KB0, Q(0), 0)
        g("s_nop 11")
        for k in range(8):
            g("v_max3_f32 v12, v12, v%d, v%d" % (S0 + 2 * k, S0 + 2 * k + 1))
        g("s_add_u32 s%d, s%d, 0x800" % (sD, sD), "s_cmp_lt_u32 s%d, 0x20000" % sD, "s_cbranch_scc1 L_sl_max")
        g("v_mov_b32 v13, v12", "s_nop 1", "v_permlane32_swap_b32 v12, v13", "s_nop 1", "v_max_f32 v12, v12, v13")
        for k in range(16):
            g("v_mov_b32 v%d, 0" % (O(0) + k))
        g("s_mov_b32 s%d, 0" % sD)
        g.label("L_sl_acc")
        g("buffer_load_dwordx4 %s, v4, %s, s%d offen%s" % (vr(KB0, 4), sr(S_KV, 4), sD, cc))
        g("s_mov_b64 exec, %s" % sr(sMASK, 2))
        g("buffer_load_dwordx4 %s, v5, %s, s%d offen offset:1024%s" % (vr(V0, 4), sr(S_KV, 4), sD, cc))
        g("buffer_load_dwordx4 %s, v5, %s, s%d offen offset:1536%s" % (vr(V1, 4), sr(S_KV, 4), sD, cc))
        g("s_mov_b64 exec, -1", "s_waitcnt vmcnt(0)")
        g.mfma(S0, KB0, Q(0), 0)
        g("s_nop 11")
        for k in range(16):
            g("v_sub_f32 v%d, v%d, v12" % (S0 + k, S0 + k))
        for k in range(16):
            g("v_exp_f32 v%d, v%d" % (S0 + k, S0 + k))
        g("s_nop 0")
        for k in range(8):
            g("v_cvt_pk_bf16_f32 v%d, v%d, v%d" % (P + k, S0 + 2 * k, S0 + 2 * k + 1))
        g("s_nop 1")
        g.mfma(O(0), V0, P)
        g.mfma(O(0), V1, P + 4)
        g("s_add_u32 s%d, s%d, 0x800" % (sD, sD), "s_cmp_lt_u32 s%d, 0x20000" % sD, "s_cbranch_scc1 L_sl_acc")
        g("s_nop 11")
        g("s_cmp_eq_u32 s%d, 1" % sCNT, "s_cbranch_scc1 L_sl_done")
        for k in range(9):
            g("v_mov_b32 v%d, v%d" % (O(2) + k, O(0) + k))
        for k in range(4):
            g("v_mov_b32 v%d, v%d" % (Q(0) + k, Q(1) + k))
        g("s_mov_b32 s%d, 1" % sCNT, "s_branch L_sl_tile")
        g.label("L_sl_done")
        for k in range(9):
            g("v_mov_b32 v%d, v%d" % (O(1) + k, O(0) + k), "v_mov_b32 v%d, v%d" % (O(0) + k, O(2) + k))
        g("s_branch L_at_norm")

    def attn_wait_inputs(self):
        pass

    def attn_pair_sync(self):
        self("s_barrier")

    def down_wait_h(self):
        pass

    def down_wait_o(self):
        pass

    def role_down(self):
        g = self
        ACC = lambda ln, lt: 128 + 16 * (ln + 2 * lt)
        HB = lambda slot, lt: 32 + 8 * slot + 4 * lt
        AB = (16, 24)
        vH = (4, 5)
        vT = (6, 7)
        vD = (8, 9)
        vX = 10
        cc = g.cc
        R = 7
        g("v_lshrrev_b32 v2, 3, v0", "v_lshrrev_b32 v3, 2, v0", "v_and_b32 v3, 4, v3", "v_xor_b32 v3, v3, v0", "v_and_b32 v3, 7, v3")
        g("v_lshlrev_b32 v2, 10, v2", "v_lshl_add_u32 v2, v3, 4, v2", "s_lshl_b32 s%d, s%d, 7" % (sA, sCB2),
          "v_add_u32 v8, s%d, v2" % sA, "v_add_u32 v9, 0x1c00, v8")
        g("s_lshl_b32 s%d, s%d, 14" % (sC, sW), "s_add_u32 s%d, s%d, 0x%x" % (sC, sC, g.o["l_ring"]))
        g("s_mul_i32 s%d, s%d, 0x%x" % (sD, sW, 28 * 16384))
        g("s_lshr_b32 s%d, s%d, 1" % (sA, sW), "s_mul_i32 s%d, s%d, 0x%x" % (sB, sA, 112 * 1024), "v_lshlrev_b32 v1, 4, v0",
          "v_add_u32 v4, s%d, v1" % sB, "s_xor_b32 s%d, s%d, 0x%x" % (sB, sB, 112 * 1024), "v_add_u32 v5, s%d, v1" % sB)
        g("s_mul_i32 s%d, s%d, 0x%x" % (sE, sRB2, 224 * 1024), "s_mul_i32 s%d, s%d, 0x%x" % (sB, sW, 28 * 1024),
          "s_add_u32 s%d, s%d, s%d" % (sE, sE, sB), "s_add_u32 s%d, s%d, 0x%x" % (sE, sE, WS_H))

        def wdma(slot, srd, soff, inc):
            return ["s_add_u32 m0, s%d, 0x%x" % (sC, slot * 2048), "s_nop 0",
                    "buffer_load_dwordx4 v8, %s, s%d offen lds" % (sr(srd, 4), soff),
                    "buffer_load_dwordx4 v9, %s, s%d offen offset:1024 lds" % (sr(srd, 4), soff),
                    "s_add_u32 s%d, s%d, 0x%x" % (soff, soff, inc)]

        def hload(slot):
            return ["buffer_load_dwordx4 %s, v4, %s, s%d offen%s" % (vr(HB(slot, 0), 4), sr(S_WS, 4), sE, cc),
                    "buffer_load_dwordx4 %s, v5, %s, s%d offen%s" % (vr(HB(slot, 1), 4), sr(S_WS, 4), sE, cc),
                    "s_add_u32 s%d, s%d, 0x400" % (sE, sE)]
        g("v_and_b32 v2, 31, v0", "v_lshrrev_b32 v3, 5, v0", "v_lshlrev_b32 v2, 10, v2")
        g("s_lshl_b32 s%d, s%d, 1" % (sB, sRB2), "s_add_u32 s%d, s%d, s%d" % (sB, sB, sA), "s_lshl_b32 s%d, s%d, 15" % (sB, sB))
        g("s_lshl_b32 s%d, s%d, 1" % (sF, sCB2), "s_and_b32 s%d, s%d, 1" % (sA, sW), "s_add_u32 s%d, s%d, s%d" % (sF, sF, sA),
          "s_lshl_b32 s%d, s%d, 6" % (sF, sF), "s_add_u32 s74, s%d, s%d" % (sB, sF))
        g("v_lshl_add_u32 v10, v3, 3, v2", "v_lshl_add_u32 v11, v3, 4, v2")
        for i in range(4):
            g("buffer_load_dwordx2 %s, v10, %s, s74 offen offset:%d" % (vr(96 + 2 * i, 2), sr(S_X, 4), 16 * i))
        g("v_bfe_u32 v2, v0, 2, 2", "v_lshl_add_u32 v3, v3, 2, v2", "v_lshlrev_b32 v3, 7, v3")
        g("v_bfe_u32 v12, v0, 4, 1", "v_lshl_add_u32 v3, v12, 5, v3", "v_and_b32 v12, 3, v0", "v_lshl_add_u32 v3, v12, 3, v3")
        g("v_add_u32 v3, s%d, v3" % sC, "v_lshrrev_b32 v2, 1, v2", "v_xor_b32 v2, s%d, v2" % sA)
        g("v_lshl_add_u32 v6, v2, 6, v3", "v_xor_b32 v2, 1, v2", "v_lshl_add_u32 v7, v2, 6, v3")
        for s in range(R):
            g(*wdma(s, S_WD, sD, 16384))
        self.down_wait_h()
        for s in range(R):
            g(*hload(s))
        g("s_waitcnt vmcnt(28)")
        g("s_mov_b32 s%d, 0xffff0000" % sA)
        for k in range(8):
            g("v_lshlrev_b32 v%d, 16, v%d" % (ACC(0, 0) + 2 * k, 96 + k), "v_and_b32 v%d, s%d, v%d" % (ACC(0, 0) + 2 * k + 1, sA, 96 + k))

        def treads(slot, b):
            return ["ds_read_b64_tr_b16 %s, v%d offset:%d" % (vr(AB[b] + 4 * ln + 2 * p, 2), vT[ln], slot * 2048 + p * 1024)
                    for ln in range(2) for p in range(2)]

        def mms(hslot, b, first=False):
            return [(ACC(ln, lt), AB[b] + 4 * ln, HB(hslot, lt), (0 if first and (ln or lt) else None)) for ln in range(2) for lt in range(2)]
        g("s_waitcnt vmcnt(14)")
        g.stamp(8)
        g(*treads(0, 0))
        def step(u, par, vmwait, refill, first=False, nxt=True):
            M = mms(u, par, first)
            if vmwait is not None:
                g("s_waitcnt vmcnt(%d) lgkmcnt(0)" % vmwait)
            else:
                g("s_waitcnt lgkmcnt(0)")
            Rd = treads(nxt, par ^ 1) if nxt is not None else []
            g.mfma(*M[0])
            g(*Rd[:2])
            g.mfma(*M[1])
            g(*Rd[2:])
            g.mfma(*M[2])
            g(*refill[:len(refill) // 2])
            g.mfma(*M[3])
            g(*refill[len(refill) // 2:])
        for s in range(R):
            need_h = 2 * (R - 1 - s) + 4 * s
            if s == R - 1:
                need_h = min(need_h, 4 * (R - 2) + 2)
            ref = wdma(s, S_WD, sD, 16384)[:] + hload(s)
            step(s, s & 1, need_h, ref, first=(s == 0), nxt=(s + 1) % R)
        for it in range(2):
            for s in range(R):
                gs = R * (it + 1) + s
                ref = wdma(s, S_WD, sD, 16384) + hload(s)
                step(s, gs & 1, 4 * (R - 2) + 2, ref, nxt=(s + 1) % R)
        g("s_lshl_b32 s%d, s%d, 17" % (sF, sW))
        for s in range(R):
            gs = 3 * R + s
            if s < R - 1:
                vm = 2 + 4 * (R - 2 - s) + 2 * s
                nxt = s + 1
            else:
                vm = 2 * (R - 1) - 2 if False else 2 * s
                nxt = None
            ref = wdma(s, S_WO, sF, 16384)
            step(s, gs & 1, vm, ref, nxt=nxt)
        g.stamp(9)
        g(*wdma(7, S_WO, sF, 16384))
        g("s_lshl_b32 s%d, s%d, 16" % (sE, sRB2), "s_lshl_b32 s%d, s%d, 13" % (sB, sW), "s_add_u32 s%d, s%d, s%d" % (sE, sE, sB),
          "s_add_u32 s%d, s%d, 0x%x" % (sE, sE, WS_O), "s_add_u32 s%d, s%d, 0x1000" % (sB, sE))
        g("s_lshr_b32 s%d, s%d, 1" % (sA, sW), "s_lshl_b32 s%d, s%d, 15" % (sA, sA), "v_add_u32 v4, s%d, v1" % sA,
          "s_xor_b32 s%d, s%d, 0x8000" % (sA, sA), "v_add_u32 v5, s%d, v1" % sA)
        self.down_wait_o()
        for s in range(8):
            for lt in range(2):
                g("buffer_load_dwordx4 %s, v%d, %s, s%d offen offset:%d%s" % (vr(HB(s, lt), 4), vH[lt], sr(S_WS, 4), sE if s < 4 else sB, (s & 3) * 1024, cc))
        g("s_waitcnt vmcnt(16)")
        g(*treads(0, 0))
        for s in range(8):
            step(s, s & 1, 14 - 2 * s, [], nxt=(s + 1 if s < 7 else None))
        g.stamp(10)
        g("v_add_u32 v2, s%d, v1" % sC)
        for k in range(1, 4):
            g("s_xor_b32 s%d, s%d, %d" % (sA, sW, k), "s_lshl_b32 s%d, s%d, 14" % (sA, sA), "s_add_u32 s%d, s%d, 0x%x" % (sA, sA, g.o["l_ring"]),
              "v_add_u32 v%d, s%d, v1" % (12 + k, sA))
        for k in (2, 1, 3):
            a = ACC(k & 1, k >> 1)
            if k == 3:
                g("s_nop 1")
            for i in range(4):
                g("ds_write_b128 v2, %s offset:%d" % (vr(a + 4 * i, 4), (k - 1) * 4096 + i * 1024))
        g("s_waitcnt lgkmcnt(0)", "s_barrier")
        for k in range(1, 4):
            for i in range(4):
                g("ds_read_b128 %s, v%d offset:%d" % (vr(32 + 16 * (k - 1) + 4 * i, 4), 12 + k, (k - 1) * 4096 + i * 1024))
        a = ACC(0, 0)
        for k in range(1, 4):
            g("s_waitcnt lgkmcnt(%d)" % (4 * (3 - k)))
            for i in range(16):
                g("v_add_f32 v%d, v%d, v%d" % (a + i, a + i, 32 + 16 * (k - 1) + i))
        for k in range(8):
            g("v_cvt_pk_bf16_f32 v%d, v%d, v%d" % (16 + k, a + 2 * k, a + 2 * k + 1))
        g("s_nop 0")
        g("v_permlane32_swap_b32 v16, v18", "v_permlane32_swap_b32 v17, v19", "v_permlane32_swap_b32 v20, v22", "v_permlane32_swap_b32 v21, v23")
        g("buffer_store_dwordx4 v[16:19], v11, %s, s74 offen" % sr(S_OUT, 4), "buffer_store_dwordx4 v[20:23], v11, %s, s74 offen offset:32" % sr(S_OUT, 4))


def probe_kernel(g, a, b, mult):
    kernel_head(g, "kp_kernel")
    g("s_cmp_ge_u32 s2, 1", "s_cbranch_scc1 L_kp_end")
    g("s_load_dwordx2 s[22:23], s[0:1], 72", "s_memrealtime s[30:31]", "s_waitcnt lgkmcnt(0)")
    g.srd(S_WS, 22, WS_SIZE)
    g("v_lshlrev_b32 v1, 9, v0")
    for n, (k, w, sl, op) in enumerate((a, b)):
        for q in range(4):
            g("s_mov_b32 s3, 0x%x" % (WS_FLAG + 65536 + k * 131072 + w * 64 + sl * 4 + q * 32768))
            g("buffer_load_dword v%d, v1, %s, s3 offen" % (4 + q, sr(S_WS, 4)))
        g("s_waitcnt vmcnt(0)")
        if op == "min":
            for q in range(4):
                g("v_subrev_u32 v%d, 1, v%d" % (4 + q, 4 + q))
        g("v_%s_u32 v4, v4, v5" % op, "v_%s_u32 v6, v6, v7" % op, "v_%s_u32 v4, v4, v6" % op, "s_nop 1")
        g("v_readlane_b32 s%d, v4, 0" % (40 + n))
        for l in range(1, 64):
            g("v_readlane_b32 s35, v4, %d" % l, "s_nop 0", "s_%s_u32 s%d, s%d, s35" % (op, 40 + n, 40 + n))
    g("s_sub_u32 s42, s41, s40", "s_mul_i32 s42, s42, %d" % mult, "s_min_u32 s42, s42, 100000")
    g.label("L_kp_spin")
    g("s_memrealtime s[32:33]", "s_waitcnt lgkmcnt(0)", "s_sub_u32 s34, s32, s30", "s_cmp_lt_u32 s34, s42", "s_cbranch_scc1 L_kp_spin")
    g.label("L_kp_end")
    g("s_endpgm")


HEADER = """; Kernarg layout (80 bytes, pointers only):
"""


def kd(name, vgpr=256, sgpr=102):
    return """.amdhsa_kernel %s
  .amdhsa_next_free_vgpr %d
  .amdhsa_next_free_sgpr %d
  .amdhsa_accum_offset %d
  .amdhsa_group_segment_fixed_size 0
  .amdhsa_kernarg_size 80
  .amdhsa_user_sgpr_count 2
  .amdhsa_user_sgpr_kernarg_segment_ptr 1
  .amdhsa_system_sgpr_workgroup_id_x 1
.end_amdhsa_kernel
""" % (name, vgpr, sgpr, (vgpr + 3) // 4 * 4)


def kernel_head(g, name):
    g(".globl %s" % name, ".p2align 8", ".type %s,@function" % name)
    g.label(name)


def build_v1(extra=0, stamps=False, probe=None):
    launches = [("k1_kernel", 512, 163840), ("k2_kernel", 256, 18432), ("k3_kernel", 256, 65536)]
    launches += [("k0_kernel", 256, 0)] * extra
    if probe:
        launches.append(("kp_kernel", 64, 0))
    out = HEADER
    for n, b, l in launches:
        out += "; @launch kernel=%s grid=(256,1,1) block=(%d,1,1) lds=%d\n" % (n, b, l)
    out += '.amdgcn_target "amdgcn-amd-amdhsa--gfx950"\n.text\n'
    g = G(dict(l_att=0, l_ring=0, stamps=stamps))
    kernel_head(g, "k1_kernel")
    g.prologue("L_k1_end")
    g("s_cmp_ge_u32 s11, 4", "s_cbranch_scc1 L_k1_ln")
    g.role_qkv()
    g.role_gu("L_k1_gdone")
    g.label("L_k1_gdone")
    g.stamp_dump(0)
    g("s_endpgm")
    g.label("L_k1_ln")
    g.role_ln()
    g.stamp_dump(0)
    g.label("L_k1_end")
    g("s_endpgm")
    kernel_head(g, "k2_kernel")
    g.prologue("L_k2_end")
    g.role_attn()
    g.stamp_dump(1)
    g.label("L_k2_end")
    g("s_endpgm")
    g.role_attn_slow()
    kernel_head(g, "k3_kernel")
    g.prologue("L_k3_end")
    g.role_down()
    g.stamp_dump(2)
    g.label("L_k3_end")
    g("s_endpgm")
    names = ["k1_kernel", "k2_kernel", "k3_kernel"]
    if extra:
        kernel_head(g, "k0_kernel")
        g("s_endpgm")
        names.append("k0_kernel")
    if probe:
        probe_kernel(g, *probe)
        names.append("kp_kernel")
    body = "\n".join(("" if l.endswith(":") or l.startswith(".") else "  ") + l for l in g.L)
    out += body + "\n" + '.section .rodata,"a"\n'
    for n in names:
        out += ".p2align 6\n" + kd(n)
    return out, names


if __name__ == "__main__":
    mode = sys.argv[1]
    dst = sys.argv[2]
    if mode.startswith("v1"):
        asm, names = build_v1(int(mode[3:] or 0) if len(mode) > 2 else 0, stamps=(2 if "cyc" in sys.argv else int("stamps" in sys.argv)))
    if mode.startswith("probe"):
        asm, names = build_v1(0, stamps=1, probe=eval(sys.argv[3]))
    errs = check.check(asm, names)
    for e in errs:
        print(e)
    print("%d checker problems, %d lines" % (len(errs), asm.count("\n")))
    open(dst, "w").write(asm)
```

```python
import sys, os, math, struct
sys.path.insert(0, os.path.dirname(os.path.abspath(__file__)))
import check

NAME = "parallel_sum__softmax_full_mha__glu_gated_reglu__prompt"

WS_FLAG = 0
WS_Q = 1 << 20
WS_KV = 3 << 20
WS_O = 7 << 20
WS_H = 9 << 20
WS_SIZE = 17 << 20

L_XN = 0
L_W = 65536
L_FLAG = 65536
L_RING = 65536 + 256
L_ATT = 139264

S_X, S_WQ, S_WG, S_WU, S_WD, S_WO, S_OUT, S_WS, S_KV = 24, 28, 32, 36, 40, 44, 48, 52, 56
sW = 60
sRB, sCB, sHEAD, sQB, sRB2, sCB2, sCNT = 61, 62, 63, 64, 65, 66, 67
sA, sB, sC, sD, sE, sF = 68, 69, 70, 71, 72, 73
sOUT, sEP = 74, 75
sMASK = 76
F1, F2, F3, F_EPOCH = WS_FLAG, WS_FLAG + 4096, WS_FLAG + 8192, WS_FLAG + 16384
POLL_LIMIT = 0x40000


def f2u(x):
    return struct.unpack("<I", struct.pack("<f", x))[0]


def vr(b, n=1):
    return "v%d" % b if n == 1 else "v[%d:%d]" % (b, b + n - 1)


def sr(b, n=1):
    return "s%d" % b if n == 1 else "s[%d:%d]" % (b, b + n - 1)


class G:
    def __init__(self, opts):
        self.L = []
        self.o = opts
        self.cc = " sc1" if opts.get("sc1") else ""

    def __call__(self, *lines):
        for l in lines:
            self.L.extend(l.split("\n"))

    def label(self, n):
        self.L.append(n + ":")

    def mfma(self, d, a, b, c=None):
        cs = "0" if c == 0 else vr(d, 16)
        self("v_mfma_f32_32x32x16_bf16 %s, %s, %s, %s" % (vr(d, 16), vr(a, 4), vr(b, 4), cs))

    def srd(self, s, ptr, nbytes):
        self("s_mov_b32 s%d, s%d" % (s, ptr), "s_mov_b32 s%d, s%d" % (s + 1, ptr + 1),
             "s_mov_b32 s%d, 0x%x" % (s + 2, nbytes), "s_mov_b32 s%d, 0x20000" % (s + 3))

    def stamp(self, slot):
        if self.o.get("stamps"):
            self("%s s[%d:%d]" % ("s_memtime" if self.o.get("stamps") == 2 else "s_memrealtime", 78 + 2 * slot, 79 + 2 * slot))

    def stamp_init(self):
        if self.o.get("stamps"):
            for k in range(1, 12):
                self("s_mov_b32 s%d, 0" % (78 + 2 * k))

    def stamp_dump(self, base):
        if not self.o.get("stamps"):
            return
        g = self
        g("s_waitcnt vmcnt(0)")
        g.stamp(11)
        g("s_lshl_b32 s3, s2, 3", "s_add_u32 s3, s3, s11", "s_lshl_b32 s3, s3, 6",
          "s_add_u32 s3, s3, 0x%x" % (WS_FLAG + 65536 + base * 131072), "s_waitcnt lgkmcnt(0)", "v_mov_b32 v1, 0", "s_mov_b64 exec, 1")
        for k in range(12):
            g("v_mov_b32 v2, s%d" % (78 + 2 * k), "buffer_store_dword v2, v1, %s, s3 offen offset:%d" % (sr(S_WS, 4), 4 * k))

    def prologue(self, end, gemm):
        g = self
        g.stamp(0)
        g("s_cmp_ge_u32 s2, 0x100", "s_cbranch_scc1 %s" % end)
        g("s_load_dwordx4 s[4:7], s[0:1], 0", "s_load_dwordx4 s[20:23], s[0:1], 64", "s_load_dwordx2 s[8:9], s[0:1], 16",
          "s_load_dwordx8 s[12:19], s[0:1], 32")
        g.stamp_init()
        g("v_lshrrev_b32 v1, 6, v0", "v_and_b32 v0, 63, v0")
        g("s_and_b32 s3, s2, 7", "s_lshr_b32 s10, s2, 3")
        g("v_readfirstlane_b32 s11, v1")
        lc = g.o["lognc"]
        g("s_and_b32 s%d, s3, %d" % (sCB, (8 >> lc) - 1), "s_lshl_b32 s%d, s%d, %d" % (sCB, sCB, lc), "s_and_b32 s%d, s10, %d" % (sA, (1 << lc) - 1),
          "s_or_b32 s%d, s%d, s%d" % (sCB, sCB, sA))
        g("s_lshr_b32 s%d, s3, %d" % (sRB, 3 - lc), "s_lshl_b32 s%d, s%d, %d" % (sRB, sRB, 5 - lc), "s_lshr_b32 s%d, s10, %d" % (sA, lc),
          "s_or_b32 s%d, s%d, s%d" % (sRB, sRB, sA))
        g("s_and_b32 s%d, s11, 3" % sW)
        g("s_cmp_ge_u32 s11, 4", "s_cbranch_scc1 %s" % gemm)

    def epoch_load(self):
        self("s_load_dword s%d, s[22:23], 0x%x" % (sEP, F_EPOCH))

    def epoch_make(self):
        self("s_mul_i32 s%d, s%d, 0x19660d" % (sEP, sEP), "s_add_u32 s%d, s%d, 0x3c6ef35f" % (sEP, sEP))

    def flag_store(self, soff, vtmp):
        g = self
        g("v_mov_b32 v%d, s%d" % (vtmp, sEP), "v_mov_b32 v%d, 0" % (vtmp + 1), "s_mov_b64 exec, 1")
        g("buffer_store_dword v%d, v%d, %s, s%d offen sc1" % (vtmp, vtmp + 1, sr(S_WS, 4), soff), "s_mov_b64 exec, -1")

    def poll(self, name, voff, soff, vtmp, sleep):
        g = self
        g("s_mov_b32 s3, 0")
        g.label("L_poll_" + name)
        g("buffer_load_dword v%d, v%d, %s, s%d offen sc1" % (vtmp, voff, sr(S_WS, 4), soff), "s_add_u32 s3, s3, 1", "s_waitcnt vmcnt(0)")
        g("v_cmp_ne_u32 vcc, s%d, v%d" % (sEP, vtmp), "s_cmp_gt_u32 s3, 0x%x" % POLL_LIMIT, "s_cbranch_vccz L_polld_" + name)
        g("s_cbranch_scc1 L_polld_" + name, "s_sleep %d" % sleep, "s_branch L_poll_" + name)
        g.label("L_polld_" + name)

    def role_ln(self):
        g = self
        X = lambda e, i: 16 + 32 * e + 4 * i
        vXo, vWa = 4, 5
        SUM, SQ = (6, 8), (7, 9)
        RI, NB = (10, 12), (11, 13)
        T = 80
        g("v_lshrrev_b32 v2, 3, v0", "v_and_b32 v3, 7, v0")
        g("v_lshlrev_b32 v4, 10, v2", "v_lshl_add_u32 v4, v3, 4, v4")
        g("s_lshl_b32 s%d, s%d, 16" % (sA, sRB), "s_lshl_b32 s%d, s%d, 14" % (sB, sW),
          "s_add_u32 s%d, s%d, s%d" % (sA, sA, sB), "s_add_u32 s%d, s%d, 0x2000" % (sB, sA))
        g("s_waitcnt lgkmcnt(0)")
        g.srd(S_X, 4, 2048 * 1024)
        g.stamp(1)
        for e in range(2):
            for i in range(8):
                g("buffer_load_dwordx4 %s, v4, %s, s%d offen offset:%d" % (vr(X(e, i), 4), sr(S_X, 4), sA + e, 128 * i))
        g("s_barrier")
        g.epoch_load()
        g.srd(S_WS, 22, WS_SIZE)
        g("s_lshl_b32 s%d, s3, 2" % sHEAD, "s_and_b32 s%d, s10, 3" % sA, "s_or_b32 s%d, s%d, s%d" % (sHEAD, sHEAD, sA),
          "s_lshr_b32 s%d, s10, 2" % sQB)
        g("v_xor_b32 v5, v2, v3", "v_lshlrev_b32 v5, 4, v5", "v_lshl_add_u32 v5, v3, 9, v5")
        g("s_lshr_b32 s%d, s%d, 1" % (sC, sW), "s_lshl_b32 s%d, s%d, 15" % (sC, sC),
          "s_and_b32 s%d, s%d, 1" % (sD, sW), "s_lshl_b32 s%d, s%d, 8" % (sD, sD), "s_add_u32 s%d, s%d, s%d" % (sC, sC, sD))
        g("v_add_u32 v5, s%d, v5" % sC)
        g("s_mov_b32 s%d, 0x3f803f80" % sC, "s_mov_b32 s%d, 0xffff0000" % sD)
        for r in (6, 7, 8, 9):
            g("v_mov_b32 v%d, 0" % r)
        for e in range(2):
            for i in range(8):
                g("s_waitcnt vmcnt(%d)" % (15 - 8 * e - i))
                for k in range(4):
                    x = X(e, i) + k
                    g("v_dot2c_f32_bf16 v%d, s%d, v%d" % (SUM[e], sC, x), "v_dot2c_f32_bf16 v%d, v%d, v%d" % (SQ[e], x, x))
        g.stamp(2)
        for dpp in ("quad_perm:[1,0,3,2]", "quad_perm:[2,3,0,1]", "row_half_mirror"):
            for r in (6, 7, 8, 9):
                g("v_add_f32_dpp v%d, v%d, v%d %s row_mask:0xf bank_mask:0xf" % (r, r, r, dpp))
        inv = "0x%x" % f2u(1.0 / 512)
        eps = "0x%x" % f2u(1e-5)
        for e in range(2):
            g("v_mul_f32 v%d, %s, v%d" % (SUM[e], inv, SUM[e]), "v_mul_f32 v%d, %s, v%d" % (SQ[e], inv, SQ[e]))
        for e in range(2):
            g("v_fma_f32 v%d, -v%d, v%d, v%d" % (SQ[e], SUM[e], SUM[e], SQ[e]))
        for e in range(2):
            g("v_max_f32 v%d, 0, v%d" % (SQ[e], SQ[e]))
        for e in range(2):
            g("v_cvt_pk_bf16_f32 v%d, v%d, v%d" % (SQ[e], SUM[e], SQ[e]))
        for e in range(2):
            g("v_lshlrev_b32 v%d, 16, v%d" % (SUM[e], SQ[e]), "v_and_b32 v%d, s%d, v%d" % (SQ[e], sD, SQ[e]))
        for e in range(2):
            g("v_add_f32 v%d, %s, v%d" % (SQ[e], eps, SQ[e]))
        g("v_cvt_pk_bf16_f32 v7, v7, v9", "v_and_b32 v9, s%d, v7" % sD, "v_lshlrev_b32 v7, 16, v7")
        g("v_sqrt_f32 v7, v7", "v_sqrt_f32 v9, v9", "s_nop 0")
        g("v_cvt_pk_bf16_f32 v7, v7, v9", "v_and_b32 v9, s%d, v7" % sD, "v_lshlrev_b32 v7, 16, v7")
        g("v_rcp_f32 v%d, v7" % RI[0], "v_rcp_f32 v%d, v9" % RI[1], "s_nop 0")
        for e in range(2):
            g("v_mul_f32 v%d, v%d, v%d" % (NB[e], SUM[e], RI[e]))
        for i in range(8):
            for e in range(2):
                for k in range(4):
                    x = X(e, i) + k
                    t = T + 2 * k
                    g("v_lshlrev_b32 v%d, 16, v%d" % (t, x), "v_and_b32 v%d, s%d, v%d" % (t + 1, sD, x))
                    g("v_fma_f32 v%d, v%d, v%d, -v%d" % (t, t, RI[e], NB[e]), "v_fma_f32 v%d, v%d, v%d, -v%d" % (t + 1, t + 1, RI[e], NB[e]))
                    g("v_cvt_pk_bf16_f32 v%d, v%d, v%d" % (x, t, t + 1))
                g("ds_write_b128 v5, %s offset:%d" % (vr(X(e, i), 4), i * 4096 + e * 128))
            if i == 6:
                g("s_lshl_b32 s%d, s%d, 2" % (sA, sW), "s_add_u32 s%d, s%d, 0x%x" % (sA, sA, L_FLAG), "v_mov_b32 v14, s%d" % sA, "v_mov_b32 v15, 0",
                  "ds_write_b32 v14, v15")
            g("s_waitcnt lgkmcnt(0)")
            if i == 0:
                g.stamp(3)
            g("s_barrier")
            if i == 0:
                g.epoch_make()
        g("s_barrier")

    def role_qkv(self):
        g = self
        AQ, AK, AV = 16, 32, 48
        WB = (64, 76)
        XB = (88, 92)
        vXr = 4
        vT = (8, 9)
        vD = 96
        g("v_lshrrev_b32 v2, 3, v0", "v_and_b32 v3, 7, v0")
        g("v_lshrrev_b32 v1, 2, v0", "v_and_b32 v1, 4, v1", "v_xor_b32 v3, v3, v1")
        g("s_lshl_b32 s%d, s%d, 4" % (sA, sW), "v_add_u32 v2, s%d, v2" % sA, "v_mul_u32_u24 v2, 0xc00, v2")
        g("s_lshl_b32 s%d, s%d, 7" % (sA, sCB), "v_lshl_add_u32 v2, v3, 4, v2", "v_add_u32 v%d, s%d, v2" % (vD, sA))
        for seg in range(3):
            for e in range(2):
                if seg or e:
                    g("v_add_u32 v%d, 0x%x, v%d" % (vD + 2 * seg + e, seg * 1024 + e * (8 * 3072 - 1024), vD))
        g("s_mul_i32 s%d, s%d, 0x1800" % (sC, sW), "s_add_u32 s%d, s%d, 0x%x" % (sC, sC, L_W))

        def dma(st):
            g("s_mov_b32 s%d, 0x%x" % (sA, st * 64 * 3072))
            for seg in range(3):
                g("s_add_u32 m0, s%d, 0x%x" % (sC, (st & 3) * 24576 + seg * 2048))
                if seg:
                    g("s_nop 0")
                else:
                    g("s_nop 0")
                g("buffer_load_dwordx4 v%d, %s, s%d offen lds" % (vD + 2 * seg, sr(S_WQ, 4), sA))
                g("buffer_load_dwordx4 v%d, %s, s%d offen offset:1024 lds" % (vD + 2 * seg + 1, sr(S_WQ, 4), sA))
        g("s_waitcnt lgkmcnt(0)")
        g.srd(S_WQ, 6, 512 * 3072)
        g.stamp(1)
        g.epoch_load()
        g.srd(S_X, 4, 2048 * 1024)
        g.srd(S_WG, 12, 512 * 3584)
        g.srd(S_WU, 14, 512 * 3584)
        g.srd(S_WD, 16, 1792 * 1024)
        g.srd(S_WO, 8, 512 * 1024)
        g.srd(S_OUT, 18, 2048 * 1024)
        g.srd(S_WS, 22, WS_SIZE)
        g("s_lshl_b32 s%d, s3, 2" % sRB2, "s_lshr_b32 s%d, s10, 3" % sA, "s_or_b32 s%d, s%d, s%d" % (sRB2, sRB2, sA),
          "s_and_b32 s%d, s10, 7" % sCB2)
        g("s_barrier")
        for st in range(4):
            dma(st)
        g("s_setprio 1")
        g("v_lshrrev_b32 v1, 5, v0")
        g("s_and_b32 s%d, s%d, 1" % (sA, sW), "s_lshl_b32 s%d, s%d, 15" % (sE, sA))
        g("v_xor_b32 v2, v0, v1")
        for q in range(4):
            g("v_xor_b32 v3, %d, v2" % (2 * q), "v_lshlrev_b32 v3, 4, v3", "v_add_u32 v3, 0x%x, v3" % (q * 1024),
              "v_add_u32 v%d, s%d, v3" % (vXr + q, sE))
        g("v_bfe_u32 v2, v0, 2, 2")
        g("v_lshl_add_u32 v3, v1, 3, v2", "v_lshlrev_b32 v3, 7, v3")
        g("v_lshrrev_b32 v2, 1, v2", "s_lshr_b32 s%d, s%d, 1" % (sA, sW), "v_xor_b32 v2, s%d, v2" % sA,
          "v_lshl_add_u32 v3, v2, 6, v3")
        g("v_bfe_u32 v2, v0, 4, 1", "v_lshl_add_u32 v3, v2, 5, v3", "v_and_b32 v2, 3, v0", "v_lshl_add_u32 v3, v2, 3, v3")
        g("v_add_u32 v%d, 0x%x, v3" % (vT[0], L_W), "v_add_u32 v%d, 0x%x, v3" % (vT[1], L_W + 49152))

        def reads(n):
            st, ks = n >> 2, n & 3
            b = n & 1
            slot = st & 3
            L = ["ds_read_b128 %s, v%d offset:%d" % (vr(XB[b], 4), vXr + ks, st * 4096)]
            for seg in range(3):
                for p in range(2):
                    L.append("ds_read_b64_tr_b16 %s, v%d offset:%d" % (vr(WB[b] + 4 * seg + 2 * p, 2), vT[slot >> 1],
                                                                      (slot & 1) * 24576 + ks * 6144 + seg * 2048 + p * 512))
            return L

        def mm(n):
            b = n & 1
            c = 0 if n == 0 else None
            return [(AQ, WB[b], XB[b], c), (AK, WB[b] + 4, XB[b], c), (AV, XB[b], WB[b] + 8, c)]
        g("s_waitcnt vmcnt(18) lgkmcnt(0)")
        g.epoch_make()
        g.stamp(2)
        g("s_barrier")
        g.stamp(3)
        g(*reads(0))
        for n in range(32):
            st, ks = n >> 2, n & 3
            M = mm(n)
            if ks == 3 and st < 7:
                infl = min(3, 7 - st) - 1 if st >= 1 else 2
                infl = len([x for x in range(st + 2, min(8, st + 4))])
                g("s_waitcnt vmcnt(%d) lgkmcnt(0)" % (6 * infl), "s_barrier")
                R = reads(n + 1)
                g.mfma(*M[0])
                g(*R[:4])
                g.mfma(*M[1])
                g(*R[4:])
                g.mfma(*M[2])
                if st + 4 < 8:
                    dma(st + 4)
            else:
                R = reads(n + 1) if n + 1 < 32 else []
                g("s_waitcnt lgkmcnt(0)")
                if n == 31:
                    g("s_barrier")
                g.mfma(*M[0])
                g(*R[:4])
                g.mfma(*M[1])
                g(*R[4:])
                g.mfma(*M[2])
        g.stamp(4)
        g("s_lshl_b32 s%d, s%d, 1" % (sA, sRB), "s_and_b32 s%d, s%d, 1" % (sB, sW), "s_add_u32 s%d, s%d, s%d" % (sA, sA, sB))
        g("s_lshl_b32 s%d, s%d, 2" % (sB, sCB), "s_and_b32 s%d, s%d, 2" % (sC, sW), "s_add_u32 s%d, s%d, s%d" % (sB, sB, sC))
        g("s_lshl_b32 s%d, s%d, 6" % (sB, sB), "s_add_u32 s%d, s%d, s%d" % (sB, sB, sA))
        g("s_lshr_b32 s%d, s%d, 7" % (sOUT, sB), "s_lshl_b32 s%d, s%d, 6" % (sOUT, sOUT), "s_add_u32 s%d, s%d, s%d" % (sOUT, sOUT, sA),
          "s_lshl_b32 s%d, s%d, 2" % (sOUT, sOUT))
        g("s_lshl_b32 s%d, s%d, 10" % (sA, sB), "s_add_u32 s%d, s%d, 0x%x" % (sA, sA, WS_Q), "s_add_u32 s%d, s%d, 0x10000" % (sC, sA))
        g("s_lshl_b32 s%d, s%d, 11" % (sB, sB), "s_add_u32 s%d, s%d, 0x%x" % (sB, sB, WS_KV), "s_add_u32 s%d, s%d, 0x20000" % (sD, sB))
        g("v_lshlrev_b32 v10, 4, v0")
        g("v_bfe_u32 v2, v0, 4, 1", "v_lshlrev_b32 v2, 17, v2", "v_lshl_add_u32 v2, v1, 8, v2", "v_and_b32 v3, 15, v0",
          "v_lshl_add_u32 v11, v3, 4, v2")
        sc = "0x%x" % f2u(0.25 * math.log2(math.e))
        g("s_mov_b32 s%d, %s" % (sF, sc))
        P = 64
        for k in range(16):
            g("v_mul_f32 v%d, s%d, v%d" % (AQ + k, sF, AQ + k))
        for k in range(8):
            g("v_cvt_pk_bf16_f32 v%d, v%d, v%d" % (P + k, AQ + 2 * k, AQ + 2 * k + 1))
            if k == 3:
                g("buffer_store_dwordx4 %s, v10, %s, s%d offen%s" % (vr(P, 4), sr(S_WS, 4), sA, g.cc))
        g("buffer_store_dwordx4 %s, v10, %s, s%d offen%s" % (vr(P + 4, 4), sr(S_WS, 4), sC, g.cc))
        for k in range(8):
            g("v_cvt_pk_bf16_f32 v%d, v%d, v%d" % (P + 8 + k, AK + 2 * k, AK + 2 * k + 1))
            if k == 3:
                g("buffer_store_dwordx4 %s, v10, %s, s%d offen%s" % (vr(P + 8, 4), sr(S_WS, 4), sB, g.cc))
        g("buffer_store_dwordx4 %s, v10, %s, s%d offen%s" % (vr(P + 12, 4), sr(S_WS, 4), sD, g.cc))
        for k in range(8):
            g("v_cvt_pk_bf16_f32 v%d, v%d, v%d" % (P + 16 + k, AV + 2 * k, AV + 2 * k + 1))
            if k == 3:
                g("buffer_store_dwordx4 %s, v11, %s, s%d offen offset:1024%s" % (vr(P + 16, 4), sr(S_WS, 4), sB, g.cc))
        g("buffer_store_dwordx4 %s, v11, %s, s%d offen offset:1536%s" % (vr(P + 20, 4), sr(S_WS, 4), sB, g.cc))

    def role_gu(self, done):
        g = self
        ACC = lambda tt, j: 128 + 16 * (4 * tt + j)
        AB = (16, 32)
        BB = (48, 56)
        vXr = 4
        vTg = 112
        vG = 116
        g("s_setprio 0")
        g("s_cmp_lg_u32 s%d, 7" % sCB, "s_cbranch_scc1 L_gu_go")
        g("s_waitcnt vmcnt(0)")
        g.flag_store(sOUT, 2)
        g.stamp(5)
        g("s_branch %s" % done)
        g.label("L_gu_go")
        g("v_lshrrev_b32 v2, 3, v0", "v_mul_u32_u24 v2, 0xe00, v2")
        g("s_lshl_b32 s%d, s%d, 2" % (sA, sCB), "s_add_u32 s%d, s%d, s%d" % (sA, sA, sW), "s_lshl_b32 s%d, s%d, 7" % (sB, sA))
        g("v_add_u32 v2, s%d, v2" % sB)
        g("v_lshrrev_b32 v3, 3, v0", "v_and_b32 v3, 2, v3", "v_xor_b32 v3, v3, v0", "v_and_b32 v3, 7, v3")
        g("v_lshl_add_u32 v%d, v3, 4, v2" % vG, "v_xor_b32 v3, 4, v3", "v_lshl_add_u32 v%d, v3, 4, v2" % (vG + 2))
        g("v_add_u32 v%d, 0x%x, v%d" % (vG + 1, 8 * 3584 - 1024, vG), "v_add_u32 v%d, 0x%x, v%d" % (vG + 3, 8 * 3584 - 1024, vG + 2))
        g("s_lshl_b32 s%d, s%d, 14" % (sC, sW), "s_add_u32 s%d, s%d, 0x%x" % (sC, sC, L_RING))
        g("s_mov_b32 s%d, 0" % sD)

        def dma(slot):
            L = []
            for gg in range(2):
                L.append("s_add_u32 m0, s%d, 0x%x" % (sC, slot * 4096 + gg * 2048))
                L.append("s_nop 0")
                L.append("buffer_load_dwordx4 v%d, %s, s%d offen lds" % (vG + 2 * gg, sr(S_WG + 4 * gg, 4), sD))
                L.append("buffer_load_dwordx4 v%d, %s, s%d offen offset:1024 lds" % (vG + 2 * gg + 1, sr(S_WG + 4 * gg, 4), sD))
            L.append("s_add_u32 s%d, s%d, 0x%x" % (sD, sD, 16 * 3584))
            return L
        for s in range(4):
            g(*dma(s))
        g("v_lshrrev_b32 v1, 5, v0", "v_bfe_u32 v2, v0, 2, 2", "v_lshl_add_u32 v3, v1, 3, v2", "v_lshlrev_b32 v3, 7, v3")
        g("v_bfe_u32 v8, v0, 4, 1", "v_lshl_add_u32 v3, v8, 11, v3", "v_and_b32 v9, 3, v0", "v_lshl_add_u32 v3, v9, 3, v3")
        g("v_add_u32 v3, s%d, v3" % sC)
        g("v_lshrrev_b32 v2, 1, v2", "v_lshl_add_u32 v2, v8, 1, v2")
        for j in range(4):
            g("v_xor_b32 v8, %d, v2" % j, "v_lshl_add_u32 v%d, v8, 5, v3" % (vTg + j))
        for q in range(4):
            g("v_subrev_u32 v%d, s%d, v%d" % (vXr + q, sE, vXr + q))
        g("s_lshl_b32 s%d, s%d, 1" % (sB, sRB), "s_mul_i32 s%d, s%d, 112" % (sB, sB), "s_lshl_b32 s%d, s%d, 2" % (sA, sA),
          "s_add_u32 s%d, s%d, s%d" % (sA, sA, sB), "s_lshl_b32 s%d, s%d, 10" % (sA, sA), "s_add_u32 s%d, s%d, 0x%x" % (sA, sA, WS_H),
          "s_add_u32 s%d, s%d, 0x%x" % (sB, sA, 112 * 1024))

        def reads(u, nxt_iter=False):
            b = u & 1
            L = []
            L.append("ds_read_b128 %s, v%d offset:%d" % (vr(BB[b], 4), vXr + u, 0))
            for p in range(2):
                L.append("ds_read_b64_tr_b16 %s, v%d offset:%d" % (vr(AB[b] + 2 * p, 2), vTg, u * 4096 + p * 512))
            L.append("ds_read_b128 %s, v%d offset:%d" % (vr(BB[b] + 4, 4), vXr + u, 32768))
            for j in range(1, 4):
                for p in range(2):
                    L.append("ds_read_b64_tr_b16 %s, v%d offset:%d" % (vr(AB[b] + 4 * j + 2 * p, 2), vTg + j, u * 4096 + p * 512))
            L.append("v_add_u32 v%d, 0x1000, v%d" % (vXr + u, vXr + u))
            return L

        def step(u, first=False):
            b = u & 1
            c = 0 if first else None
            M = [(ACC(tt, j), AB[b] + 4 * j, BB[b] + 4 * tt, c) for j in range(4) for tt in range(2)]
            R = reads((u + 1) & 3)
            D = dma(u)
            g("s_waitcnt lgkmcnt(0)")
            g.mfma(*M[0])
            g(*D[:4])
            g.mfma(*M[1])
            g(*D[4:])
            g.mfma(*M[2])
            g("s_waitcnt vmcnt(12)")
            g(*R[0:3])
            g.mfma(*M[3])
            g(*R[3:6])
            g.mfma(*M[4])
            g(*R[6:8])
            g.mfma(*M[5])
            g(*R[8:10])
            g.mfma(*M[6])
            g(R[10])
            g.mfma(*M[7])
        g("s_waitcnt vmcnt(16)")
        g.flag_store(sOUT, 2)
        g.stamp(5)
        g("s_waitcnt vmcnt(13)")
        g.stamp(6)
        g(*reads(0))
        g("s_mov_b32 s%d, 8" % sCNT)
        step(0, first=True)
        g("s_branch L_gu_1")
        g.label("L_gu_0")
        step(0)
        g.label("L_gu_1")
        step(1)
        step(2)
        step(3)
        g("s_sub_u32 s%d, s%d, 1" % (sCNT, sCNT), "s_cmp_lg_u32 s%d, 0" % sCNT, "s_cbranch_scc1 L_gu_0")
        g("s_waitcnt vmcnt(0) lgkmcnt(0)")
        g.stamp(7)
        g("v_lshlrev_b32 v10, 4, v0")
        g("s_nop 7")
        order = [(tt, j) for j in range(4) for tt in range(2)]
        for n, (tt, j) in enumerate(order):
            a = ACC(tt, j)
            P = 16 + 4 * n
            for k in range(8):
                g("v_max_f32 v%d, 0, v%d" % (a + k, a + k))
            for k in range(8):
                g("v_mul_f32 v%d, v%d, v%d" % (a + k, a + k, a + 8 + k))
            for k in range(4):
                g("v_cvt_pk_bf16_f32 v%d, v%d, v%d" % (P + k, a + 2 * k, a + 2 * k + 1))
            g("buffer_store_dwordx4 %s, v10, %s, s%d offen offset:%d%s" % (vr(P, 4), sr(S_WS, 4), sA + tt, j * 1024, g.cc))

    def role_attn(self):
        g = self
        O = lambda i: 128 + 16 * i
        Q = lambda i: 16 + 4 * i
        S = (32, 48)
        P = 64
        KB = lambda b: 72 + 12 * b
        VB = lambda b, t: 72 + 12 * b + 4 + 4 * t
        vL, vV = 4, 5
        cc = g.cc
        g("v_lshlrev_b32 v4, 4, v0")
        g("v_lshrrev_b32 v1, 5, v0", "v_and_b32 v2, 15, v0", "v_lshlrev_b32 v2, 4, v2", "v_lshl_add_u32 v5, v1, 8, v2")
        g("s_and_b32 s%d, s%d, 1" % (sA, sW), "s_lshr_b32 s%d, s%d, 1" % (sB, sW))
        g("s_lshl_b32 s%d, s%d, 3" % (sC, sQB), "s_lshl_b32 s%d, s%d, 2" % (sA, sA), "s_add_u32 s%d, s%d, s%d" % (sC, sC, sA))
        g("s_lshl_b32 s%d, s%d, 6" % (sD, sHEAD))
        g("s_setprio 3")
        g("s_lshl_b32 s%d, s%d, 5" % (sA, sB), "s_add_u32 s%d, s%d, s%d" % (sA, sA, sD), "s_lshl_b32 s%d, s%d, 11" % (sA, sA),
          "s_add_u32 s%d, s%d, 0x%x" % (sA, sA, WS_KV))
        g("s_add_u32 s%d, s22, s%d" % (S_KV, sA), "s_addc_u32 s%d, s23, 0" % (S_KV + 1), "s_mov_b32 s%d, 0x10000" % (S_KV + 2),
          "s_mov_b32 s%d, 0x20000" % (S_KV + 3))
        g("s_lshl_b32 s%d, s%d, 1" % (sB, sB), "s_add_u32 s%d, s%d, s%d" % (sE, sC, sB), "s_xor_b32 s%d, s%d, 2" % (sF, sE))
        g("s_add_u32 s%d, s%d, 0x%x" % (sD, sD, WS_Q >> 10))
        g("s_add_u32 s%d, s%d, s%d" % (sA, sE, sD), "s_lshl_b32 s%d, s%d, 10" % (sA, sA))
        g("s_add_u32 s%d, s%d, s%d" % (sB, sF, sD), "s_lshl_b32 s%d, s%d, 10" % (sB, sB))
        g("s_mov_b32 s%d, 0xffff" % sMASK, "s_mov_b32 s%d, 0xffff" % (sMASK + 1))
        g("v_and_b32 v2, 27, v0", "v_mov_b32 v3, 0x3f803f80", "v_cmp_eq_u32 vcc, 16, v2", "s_mov_b32 s%d, 8" % sCNT, "s_nop 0",
          "v_cndmask_b32 v2, 0, v3, vcc")
        for b in range(4):
            for k in range(8):
                g("v_mov_b32 v%d, v2" % (VB(b, 0) + k))
        for k in range(64):
            g("v_mov_b32 v%d, 0" % (O(0) + k))
        self.attn_wait_inputs()
        g.stamp(5)
        for i in range(4):
            g("buffer_load_dwordx4 %s, v4, %s, s%d offen offset:%d%s" % (vr(Q(i), 4), sr(S_WS, 4), sA + (i >> 1), (i & 1) * 1024, cc))
        g("s_mov_b32 s%d, 0" % sD)

        def loads(b0):
            L = []
            for t in range(2):
                L.append("buffer_load_dwordx4 %s, v4, %s, s%d offen offset:%d%s" % (vr(KB(b0 + t), 4), sr(S_KV, 4), sD, t * 2048, cc))
            L.append("s_mov_b64 exec, %s" % sr(sMASK, 2))
            for t in range(2):
                for hh in range(2):
                    L.append("buffer_load_dwordx4 %s, v5, %s, s%d offen offset:%d%s" % (vr(VB(b0 + t, hh), 4), sr(S_KV, 4), sD, t * 2048 + 1024 + hh * 512, cc))
            L.append("s_mov_b64 exec, -1")
            L.append("s_add_u32 s%d, s%d, 0x1000" % (sD, sD))
            return L
        g(*loads(0))
        g("s_waitcnt vmcnt(5)")
        g.mfma(S[0], KB(0), Q(0), 0)
        g("s_waitcnt vmcnt(0)", "s_nop 10")
        g.stamp(6)
        order = g.o["order"].split()

        def step(n, skip_pv=False, only=None):
            pn, nn = (n - 1) & 15, (n + 1) & 15
            X = loads(2) if n == 0 else (loads(0) if n == 8 else None)
            s0 = S[n & 1]
            for t in (order if only is None else only):
                if t == "A":
                    if not skip_pv:
                        g.mfma(O(pn & 3), VB(pn >> 2, 0), P)
                elif t == "B":
                    if not skip_pv:
                        g.mfma(O(pn & 3), VB(pn >> 2, 1), P + 4)
                elif t == "S":
                    if n in (7, 15):
                        g("s_waitcnt vmcnt(0)")
                    g.mfma(S[nn & 1], KB(nn >> 2), Q(nn & 3), 0)
                elif t == "|":
                    if n == 0 and only is None:
                        g.label("L_at_entry")
                elif t[0] == "x":
                    if X:
                        g(*{"x0": X[0:1], "x1": X[1:2], "x2": X[2:8], "x3": X[8:9]}[t])
                    if n == 15 and t == "x0":
                        g("s_sub_u32 s%d, s%d, 1" % (sCNT, sCNT))
                elif t[0] == "e":
                    k = int(t[1:])
                    g("v_exp_f32 v%d, v%d" % (s0 + k, s0 + k))
                elif t[0] == "c":
                    k = int(t[1:])
                    g("v_cvt_pk_bf16_f32 v%d, v%d, v%d" % (P + k, s0 + 2 * k, s0 + 2 * k + 1))
        step(0, skip_pv=True, only=order[:order.index("|")])
        g("s_branch L_at_entry")
        g(".p2align 6")
        g.label("L_at_loop")
        for n in range(16):
            step(n)
        g("s_cmp_lg_u32 s%d, 0" % sCNT, "s_cbranch_scc1 L_at_loop")
        g.mfma(O(3), VB(3, 0), P)
        g.mfma(O(3), VB(3, 1), P + 4)
        g.stamp(7)
        g("s_xor_b32 s%d, s%d, 2" % (sA, sW), "s_mul_i32 s%d, s%d, 0x1200" % (sA, sA), "s_add_u32 s%d, s%d, 0x%x" % (sA, sA, g.o["l_att"]))
        g("s_mul_i32 s%d, s%d, 0x1200" % (sB, sW), "s_add_u32 s%d, s%d, 0x%x" % (sB, sB, g.o["l_att"]))
        g("v_add_u32 v6, s%d, v4" % sA, "v_add_u32 v7, s%d, v4" % sB)
        g("v_lshlrev_b32 v8, 2, v0", "v_add_u32 v9, s%d, v8" % sB, "v_add_u32 v8, s%d, v8" % sA)
        g("ds_write_b128 v6, %s" % vr(O(2), 4), "ds_write_b128 v6, %s offset:1024" % vr(O(2) + 4, 4), "ds_write_b32 v8, v%d offset:2048" % (O(2) + 8))
        g("s_nop 1")
        g("ds_write_b128 v6, %s offset:2304" % vr(O(3), 4), "ds_write_b128 v6, %s offset:3328" % vr(O(3) + 4, 4),
          "ds_write_b32 v8, v%d offset:4352" % (O(3) + 8))
        g("s_waitcnt lgkmcnt(0)")
        self.attn_pair_sync()
        T = 32
        g("ds_read_b128 %s, v7" % vr(T, 4), "ds_read_b128 %s, v7 offset:1024" % vr(T + 4, 4), "ds_read_b32 v%d, v9 offset:2048" % (T + 8))
        g("ds_read_b128 %s, v7 offset:2304" % vr(T + 12, 4), "ds_read_b128 %s, v7 offset:3328" % vr(T + 16, 4), "ds_read_b32 v%d, v9 offset:4352" % (T + 20))
        g("s_lshl_b32 s%d, s%d, 5" % (sA, sE), "s_add_u32 s%d, s%d, s%d" % (sA, sA, sHEAD), "s_lshl_b32 s%d, s%d, 10" % (sA, sA),
          "s_add_u32 s%d, s%d, 0x%x" % (sA, sA, WS_O), "s_add_u32 s%d, s%d, 0x8000" % (sB, sA))
        g("s_waitcnt lgkmcnt(3)")
        for k in range(9):
            g("v_add_f32 v%d, v%d, v%d" % (O(0) + k, O(0) + k, T + k))
        g("s_waitcnt lgkmcnt(0)")
        for k in range(9):
            g("v_add_f32 v%d, v%d, v%d" % (O(1) + k, O(1) + k, T + 12 + k))
        g("v_subrev_u32 v10, 0x21800000, v%d" % (O(0) + 8), "v_subrev_u32 v11, 0x21800000, v%d" % (O(1) + 8), "v_max_u32 v10, v10, v11")
        g("v_cmp_lt_u32 vcc, 0x3c000000, v10", "s_nop 1", "s_and_b64 vcc, exec, vcc", "s_cbranch_vccnz L_at_slow")
        g.label("L_at_norm")
        g("v_rcp_f32 v10, v%d" % (O(0) + 8), "v_rcp_f32 v11, v%d" % (O(1) + 8), "s_nop 0")
        for i in range(2):
            for k in range(8):
                g("v_mul_f32 v%d, v%d, v%d" % (O(i) + k, O(i) + k, 10 + i))
            for k in range(4):
                g("v_cvt_pk_bf16_f32 v%d, v%d, v%d" % (T + 4 * i + k, O(i) + 2 * k, O(i) + 2 * k + 1))
            g("buffer_store_dwordx4 %s, v4, %s, s%d offen%s" % (vr(T + 4 * i, 4), sr(S_WS, 4), sA + i, cc))
        g("s_lshl_b32 s%d, s%d, 4" % (sA, sE), "s_add_u32 s%d, s%d, s%d" % (sA, sA, sHEAD), "s_lshl_b32 s%d, s%d, 2" % (sA, sA),
          "s_add_u32 s%d, s%d, 0x%x" % (sA, sA, F3))
        g.stamp(9)
        g("s_waitcnt vmcnt(0)")
        g.flag_store(sA, 2)

    def role_attn_slow(self):
        g = self
        O = lambda i: 128 + 16 * i
        Q = lambda i: 16 + 4 * i
        S0, P, KB0, V0, V1 = 32, 64, 72, 76, 80
        cc = g.cc
        g.label("L_at_slow")
        g("s_lshl_b32 s%d, s%d, 17" % (sC, sHEAD), "s_add_u32 s%d, s%d, 0x%x" % (sC, sC, WS_KV))
        g("s_add_u32 s%d, s22, s%d" % (S_KV, sC), "s_addc_u32 s%d, s23, 0" % (S_KV + 1), "s_mov_b32 s%d, 0x20000" % (S_KV + 2),
          "s_mov_b32 s%d, 0x20000" % (S_KV + 3))
        g("s_mov_b32 s%d, 0" % sCNT)
        g.label("L_sl_tile")
        g("v_mov_b32 v12, 0xff800000", "s_mov_b32 s%d, 0" % sD)
        g.label("L_sl_max")
        g("buffer_load_dwordx4 %s, v4, %s, s%d offen%s" % (vr(KB0, 4), sr(S_KV, 4), sD, cc), "s_waitcnt vmcnt(0)")
        g.mfma(S0, KB0, Q(0), 0)
        g("s_nop 11")
        for k in range(8):
            g("v_max3_f32 v12, v12, v%d, v%d" % (S0 + 2 * k, S0 + 2 * k + 1))
        g("s_add_u32 s%d, s%d, 0x800" % (sD, sD), "s_cmp_lt_u32 s%d, 0x20000" % sD, "s_cbranch_scc1 L_sl_max")
        g("v_mov_b32 v13, v12", "s_nop 1", "v_permlane32_swap_b32 v12, v13", "s_nop 1", "v_max_f32 v12, v12, v13")
        for k in range(16):
            g("v_mov_b32 v%d, 0" % (O(0) + k))
        g("s_mov_b32 s%d, 0" % sD)
        g.label("L_sl_acc")
        g("buffer_load_dwordx4 %s, v4, %s, s%d offen%s" % (vr(KB0, 4), sr(S_KV, 4), sD, cc))
        g("s_mov_b64 exec, %s" % sr(sMASK, 2))
        g("buffer_load_dwordx4 %s, v5, %s, s%d offen offset:1024%s" % (vr(V0, 4), sr(S_KV, 4), sD, cc))
        g("buffer_load_dwordx4 %s, v5, %s, s%d offen offset:1536%s" % (vr(V1, 4), sr(S_KV, 4), sD, cc))
        g("s_mov_b64 exec, -1", "s_waitcnt vmcnt(0)")
        g.mfma(S0, KB0, Q(0), 0)
        g("s_nop 11")
        for k in range(16):
            g("v_sub_f32 v%d, v%d, v12" % (S0 + k, S0 + k))
        for k in range(16):
            g("v_exp_f32 v%d, v%d" % (S0 + k, S0 + k))
        g("s_nop 0")
        for k in range(8):
            g("v_cvt_pk_bf16_f32 v%d, v%d, v%d" % (P + k, S0 + 2 * k, S0 + 2 * k + 1))
        g("s_nop 1")
        g.mfma(O(0), V0, P)
        g.mfma(O(0), V1, P + 4)
        g("s_add_u32 s%d, s%d, 0x800" % (sD, sD), "s_cmp_lt_u32 s%d, 0x20000" % sD, "s_cbranch_scc1 L_sl_acc")
        g("s_nop 11")
        g("s_cmp_eq_u32 s%d, 1" % sCNT, "s_cbranch_scc1 L_sl_done")
        for k in range(9):
            g("v_mov_b32 v%d, v%d" % (O(2) + k, O(0) + k))
        for k in range(4):
            g("v_mov_b32 v%d, v%d" % (Q(0) + k, Q(1) + k))
        g("s_mov_b32 s%d, 1" % sCNT, "s_branch L_sl_tile")
        g.label("L_sl_done")
        for k in range(9):
            g("v_mov_b32 v%d, v%d" % (O(1) + k, O(0) + k), "v_mov_b32 v%d, v%d" % (O(0) + k, O(2) + k))
        g("s_branch L_at_norm")

    def attn_wait_inputs(self):
        g = self
        g("v_lshlrev_b32 v6, 2, v0", "s_lshr_b32 s%d, s%d, 1" % (sC, sHEAD), "s_lshl_b32 s%d, s%d, 8" % (sC, sC))
        g.stamp(4)
        g.poll("qkv", 6, sC, 7, 1)

    def attn_pair_sync(self):
        g = self
        g("s_xor_b32 s%d, s%d, 2" % (sA, sW), "s_lshl_b32 s%d, s%d, 2" % (sA, sA), "s_add_u32 s%d, s%d, 0x%x" % (sA, sA, L_FLAG), "v_mov_b32 v10, s%d" % sA,
          "s_xor_b32 s%d, s%d, 8" % (sA, sA), "v_mov_b32 v11, s%d" % sA, "v_mov_b32 v12, 1", "ds_write_b32 v10, v12", "s_mov_b32 s3, 0")
        g.label("L_pair")
        g("ds_read_b32 v12, v11", "s_add_u32 s3, s3, 1", "s_waitcnt lgkmcnt(0)", "v_cmp_ne_u32 vcc, 1, v12", "s_cmp_gt_u32 s3, 0x%x" % (POLL_LIMIT * 8),
          "s_cbranch_vccz L_paird", "s_cbranch_scc0 L_pair")
        g.label("L_paird")
        g.stamp(8)

    def down_wait_h(self):
        g = self
        g("s_cmp_eq_u32 s%d, 7" % sCB, "s_cbranch_scc1 L_dn_noflag")
        g("s_lshl_b32 s%d, s%d, 3" % (sA, sRB), "s_add_u32 s%d, s%d, s%d" % (sA, sA, sCB), "s_lshl_b32 s%d, s%d, 2" % (sA, sA),
          "s_add_u32 s%d, s%d, s%d" % (sA, sA, sW), "s_lshl_b32 s%d, s%d, 2" % (sA, sA), "s_add_u32 s%d, s%d, 0x%x" % (sA, sA, F2))
        g("s_waitcnt vmcnt(18)")
        g.flag_store(sA, 2)
        g.label("L_dn_noflag")
        g("v_min_u32 v2, 27, v0", "v_lshlrev_b32 v2, 2, v2", "s_lshl_b32 s%d, s%d, 7" % (sA, sRB2), "s_add_u32 s%d, s%d, 0x%x" % (sA, sA, F2))
        g.poll("h", 2, sA, 3, 4)

    def down_wait_o(self):
        g = self
        g("v_and_b32 v2, 7, v0", "v_lshlrev_b32 v2, 2, v2", "s_lshl_b32 s%d, s%d, 2" % (sA, sRB2), "s_add_u32 s%d, s%d, s%d" % (sA, sA, sW),
          "s_lshl_b32 s%d, s%d, 5" % (sA, sA), "s_add_u32 s%d, s%d, 0x%x" % (sA, sA, F3))
        g.poll("o", 2, sA, 3, 2)
        g.stamp(10)

    def role_down(self):
        g = self
        ACC = lambda ln, lt: 128 + 16 * (ln + 2 * lt)
        HB = lambda slot, lt: 32 + 8 * slot + 4 * lt
        AB = (16, 24)
        vH = (4, 5)
        vT = (6, 7)
        vD = (8, 9)
        vX = 10
        cc = g.cc
        R = 7
        g("v_lshrrev_b32 v2, 3, v0", "v_lshrrev_b32 v3, 2, v0", "v_and_b32 v3, 4, v3", "v_xor_b32 v3, v3, v0", "v_and_b32 v3, 7, v3")
        g("v_lshlrev_b32 v2, 10, v2", "v_lshl_add_u32 v2, v3, 4, v2", "s_lshl_b32 s%d, s%d, 7" % (sA, sCB2),
          "v_add_u32 v8, s%d, v2" % sA, "v_add_u32 v9, 0x1c00, v8")
        g("s_lshl_b32 s%d, s%d, 14" % (sC, sW), "s_add_u32 s%d, s%d, 0x%x" % (sC, sC, g.o["l_ring"]))
        g("s_mul_i32 s%d, s%d, 0x%x" % (sD, sW, 28 * 16384))
        g("s_lshr_b32 s%d, s%d, 1" % (sA, sW), "s_mul_i32 s%d, s%d, 0x%x" % (sB, sA, 112 * 1024), "v_lshlrev_b32 v1, 4, v0",
          "v_add_u32 v4, s%d, v1" % sB, "s_xor_b32 s%d, s%d, 0x%x" % (sB, sB, 112 * 1024), "v_add_u32 v5, s%d, v1" % sB)
        g("s_mul_i32 s%d, s%d, 0x%x" % (sE, sRB2, 224 * 1024), "s_mul_i32 s%d, s%d, 0x%x" % (sB, sW, 28 * 1024),
          "s_add_u32 s%d, s%d, s%d" % (sE, sE, sB), "s_add_u32 s%d, s%d, 0x%x" % (sE, sE, WS_H))

        def wdma(slot, srd, soff, inc):
            return ["s_add_u32 m0, s%d, 0x%x" % (sC, slot * 2048), "s_nop 0",
                    "buffer_load_dwordx4 v8, %s, s%d offen lds" % (sr(srd, 4), soff),
                    "buffer_load_dwordx4 v9, %s, s%d offen offset:1024 lds" % (sr(srd, 4), soff),
                    "s_add_u32 s%d, s%d, 0x%x" % (soff, soff, inc)]

        def hload(slot):
            return ["buffer_load_dwordx4 %s, v4, %s, s%d offen%s" % (vr(HB(slot, 0), 4), sr(S_WS, 4), sE, cc),
                    "buffer_load_dwordx4 %s, v5, %s, s%d offen%s" % (vr(HB(slot, 1), 4), sr(S_WS, 4), sE, cc),
                    "s_add_u32 s%d, s%d, 0x400" % (sE, sE)]
        g("v_and_b32 v2, 31, v0", "v_lshrrev_b32 v3, 5, v0", "v_lshlrev_b32 v2, 10, v2")
        g("s_lshl_b32 s%d, s%d, 1" % (sB, sRB2), "s_add_u32 s%d, s%d, s%d" % (sB, sB, sA), "s_lshl_b32 s%d, s%d, 15" % (sB, sB))
        g("s_lshl_b32 s%d, s%d, 1" % (sF, sCB2), "s_and_b32 s%d, s%d, 1" % (sA, sW), "s_add_u32 s%d, s%d, s%d" % (sF, sF, sA),
          "s_lshl_b32 s%d, s%d, 6" % (sF, sF), "s_add_u32 s%d, s%d, s%d" % (sOUT, sB, sF))
        g("v_lshl_add_u32 v10, v3, 3, v2", "v_lshl_add_u32 v11, v3, 4, v2")
        for i in range(4):
            g("buffer_load_dwordx2 %s, v10, %s, s%d offen offset:%d" % (vr(96 + 2 * i, 2), sr(S_X, 4), sOUT, 16 * i))
        g("v_bfe_u32 v2, v0, 2, 2", "v_lshl_add_u32 v3, v3, 2, v2", "v_lshlrev_b32 v3, 7, v3")
        g("v_bfe_u32 v12, v0, 4, 1", "v_lshl_add_u32 v3, v12, 5, v3", "v_and_b32 v12, 3, v0", "v_lshl_add_u32 v3, v12, 3, v3")
        g("v_add_u32 v3, s%d, v3" % sC, "v_lshrrev_b32 v2, 1, v2", "v_xor_b32 v2, s%d, v2" % sA)
        g("v_lshl_add_u32 v6, v2, 6, v3", "v_xor_b32 v2, 1, v2", "v_lshl_add_u32 v7, v2, 6, v3")
        for s in range(R):
            g(*wdma(s, S_WD, sD, 16384))
        self.down_wait_h()
        for s in range(R):
            g(*hload(s))
        g("s_waitcnt vmcnt(28)")
        g("s_mov_b32 s%d, 0xffff0000" % sA)
        for k in range(8):
            g("v_lshlrev_b32 v%d, 16, v%d" % (ACC(0, 0) + 2 * k, 96 + k), "v_and_b32 v%d, s%d, v%d" % (ACC(0, 0) + 2 * k + 1, sA, 96 + k))

        def treads(slot, b):
            return ["ds_read_b64_tr_b16 %s, v%d offset:%d" % (vr(AB[b] + 4 * ln + 2 * p, 2), vT[ln], slot * 2048 + p * 1024)
                    for ln in range(2) for p in range(2)]

        def mms(hslot, b, first=False):
            return [(ACC(ln, lt), AB[b] + 4 * ln, HB(hslot, lt), (0 if first and (ln or lt) else None)) for ln in range(2) for lt in range(2)]
        g("s_waitcnt vmcnt(14)")
        g.stamp(8)
        g(*treads(0, 0))
        def step(u, par, vmwait, refill, first=False, nxt=True):
            M = mms(u, par, first)
            if vmwait is not None:
                g("s_waitcnt vmcnt(%d) lgkmcnt(0)" % vmwait)
            else:
                g("s_waitcnt lgkmcnt(0)")
            Rd = treads(nxt, par ^ 1) if nxt is not None else []
            g.mfma(*M[0])
            g(*Rd[:2])
            g.mfma(*M[1])
            g(*Rd[2:])
            g.mfma(*M[2])
            g(*refill[:len(refill) // 2])
            g.mfma(*M[3])
            g(*refill[len(refill) // 2:])
        for s in range(R):
            need_h = 2 * (R - 1 - s) + 4 * s
            if s == R - 1:
                need_h = min(need_h, 4 * (R - 2) + 2)
            ref = wdma(s, S_WD, sD, 16384)[:] + hload(s)
            step(s, s & 1, need_h, ref, first=(s == 0), nxt=(s + 1) % R)
        for it in range(2):
            for s in range(R):
                gs = R * (it + 1) + s
                ref = wdma(s, S_WD, sD, 16384) + hload(s)
                step(s, gs & 1, 4 * (R - 2) + 2, ref, nxt=(s + 1) % R)
        g("s_lshl_b32 s%d, s%d, 17" % (sF, sW))
        for s in range(R):
            gs = 3 * R + s
            if s < R - 1:
                vm = 2 + 4 * (R - 2 - s) + 2 * s
                nxt = s + 1
            else:
                vm = 2 * (R - 1) - 2 if False else 2 * s
                nxt = None
            ref = wdma(s, S_WO, sF, 16384)
            step(s, gs & 1, vm, ref, nxt=nxt)
        g.stamp(9)
        g(*wdma(7, S_WO, sF, 16384))
        g("s_lshl_b32 s%d, s%d, 16" % (sE, sRB2), "s_lshl_b32 s%d, s%d, 13" % (sB, sW), "s_add_u32 s%d, s%d, s%d" % (sE, sE, sB),
          "s_add_u32 s%d, s%d, 0x%x" % (sE, sE, WS_O), "s_add_u32 s%d, s%d, 0x1000" % (sB, sE))
        g("s_lshr_b32 s%d, s%d, 1" % (sA, sW), "s_lshl_b32 s%d, s%d, 15" % (sA, sA), "v_add_u32 v4, s%d, v1" % sA,
          "s_xor_b32 s%d, s%d, 0x8000" % (sA, sA), "v_add_u32 v5, s%d, v1" % sA)
        self.down_wait_o()
        for s in range(8):
            for lt in range(2):
                g("buffer_load_dwordx4 %s, v%d, %s, s%d offen offset:%d%s" % (vr(HB(s, lt), 4), vH[lt], sr(S_WS, 4), sE if s < 4 else sB, (s & 3) * 1024, cc))
        g("s_waitcnt vmcnt(16)")
        g(*treads(0, 0))
        for s in range(8):
            step(s, s & 1, 14 - 2 * s, [], nxt=(s + 1 if s < 7 else None))
        g("v_add_u32 v2, s%d, v1" % sC)
        for k in range(1, 4):
            g("s_xor_b32 s%d, s%d, %d" % (sA, sW, k), "s_lshl_b32 s%d, s%d, 14" % (sA, sA), "s_add_u32 s%d, s%d, 0x%x" % (sA, sA, g.o["l_ring"]),
              "v_add_u32 v%d, s%d, v1" % (12 + k, sA))
        for k in (2, 1, 3):
            a = ACC(k & 1, k >> 1)
            if k == 3:
                g("s_nop 1")
            for i in range(4):
                g("ds_write_b128 v2, %s offset:%d" % (vr(a + 4 * i, 4), (k - 1) * 4096 + i * 1024))
        g("s_waitcnt lgkmcnt(0)", "s_barrier")
        for k in range(1, 4):
            for i in range(4):
                g("ds_read_b128 %s, v%d offset:%d" % (vr(32 + 16 * (k - 1) + 4 * i, 4), 12 + k, (k - 1) * 4096 + i * 1024))
        a = ACC(0, 0)
        for k in range(1, 4):
            g("s_waitcnt lgkmcnt(%d)" % (4 * (3 - k)))
            for i in range(16):
                g("v_add_f32 v%d, v%d, v%d" % (a + i, a + i, 32 + 16 * (k - 1) + i))
        for k in range(8):
            g("v_cvt_pk_bf16_f32 v%d, v%d, v%d" % (16 + k, a + 2 * k, a + 2 * k + 1))
        g("s_nop 0")
        g("v_permlane32_swap_b32 v16, v18", "v_permlane32_swap_b32 v17, v19", "v_permlane32_swap_b32 v20, v22", "v_permlane32_swap_b32 v21, v23")
        g("buffer_store_dwordx4 v[16:19], v11, %s, s%d offen" % (sr(S_OUT, 4), sOUT), "buffer_store_dwordx4 v[20:23], v11, %s, s%d offen offset:32" % (sr(S_OUT, 4), sOUT))
        g("s_lshl_b32 s3, s2, 2", "s_add_u32 s3, s3, s%d" % sW, "s_cmp_lg_u32 s3, 0", "s_cbranch_scc1 L_dn_end", "s_mov_b32 s%d, 0x%x" % (sA, F_EPOCH))
        g.flag_store(sA, 2)
        g.label("L_dn_end")


def probe_kernel(g, a, b, mult):
    kernel_head(g, "kp_kernel")
    g("s_cmp_ge_u32 s2, 1", "s_cbranch_scc1 L_kp_end")
    g("s_load_dwordx2 s[22:23], s[0:1], 72", "s_memrealtime s[30:31]", "s_waitcnt lgkmcnt(0)")
    g.srd(S_WS, 22, WS_SIZE)
    g("v_lshlrev_b32 v1, 9, v0")
    for n, (k, w, sl, op) in enumerate((a, b)):
        for q in range(4):
            g("s_mov_b32 s3, 0x%x" % (WS_FLAG + 65536 + k * 131072 + w * 64 + sl * 4 + q * 32768))
            g("buffer_load_dword v%d, v1, %s, s3 offen" % (4 + q, sr(S_WS, 4)))
        g("s_waitcnt vmcnt(0)")
        if op == "min":
            for q in range(4):
                g("v_subrev_u32 v%d, 1, v%d" % (4 + q, 4 + q))
        g("v_%s_u32 v4, v4, v5" % op, "v_%s_u32 v6, v6, v7" % op, "v_%s_u32 v4, v4, v6" % op, "s_nop 1")
        g("v_readlane_b32 s%d, v4, 0" % (40 + n))
        for l in range(1, 64):
            g("v_readlane_b32 s35, v4, %d" % l, "s_nop 0", "s_%s_u32 s%d, s%d, s35" % (op, 40 + n, 40 + n))
    g("s_sub_u32 s42, s41, s40", "s_mul_i32 s42, s42, %d" % mult, "s_min_u32 s42, s42, 100000")
    g.label("L_kp_spin")
    g("s_memrealtime s[32:33]", "s_waitcnt lgkmcnt(0)", "s_sub_u32 s34, s32, s30", "s_cmp_lt_u32 s34, s42", "s_cbranch_scc1 L_kp_spin")
    g.label("L_kp_end")
    g("s_endpgm")


HEADER = """; Kernarg layout (80 bytes, pointers only):
"""


def kd(name, vgpr=256, sgpr=102):
    return """.amdhsa_kernel %s
  .amdhsa_next_free_vgpr %d
  .amdhsa_next_free_sgpr %d
  .amdhsa_accum_offset %d
  .amdhsa_group_segment_fixed_size 0
  .amdhsa_kernarg_size 80
  .amdhsa_user_sgpr_count 2
  .amdhsa_user_sgpr_kernarg_segment_ptr 1
  .amdhsa_system_sgpr_workgroup_id_x 1
.end_amdhsa_kernel
""" % (name, vgpr, sgpr, (vgpr + 3) // 4 * 4)


def kernel_head(g, name):
    g(".globl %s" % name, ".p2align 8", ".type %s,@function" % name)
    g.label(name)


DEFAULT = dict(l_att=L_ATT, l_ring=L_RING, sc1=1, lognc=1, stamps=0,
               order="A e0 e1 e2 B e3 e4 e5 | S c0 c1 e6 x0 e7 e8 x1 c2 c3 x2 e9 e10 e11 c4 x3 e12 e13 c5 e14 e15 c6 c7")


def build(opts, probe=None):
    o = dict(DEFAULT)
    o.update(opts)
    K = NAME + "_kernel"
    out = HEADER
    if probe:
        out += "; @launch kernel=%s grid=(256,1,1) block=(512,1,1) lds=163840\n; @launch kernel=kp_kernel grid=(256,1,1) block=(64,1,1) lds=0\n" % K
    else:
        out += "; @launch grid=(256,1,1) block=(512,1,1) lds=163840\n"
    out += '.amdgcn_target "amdgcn-amd-amdhsa--gfx950"\n.text\n'
    g = G(o)
    kernel_head(g, K)
    g.prologue("L_end", "L_gemm")
    g.role_ln()
    g.role_attn()
    g.stamp_dump(0)
    g.label("L_end")
    g("s_endpgm")
    g.role_attn_slow()
    g(".p2align 6")
    g.label("L_gemm")
    g.role_qkv()
    g.role_gu("L_down")
    g.label("L_down")
    g.role_down()
    g.stamp_dump(0)
    g("s_endpgm")
    names = [K]
    if probe:
        probe_kernel(g, *probe)
        names.append("kp_kernel")
    body = "\n".join(("" if l.endswith(":") or l.startswith(".") else "  ") + l for l in g.L)
    out += body + "\n" + '.section .rodata,"a"\n'
    for n in names:
        out += ".p2align 6\n" + kd(n)
    return out, names


if __name__ == "__main__":
    dst = sys.argv[1]
    opts = eval("dict(%s)" % sys.argv[2]) if len(sys.argv) > 2 else {}
    probe = opts.pop("probe", None)
    asm, names = build(opts, probe)
    errs = check.check(asm, names)
    for e in errs:
        print(e)
    print("%s: %d checker problems, %d lines" % (dst, len(errs), asm.count("\n")))
    open(dst, "w").write(asm)
```

```python
import sys, os, math, struct
sys.path.insert(0, os.path.dirname(os.path.abspath(__file__)))
import check

NAME = "parallel_sum__softmax_full_mha__glu_gated_reglu__prompt"

WS_FLAG = 0
WS_Q = 1 << 20
WS_KV = 3 << 20
WS_O = 7 << 20
WS_H = 9 << 20
WS_SIZE = 17 << 20

L_XN = 0
L_W = 65536
L_FLAG = 65536
L_RING = 65536 + 256
L_ATT = 139264

S_X, S_WQ, S_WG, S_WU, S_WD, S_WO, S_OUT, S_WS, S_KV = 24, 28, 32, 36, 40, 44, 48, 52, 56
sW = 60
sRB, sCB, sHEAD, sQB, sRB2, sCB2, sCNT = 61, 62, 63, 64, 65, 66, 67
sA, sB, sC, sD, sE, sF = 68, 69, 70, 71, 72, 73
sOUT, sEP = 74, 75
sMASK = 76
F1, F2, F3, F_EPOCH = WS_FLAG, WS_FLAG + 4096, WS_FLAG + 8192, WS_FLAG + 16384
POLL_LIMIT = 0x40000


def f2u(x):
    return struct.unpack("<I", struct.pack("<f", x))[0]


def vr(b, n=1):
    return "v%d" % b if n == 1 else "v[%d:%d]" % (b, b + n - 1)


def sr(b, n=1):
    return "s%d" % b if n == 1 else "s[%d:%d]" % (b, b + n - 1)


class G:
    def __init__(self, opts):
        self.L = []
        self.o = opts
        self.cc = " sc1" if opts.get("sc1") else ""

    def __call__(self, *lines):
        for l in lines:
            self.L.extend(l.split("\n"))

    def label(self, n):
        self.L.append(n + ":")

    def mfma(self, d, a, b, c=None):
        cs = "0" if c == 0 else vr(d, 16)
        self("v_mfma_f32_32x32x16_bf16 %s, %s, %s, %s" % (vr(d, 16), vr(a, 4), vr(b, 4), cs))

    def srd(self, s, ptr, nbytes):
        self("s_mov_b32 s%d, s%d" % (s, ptr), "s_mov_b32 s%d, s%d" % (s + 1, ptr + 1),
             "s_mov_b32 s%d, 0x%x" % (s + 2, nbytes), "s_mov_b32 s%d, 0x20000" % (s + 3))

    def stamp(self, slot, grp="main"):
        if self.o.get("stamps") and (slot in (0, 11) or grp == self.o.get("diag", "main")):
            self("%s s[%d:%d]" % ("s_memtime" if self.o.get("stamps") == 2 else "s_memrealtime", 78 + 2 * slot, 79 + 2 * slot))

    def stamp_init(self):
        if self.o.get("stamps"):
            for k in range(1, 12):
                self("s_mov_b32 s%d, 0" % (78 + 2 * k))

    def stamp_dump(self, base):
        if not self.o.get("stamps"):
            return
        g = self
        g("s_waitcnt vmcnt(0)")
        g.stamp(11)
        g("s_lshl_b32 s3, s2, 3", "s_add_u32 s3, s3, s11", "s_lshl_b32 s3, s3, 6",
          "s_add_u32 s3, s3, 0x%x" % (WS_FLAG + 65536 + base * 131072), "s_waitcnt lgkmcnt(0)", "v_mov_b32 v1, 0", "s_mov_b64 exec, 1")
        for k in range(12):
            g("v_mov_b32 v2, s%d" % (78 + 2 * k), "buffer_store_dword v2, v1, %s, s3 offen offset:%d" % (sr(S_WS, 4), 4 * k))

    def prologue(self, end, gemm):
        g = self
        g.stamp(0)
        g("s_cmp_ge_u32 s2, 0x100", "s_cbranch_scc1 %s" % end)
        g("s_load_dwordx4 s[4:7], s[0:1], 0", "s_load_dwordx4 s[20:23], s[0:1], 64", "s_load_dwordx2 s[8:9], s[0:1], 16",
          "s_load_dwordx8 s[12:19], s[0:1], 32")
        g.stamp_init()
        g("v_lshrrev_b32 v1, 6, v0", "v_and_b32 v0, 63, v0")
        g("s_and_b32 s3, s2, 7", "s_lshr_b32 s10, s2, 3")
        g("v_readfirstlane_b32 s11, v1")
        lc = g.o["lognc"]
        g("s_and_b32 s%d, s3, %d" % (sCB, (8 >> lc) - 1), "s_lshl_b32 s%d, s%d, %d" % (sCB, sCB, lc), "s_and_b32 s%d, s10, %d" % (sA, (1 << lc) - 1),
          "s_or_b32 s%d, s%d, s%d" % (sCB, sCB, sA))
        g("s_lshr_b32 s%d, s3, %d" % (sRB, 3 - lc), "s_lshl_b32 s%d, s%d, %d" % (sRB, sRB, 5 - lc), "s_lshr_b32 s%d, s10, %d" % (sA, lc),
          "s_or_b32 s%d, s%d, s%d" % (sRB, sRB, sA))
        g("s_and_b32 s%d, s11, 3" % sW)
        g("s_cmp_ge_u32 s11, 4", "s_cbranch_scc1 %s" % gemm)

    def epoch_load(self):
        self("s_load_dword s%d, s[22:23], 0x%x" % (sEP, F_EPOCH))

    def epoch_make(self):
        self("s_mul_i32 s%d, s%d, 0x19660d" % (sEP, sEP), "s_add_u32 s%d, s%d, 0x3c6ef35f" % (sEP, sEP))

    def flag_store(self, soff, vtmp):
        g = self
        g("v_mov_b32 v%d, s%d" % (vtmp, sEP), "v_mov_b32 v%d, 0" % (vtmp + 1), "s_mov_b64 exec, 1")
        g("buffer_store_dword v%d, v%d, %s, s%d offen sc1" % (vtmp, vtmp + 1, sr(S_WS, 4), soff), "s_mov_b64 exec, -1")

    def poll(self, name, voff, soff, vtmp, sleep):
        g = self
        g("s_mov_b32 s3, 0")
        g.label("L_poll_" + name)
        g("buffer_load_dword v%d, v%d, %s, s%d offen sc1" % (vtmp, voff, sr(S_WS, 4), soff), "s_add_u32 s3, s3, 1", "s_waitcnt vmcnt(0)")
        g("v_cmp_ne_u32 vcc, s%d, v%d" % (sEP, vtmp), "s_cmp_gt_u32 s3, 0x%x" % POLL_LIMIT, "s_cbranch_vccz L_polld_" + name)
        g("s_cbranch_scc1 L_polld_" + name, "s_sleep %d" % sleep, "s_branch L_poll_" + name)
        g.label("L_polld_" + name)

    def role_ln(self):
        g = self
        X = lambda e, i: 16 + 32 * e + 4 * i
        vXo, vWa = 4, 5
        SUM, SQ = (6, 8), (7, 9)
        RI, NB = (10, 12), (11, 13)
        T = 80
        g("v_lshrrev_b32 v2, 3, v0", "v_and_b32 v3, 7, v0")
        g("v_lshlrev_b32 v4, 10, v2", "v_lshl_add_u32 v4, v3, 4, v4")
        g("s_lshl_b32 s%d, s%d, 16" % (sA, sRB), "s_lshl_b32 s%d, s%d, 14" % (sB, sW),
          "s_add_u32 s%d, s%d, s%d" % (sA, sA, sB), "s_add_u32 s%d, s%d, 0x2000" % (sB, sA))
        g("s_waitcnt lgkmcnt(0)")
        g.srd(S_X, 4, 2048 * 1024)
        g.stamp(1)
        for e in range(2):
            for i in range(8):
                g("buffer_load_dwordx4 %s, v4, %s, s%d offen offset:%d" % (vr(X(e, i), 4), sr(S_X, 4), sA + e, 128 * i))
        g("s_barrier")
        g.epoch_load()
        g.srd(S_WS, 22, WS_SIZE)
        g("s_lshl_b32 s%d, s3, 2" % sHEAD, "s_and_b32 s%d, s10, 3" % sA, "s_or_b32 s%d, s%d, s%d" % (sHEAD, sHEAD, sA),
          "s_lshr_b32 s%d, s10, 2" % sQB)
        g("v_xor_b32 v5, v2, v3", "v_lshlrev_b32 v5, 4, v5", "v_lshl_add_u32 v5, v3, 9, v5")
        g("s_lshr_b32 s%d, s%d, 1" % (sC, sW), "s_lshl_b32 s%d, s%d, 15" % (sC, sC),
          "s_and_b32 s%d, s%d, 1" % (sD, sW), "s_lshl_b32 s%d, s%d, 8" % (sD, sD), "s_add_u32 s%d, s%d, s%d" % (sC, sC, sD))
        g("v_add_u32 v5, s%d, v5" % sC)
        g("s_mov_b32 s%d, 0x3f803f80" % sC, "s_mov_b32 s%d, 0xffff0000" % sD)
        for r in (6, 7, 8, 9):
            g("v_mov_b32 v%d, 0" % r)
        for e in range(2):
            for i in range(8):
                g("s_waitcnt vmcnt(%d)" % (15 - 8 * e - i))
                for k in range(4):
                    x = X(e, i) + k
                    g("v_dot2c_f32_bf16 v%d, s%d, v%d" % (SUM[e], sC, x), "v_dot2c_f32_bf16 v%d, v%d, v%d" % (SQ[e], x, x))
        g.stamp(2)
        for dpp in ("quad_perm:[1,0,3,2]", "quad_perm:[2,3,0,1]", "row_half_mirror"):
            for r in (6, 7, 8, 9):
                g("v_add_f32_dpp v%d, v%d, v%d %s row_mask:0xf bank_mask:0xf" % (r, r, r, dpp))
        inv = "0x%x" % f2u(1.0 / 512)
        eps = "0x%x" % f2u(1e-5)
        for e in range(2):
            g("v_mul_f32 v%d, %s, v%d" % (SUM[e], inv, SUM[e]), "v_mul_f32 v%d, %s, v%d" % (SQ[e], inv, SQ[e]))
        for e in range(2):
            g("v_fma_f32 v%d, -v%d, v%d, v%d" % (SQ[e], SUM[e], SUM[e], SQ[e]))
        for e in range(2):
            g("v_max_f32 v%d, 0, v%d" % (SQ[e], SQ[e]))
        for e in range(2):
            g("v_cvt_pk_bf16_f32 v%d, v%d, v%d" % (SQ[e], SUM[e], SQ[e]))
        for e in range(2):
            g("v_lshlrev_b32 v%d, 16, v%d" % (SUM[e], SQ[e]), "v_and_b32 v%d, s%d, v%d" % (SQ[e], sD, SQ[e]))
        for e in range(2):
            g("v_add_f32 v%d, %s, v%d" % (SQ[e], eps, SQ[e]))
        g("v_cvt_pk_bf16_f32 v7, v7, v9", "v_and_b32 v9, s%d, v7" % sD, "v_lshlrev_b32 v7, 16, v7")
        g("v_sqrt_f32 v7, v7", "v_sqrt_f32 v9, v9", "s_nop 0")
        g("v_cvt_pk_bf16_f32 v7, v7, v9", "v_and_b32 v9, s%d, v7" % sD, "v_lshlrev_b32 v7, 16, v7")
        g("v_rcp_f32 v%d, v7" % RI[0], "v_rcp_f32 v%d, v9" % RI[1], "s_nop 0")
        for e in range(2):
            g("v_mul_f32 v%d, v%d, v%d" % (NB[e], SUM[e], RI[e]))
        for i in range(8):
            for e in range(2):
                for k in range(4):
                    x = X(e, i) + k
                    t = T + 2 * k
                    g("v_lshlrev_b32 v%d, 16, v%d" % (t, x), "v_and_b32 v%d, s%d, v%d" % (t + 1, sD, x))
                    g("v_fma_f32 v%d, v%d, v%d, -v%d" % (t, t, RI[e], NB[e]), "v_fma_f32 v%d, v%d, v%d, -v%d" % (t + 1, t + 1, RI[e], NB[e]))
                    g("v_cvt_pk_bf16_f32 v%d, v%d, v%d" % (x, t, t + 1))
                g("ds_write_b128 v5, %s offset:%d" % (vr(X(e, i), 4), i * 4096 + e * 128))
            if i == 6:
                g("s_lshl_b32 s%d, s%d, 2" % (sA, sW), "s_add_u32 s%d, s%d, 0x%x" % (sA, sA, L_FLAG), "v_mov_b32 v14, s%d" % sA, "v_mov_b32 v15, 0",
                  "ds_write_b32 v14, v15")
            g("s_waitcnt lgkmcnt(0)")
            if i == 0:
                g.stamp(3)
            g.stamp(i + 1, "qkv")
            g("s_barrier")
            if i == 0:
                g.epoch_make()
        g("s_barrier")

    def role_qkv(self):
        g = self
        AQ, AK, AV = 16, 32, 48
        WB = (64, 76)
        XB = (88, 92)
        vXr = 4
        vT = (8, 9)
        vD = 96
        g("v_lshrrev_b32 v2, 3, v0", "v_and_b32 v3, 7, v0")
        g("v_lshrrev_b32 v1, 2, v0", "v_and_b32 v1, 4, v1", "v_xor_b32 v3, v3, v1")
        g("s_lshl_b32 s%d, s%d, 4" % (sA, sW), "v_add_u32 v2, s%d, v2" % sA, "v_mul_u32_u24 v2, 0xc00, v2")
        g("s_lshl_b32 s%d, s%d, 7" % (sA, sCB), "v_lshl_add_u32 v2, v3, 4, v2", "v_add_u32 v%d, s%d, v2" % (vD, sA))
        for seg in range(3):
            for e in range(2):
                if seg or e:
                    g("v_add_u32 v%d, 0x%x, v%d" % (vD + 2 * seg + e, seg * 1024 + e * (8 * 3072 - 1024), vD))
        g("s_mul_i32 s%d, s%d, 0x1800" % (sC, sW), "s_add_u32 s%d, s%d, 0x%x" % (sC, sC, L_W))

        def dma(st):
            g("s_mov_b32 s%d, 0x%x" % (sA, st * 64 * 3072))
            for seg in range(3):
                g("s_add_u32 m0, s%d, 0x%x" % (sC, (st & 3) * 24576 + seg * 2048))
                if seg:
                    g("s_nop 0")
                else:
                    g("s_nop 0")
                g("buffer_load_dwordx4 v%d, %s, s%d offen lds" % (vD + 2 * seg, sr(S_WQ, 4), sA))
                g("buffer_load_dwordx4 v%d, %s, s%d offen offset:1024 lds" % (vD + 2 * seg + 1, sr(S_WQ, 4), sA))
        g("s_waitcnt lgkmcnt(0)")
        g.srd(S_WQ, 6, 512 * 3072)
        g.stamp(1)
        g.epoch_load()
        g.srd(S_X, 4, 2048 * 1024)
        g.srd(S_WG, 12, 512 * 3584)
        g.srd(S_WU, 14, 512 * 3584)
        g.srd(S_WD, 16, 1792 * 1024)
        g.srd(S_WO, 8, 512 * 1024)
        g.srd(S_OUT, 18, 2048 * 1024)
        g.srd(S_WS, 22, WS_SIZE)
        g("s_lshl_b32 s%d, s3, 2" % sRB2, "s_lshr_b32 s%d, s10, 3" % sA, "s_or_b32 s%d, s%d, s%d" % (sRB2, sRB2, sA),
          "s_and_b32 s%d, s10, 7" % sCB2)
        g("s_barrier")
        for st in range(4):
            dma(st)
        g("s_setprio 1")
        g("v_lshrrev_b32 v1, 5, v0")
        g("s_and_b32 s%d, s%d, 1" % (sA, sW), "s_lshl_b32 s%d, s%d, 15" % (sE, sA))
        g("v_xor_b32 v2, v0, v1")
        for q in range(4):
            g("v_xor_b32 v3, %d, v2" % (2 * q), "v_lshlrev_b32 v3, 4, v3", "v_add_u32 v3, 0x%x, v3" % (q * 1024),
              "v_add_u32 v%d, s%d, v3" % (vXr + q, sE))
        g("v_bfe_u32 v2, v0, 2, 2")
        g("v_lshl_add_u32 v3, v1, 3, v2", "v_lshlrev_b32 v3, 7, v3")
        g("v_lshrrev_b32 v2, 1, v2", "s_lshr_b32 s%d, s%d, 1" % (sA, sW), "v_xor_b32 v2, s%d, v2" % sA,
          "v_lshl_add_u32 v3, v2, 6, v3")
        g("v_bfe_u32 v2, v0, 4, 1", "v_lshl_add_u32 v3, v2, 5, v3", "v_and_b32 v2, 3, v0", "v_lshl_add_u32 v3, v2, 3, v3")
        g("v_add_u32 v%d, 0x%x, v3" % (vT[0], L_W), "v_add_u32 v%d, 0x%x, v3" % (vT[1], L_W + 49152))

        def reads(n):
            st, ks = n >> 2, n & 3
            b = n & 1
            slot = st & 3
            L = ["ds_read_b128 %s, v%d offset:%d" % (vr(XB[b], 4), vXr + ks, st * 4096)]
            for seg in range(3):
                for p in range(2):
                    L.append("ds_read_b64_tr_b16 %s, v%d offset:%d" % (vr(WB[b] + 4 * seg + 2 * p, 2), vT[slot >> 1],
                                                                      (slot & 1) * 24576 + ks * 6144 + seg * 2048 + p * 512))
            return L

        def mm(n):
            b = n & 1
            c = 0 if n == 0 else None
            return [(AQ, WB[b], XB[b], c), (AK, WB[b] + 4, XB[b], c), (AV, XB[b], WB[b] + 8, c)]
        g("s_waitcnt vmcnt(18) lgkmcnt(0)")
        g.epoch_make()
        g.stamp(2)
        g("s_barrier")
        g.stamp(3)
        g(*reads(0))
        for n in range(32):
            st, ks = n >> 2, n & 3
            M = mm(n)
            if ks == 3 and st < 7:
                infl = min(3, 7 - st) - 1 if st >= 1 else 2
                infl = len([x for x in range(st + 2, min(8, st + 4))])
                g("s_waitcnt lgkmcnt(0)")
                if st in (0, 3, 4):
                    g.stamp({0: 1, 3: 4, 4: 7}[st], "qkv")
                g("s_waitcnt vmcnt(%d)" % (6 * infl))
                if st in (0, 3, 4):
                    g.stamp({0: 2, 3: 5, 4: 8}[st], "qkv")
                g("s_barrier")
                if st in (0, 3, 4):
                    g.stamp({0: 3, 3: 6, 4: 9}[st], "qkv")
                R = reads(n + 1)
                g.mfma(*M[0])
                g(*R[:4])
                g.mfma(*M[1])
                g(*R[4:])
                g.mfma(*M[2])
                if st + 4 < 8:
                    dma(st + 4)
            else:
                R = reads(n + 1) if n + 1 < 32 else []
                g("s_waitcnt lgkmcnt(0)")
                if n == 31:
                    g("s_barrier")
                g.mfma(*M[0])
                g(*R[:4])
                g.mfma(*M[1])
                g(*R[4:])
                g.mfma(*M[2])
        g.stamp(4)
        g.stamp(10, "qkv")
        g("s_lshl_b32 s%d, s%d, 1" % (sA, sRB), "s_and_b32 s%d, s%d, 1" % (sB, sW), "s_add_u32 s%d, s%d, s%d" % (sA, sA, sB))
        g("s_lshl_b32 s%d, s%d, 2" % (sB, sCB), "s_and_b32 s%d, s%d, 2" % (sC, sW), "s_add_u32 s%d, s%d, s%d" % (sB, sB, sC))
        g("s_lshl_b32 s%d, s%d, 6" % (sB, sB), "s_add_u32 s%d, s%d, s%d" % (sB, sB, sA))
        g("s_lshr_b32 s%d, s%d, 7" % (sOUT, sB), "s_lshl_b32 s%d, s%d, 6" % (sOUT, sOUT), "s_add_u32 s%d, s%d, s%d" % (sOUT, sOUT, sA),
          "s_lshl_b32 s%d, s%d, 2" % (sOUT, sOUT))
        g("s_lshl_b32 s%d, s%d, 10" % (sA, sB), "s_add_u32 s%d, s%d, 0x%x" % (sA, sA, WS_Q), "s_add_u32 s%d, s%d, 0x10000" % (sC, sA))
        g("s_lshl_b32 s%d, s%d, 11" % (sB, sB), "s_add_u32 s%d, s%d, 0x%x" % (sB, sB, WS_KV), "s_add_u32 s%d, s%d, 0x20000" % (sD, sB))
        g("v_lshlrev_b32 v10, 4, v0")
        g("v_bfe_u32 v2, v0, 4, 1", "v_lshlrev_b32 v2, 17, v2", "v_lshl_add_u32 v2, v1, 8, v2", "v_and_b32 v3, 15, v0",
          "v_lshl_add_u32 v11, v3, 4, v2")
        sc = "0x%x" % f2u(0.25 * math.log2(math.e))
        g("s_mov_b32 s%d, %s" % (sF, sc))
        P = 64
        for k in range(16):
            g("v_mul_f32 v%d, s%d, v%d" % (AQ + k, sF, AQ + k))
        for k in range(8):
            g("v_cvt_pk_bf16_f32 v%d, v%d, v%d" % (P + k, AQ + 2 * k, AQ + 2 * k + 1))
            if k == 3:
                g("buffer_store_dwordx4 %s, v10, %s, s%d offen%s" % (vr(P, 4), sr(S_WS, 4), sA, g.cc))
        g("buffer_store_dwordx4 %s, v10, %s, s%d offen%s" % (vr(P + 4, 4), sr(S_WS, 4), sC, g.cc))
        for k in range(8):
            g("v_cvt_pk_bf16_f32 v%d, v%d, v%d" % (P + 8 + k, AK + 2 * k, AK + 2 * k + 1))
            if k == 3:
                g("buffer_store_dwordx4 %s, v10, %s, s%d offen%s" % (vr(P + 8, 4), sr(S_WS, 4), sB, g.cc))
        g("buffer_store_dwordx4 %s, v10, %s, s%d offen%s" % (vr(P + 12, 4), sr(S_WS, 4), sD, g.cc))
        for k in range(8):
            g("v_cvt_pk_bf16_f32 v%d, v%d, v%d" % (P + 16 + k, AV + 2 * k, AV + 2 * k + 1))
            if k == 3:
                g("buffer_store_dwordx4 %s, v11, %s, s%d offen offset:1024%s" % (vr(P + 16, 4), sr(S_WS, 4), sB, g.cc))
        g("buffer_store_dwordx4 %s, v11, %s, s%d offen offset:1536%s" % (vr(P + 20, 4), sr(S_WS, 4), sB, g.cc))

    def role_gu(self, done):
        g = self
        ACC = lambda tt, j: 128 + 16 * (4 * tt + j)
        AB = (16, 32)
        BB = (48, 56)
        vXr = 4
        vTg = 112
        vG = 116
        g("s_setprio 0")
        g("s_cmp_lg_u32 s%d, 7" % sCB, "s_cbranch_scc1 L_gu_go")
        g("s_waitcnt vmcnt(0)")
        g.flag_store(sOUT, 2)
        g.stamp(5)
        g("s_branch %s" % done)
        g.label("L_gu_go")
        g("v_lshrrev_b32 v2, 3, v0", "v_mul_u32_u24 v2, 0xe00, v2")
        g("s_lshl_b32 s%d, s%d, 2" % (sA, sCB), "s_add_u32 s%d, s%d, s%d" % (sA, sA, sW), "s_lshl_b32 s%d, s%d, 7" % (sB, sA))
        g("v_add_u32 v2, s%d, v2" % sB)
        g("v_lshrrev_b32 v3, 3, v0", "v_and_b32 v3, 2, v3", "v_xor_b32 v3, v3, v0", "v_and_b32 v3, 7, v3")
        g("v_lshl_add_u32 v%d, v3, 4, v2" % vG, "v_xor_b32 v3, 4, v3", "v_lshl_add_u32 v%d, v3, 4, v2" % (vG + 2))
        g("v_add_u32 v%d, 0x%x, v%d" % (vG + 1, 8 * 3584 - 1024, vG), "v_add_u32 v%d, 0x%x, v%d" % (vG + 3, 8 * 3584 - 1024, vG + 2))
        g("s_lshl_b32 s%d, s%d, 14" % (sC, sW), "s_add_u32 s%d, s%d, 0x%x" % (sC, sC, L_RING))
        g("s_mov_b32 s%d, 0" % sD)

        def dma(slot):
            L = []
            for gg in range(2):
                L.append("s_add_u32 m0, s%d, 0x%x" % (sC, slot * 4096 + gg * 2048))
                L.append("s_nop 0")
                L.append("buffer_load_dwordx4 v%d, %s, s%d offen lds" % (vG + 2 * gg, sr(S_WG + 4 * gg, 4), sD))
                L.append("buffer_load_dwordx4 v%d, %s, s%d offen offset:1024 lds" % (vG + 2 * gg + 1, sr(S_WG + 4 * gg, 4), sD))
            L.append("s_add_u32 s%d, s%d, 0x%x" % (sD, sD, 16 * 3584))
            return L
        for s in range(4):
            g(*dma(s))
        g("v_lshrrev_b32 v1, 5, v0", "v_bfe_u32 v2, v0, 2, 2", "v_lshl_add_u32 v3, v1, 3, v2", "v_lshlrev_b32 v3, 7, v3")
        g("v_bfe_u32 v8, v0, 4, 1", "v_lshl_add_u32 v3, v8, 11, v3", "v_and_b32 v9, 3, v0", "v_lshl_add_u32 v3, v9, 3, v3")
        g("v_add_u32 v3, s%d, v3" % sC)
        g("v_lshrrev_b32 v2, 1, v2", "v_lshl_add_u32 v2, v8, 1, v2")
        for j in range(4):
            g("v_xor_b32 v8, %d, v2" % j, "v_lshl_add_u32 v%d, v8, 5, v3" % (vTg + j))
        for q in range(4):
            g("v_subrev_u32 v%d, s%d, v%d" % (vXr + q, sE, vXr + q))
        g("s_lshl_b32 s%d, s%d, 1" % (sB, sRB), "s_mul_i32 s%d, s%d, 112" % (sB, sB), "s_lshl_b32 s%d, s%d, 2" % (sA, sA),
          "s_add_u32 s%d, s%d, s%d" % (sA, sA, sB), "s_lshl_b32 s%d, s%d, 10" % (sA, sA), "s_add_u32 s%d, s%d, 0x%x" % (sA, sA, WS_H),
          "s_add_u32 s%d, s%d, 0x%x" % (sB, sA, 112 * 1024))

        def reads(u, nxt_iter=False):
            b = u & 1
            L = []
            L.append("ds_read_b128 %s, v%d offset:%d" % (vr(BB[b], 4), vXr + u, 0))
            for p in range(2):
                L.append("ds_read_b64_tr_b16 %s, v%d offset:%d" % (vr(AB[b] + 2 * p, 2), vTg, u * 4096 + p * 512))
            L.append("ds_read_b128 %s, v%d offset:%d" % (vr(BB[b] + 4, 4), vXr + u, 32768))
            for j in range(1, 4):
                for p in range(2):
                    L.append("ds_read_b64_tr_b16 %s, v%d offset:%d" % (vr(AB[b] + 4 * j + 2 * p, 2), vTg + j, u * 4096 + p * 512))
            L.append("v_add_u32 v%d, 0x1000, v%d" % (vXr + u, vXr + u))
            return L

        def step(u, first=False):
            b = u & 1
            c = 0 if first else None
            M = [(ACC(tt, j), AB[b] + 4 * j, BB[b] + 4 * tt, c) for j in range(4) for tt in range(2)]
            R = reads((u + 1) & 3)
            D = dma(u)
            g("s_waitcnt lgkmcnt(0)")
            g.mfma(*M[0])
            g(*D[:4])
            g.mfma(*M[1])
            g(*D[4:])
            g.mfma(*M[2])
            g("s_waitcnt vmcnt(12)")
            g(*R[0:3])
            g.mfma(*M[3])
            g(*R[3:6])
            g.mfma(*M[4])
            g(*R[6:8])
            g.mfma(*M[5])
            g(*R[8:10])
            g.mfma(*M[6])
            g(R[10])
            g.mfma(*M[7])
        g("s_waitcnt vmcnt(16)")
        g.flag_store(sOUT, 2)
        g.stamp(5)
        g("s_waitcnt vmcnt(13)")
        g.stamp(6)
        g(*reads(0))
        g("s_mov_b32 s%d, 8" % sCNT)
        step(0, first=True)
        g("s_branch L_gu_1")
        g.label("L_gu_0")
        step(0)
        g.label("L_gu_1")
        step(1)
        step(2)
        step(3)
        g("s_sub_u32 s%d, s%d, 1" % (sCNT, sCNT), "s_cmp_lg_u32 s%d, 0" % sCNT, "s_cbranch_scc1 L_gu_0")
        g("s_waitcnt vmcnt(0) lgkmcnt(0)")
        g.stamp(7)
        g("v_lshlrev_b32 v10, 4, v0")
        g("s_nop 7")
        order = [(tt, j) for j in range(4) for tt in range(2)]
        for n, (tt, j) in enumerate(order):
            a = ACC(tt, j)
            P = 16 + 4 * n
            for k in range(8):
                g("v_max_f32 v%d, 0, v%d" % (a + k, a + k))
            for k in range(8):
                g("v_mul_f32 v%d, v%d, v%d" % (a + k, a + k, a + 8 + k))
            for k in range(4):
                g("v_cvt_pk_bf16_f32 v%d, v%d, v%d" % (P + k, a + 2 * k, a + 2 * k + 1))
            g("buffer_store_dwordx4 %s, v10, %s, s%d offen offset:%d%s" % (vr(P, 4), sr(S_WS, 4), sA + tt, j * 1024, g.cc))

    def role_attn(self):
        g = self
        O = lambda i: 128 + 16 * i
        Q = lambda i: 16 + 4 * i
        S = (32, 48)
        P = 64
        KB = lambda b: 72 + 12 * b
        VB = lambda b, t: 72 + 12 * b + 4 + 4 * t
        vL, vV = 4, 5
        cc = g.cc
        g("v_lshlrev_b32 v4, 4, v0")
        g("v_lshrrev_b32 v1, 5, v0", "v_and_b32 v2, 15, v0", "v_lshlrev_b32 v2, 4, v2", "v_lshl_add_u32 v5, v1, 8, v2")
        g("s_and_b32 s%d, s%d, 1" % (sA, sW), "s_lshr_b32 s%d, s%d, 1" % (sB, sW))
        g("s_lshl_b32 s%d, s%d, 3" % (sC, sQB), "s_lshl_b32 s%d, s%d, 2" % (sA, sA), "s_add_u32 s%d, s%d, s%d" % (sC, sC, sA))
        g("s_lshl_b32 s%d, s%d, 6" % (sD, sHEAD))
        g("s_setprio 3")
        g("s_lshl_b32 s%d, s%d, 5" % (sA, sB), "s_add_u32 s%d, s%d, s%d" % (sA, sA, sD), "s_lshl_b32 s%d, s%d, 11" % (sA, sA),
          "s_add_u32 s%d, s%d, 0x%x" % (sA, sA, WS_KV))
        g("s_add_u32 s%d, s22, s%d" % (S_KV, sA), "s_addc_u32 s%d, s23, 0" % (S_KV + 1), "s_mov_b32 s%d, 0x10000" % (S_KV + 2),
          "s_mov_b32 s%d, 0x20000" % (S_KV + 3))
        g("s_lshl_b32 s%d, s%d, 1" % (sB, sB), "s_add_u32 s%d, s%d, s%d" % (sE, sC, sB), "s_xor_b32 s%d, s%d, 2" % (sF, sE))
        g("s_add_u32 s%d, s%d, 0x%x" % (sD, sD, WS_Q >> 10))
        g("s_add_u32 s%d, s%d, s%d" % (sA, sE, sD), "s_lshl_b32 s%d, s%d, 10" % (sA, sA))
        g("s_add_u32 s%d, s%d, s%d" % (sB, sF, sD), "s_lshl_b32 s%d, s%d, 10" % (sB, sB))
        g("s_mov_b32 s%d, 0xffff" % sMASK, "s_mov_b32 s%d, 0xffff" % (sMASK + 1))
        g("v_and_b32 v2, 27, v0", "v_mov_b32 v3, 0x3f803f80", "v_cmp_eq_u32 vcc, 16, v2", "s_mov_b32 s%d, 8" % sCNT, "s_nop 0",
          "v_cndmask_b32 v2, 0, v3, vcc")
        for b in range(4):
            for k in range(8):
                g("v_mov_b32 v%d, v2" % (VB(b, 0) + k))
        for k in range(64):
            g("v_mov_b32 v%d, 0" % (O(0) + k))
        self.attn_wait_inputs()
        g.stamp(5)
        for i in range(4):
            g("buffer_load_dwordx4 %s, v4, %s, s%d offen offset:%d%s" % (vr(Q(i), 4), sr(S_WS, 4), sA + (i >> 1), (i & 1) * 1024, cc))
        g("s_mov_b32 s%d, 0" % sD)

        def loads(b0):
            L = []
            for t in range(2):
                L.append("buffer_load_dwordx4 %s, v4, %s, s%d offen offset:%d%s" % (vr(KB(b0 + t), 4), sr(S_KV, 4), sD, t * 2048, cc))
            L.append("s_mov_b64 exec, %s" % sr(sMASK, 2))
            for t in range(2):
                for hh in range(2):
                    L.append("buffer_load_dwordx4 %s, v5, %s, s%d offen offset:%d%s" % (vr(VB(b0 + t, hh), 4), sr(S_KV, 4), sD, t * 2048 + 1024 + hh * 512, cc))
            L.append("s_mov_b64 exec, -1")
            L.append("s_add_u32 s%d, s%d, 0x1000" % (sD, sD))
            return L
        g(*loads(0))
        g("s_waitcnt vmcnt(5)")
        g.mfma(S[0], KB(0), Q(0), 0)
        g("s_waitcnt vmcnt(0)", "s_nop 10")
        g.stamp(6)
        order = g.o["order"].split()

        def step(n, skip_pv=False, only=None):
            pn, nn = (n - 1) & 15, (n + 1) & 15
            X = loads(2) if n == 0 else (loads(0) if n == 8 else None)
            s0 = S[n & 1]
            for t in (order if only is None else only):
                if t == "A":
                    if not skip_pv:
                        g.mfma(O(pn & 3), VB(pn >> 2, 0), P)
                elif t == "B":
                    if not skip_pv:
                        g.mfma(O(pn & 3), VB(pn >> 2, 1), P + 4)
                elif t == "S":
                    if n in (7, 15):
                        g("s_waitcnt vmcnt(0)")
                    g.mfma(S[nn & 1], KB(nn >> 2), Q(nn & 3), 0)
                elif t == "|":
                    if n == 0 and only is None:
                        g.label("L_at_entry")
                elif t[0] == "x":
                    if X:
                        g(*{"x0": X[0:1], "x1": X[1:2], "x2": X[2:8], "x3": X[8:9]}[t])
                    if n == 15 and t == "x0":
                        g("s_sub_u32 s%d, s%d, 1" % (sCNT, sCNT))
                elif t[0] == "e":
                    k = int(t[1:])
                    g("v_exp_f32 v%d, v%d" % (s0 + k, s0 + k))
                elif t[0] == "c":
                    k = int(t[1:])
                    g("v_cvt_pk_bf16_f32 v%d, v%d, v%d" % (P + k, s0 + 2 * k, s0 + 2 * k + 1))
        step(0, skip_pv=True, only=order[:order.index("|")])
        g("s_branch L_at_entry")
        g(".p2align 6")
        g.label("L_at_loop")
        for n in range(16):
            step(n)
        g("s_cmp_lg_u32 s%d, 0" % sCNT, "s_cbranch_scc1 L_at_loop")
        g.mfma(O(3), VB(3, 0), P)
        g.mfma(O(3), VB(3, 1), P + 4)
        g.stamp(7)
        g("s_xor_b32 s%d, s%d, 2" % (sA, sW), "s_mul_i32 s%d, s%d, 0x1200" % (sA, sA), "s_add_u32 s%d, s%d, 0x%x" % (sA, sA, g.o["l_att"]))
        g("s_mul_i32 s%d, s%d, 0x1200" % (sB, sW), "s_add_u32 s%d, s%d, 0x%x" % (sB, sB, g.o["l_att"]))
        g("v_add_u32 v6, s%d, v4" % sA, "v_add_u32 v7, s%d, v4" % sB)
        g("v_lshlrev_b32 v8, 2, v0", "v_add_u32 v9, s%d, v8" % sB, "v_add_u32 v8, s%d, v8" % sA)
        g("ds_write_b128 v6, %s" % vr(O(2), 4), "ds_write_b128 v6, %s offset:1024" % vr(O(2) + 4, 4), "ds_write_b32 v8, v%d offset:2048" % (O(2) + 8))
        g("s_nop 1")
        g("ds_write_b128 v6, %s offset:2304" % vr(O(3), 4), "ds_write_b128 v6, %s offset:3328" % vr(O(3) + 4, 4),
          "ds_write_b32 v8, v%d offset:4352" % (O(3) + 8))
        g("s_waitcnt lgkmcnt(0)")
        self.attn_pair_sync()
        T = 32
        g("ds_read_b128 %s, v7" % vr(T, 4), "ds_read_b128 %s, v7 offset:1024" % vr(T + 4, 4), "ds_read_b32 v%d, v9 offset:2048" % (T + 8))
        g("ds_read_b128 %s, v7 offset:2304" % vr(T + 12, 4), "ds_read_b128 %s, v7 offset:3328" % vr(T + 16, 4), "ds_read_b32 v%d, v9 offset:4352" % (T + 20))
        g("s_lshl_b32 s%d, s%d, 5" % (sA, sE), "s_add_u32 s%d, s%d, s%d" % (sA, sA, sHEAD), "s_lshl_b32 s%d, s%d, 10" % (sA, sA),
          "s_add_u32 s%d, s%d, 0x%x" % (sA, sA, WS_O), "s_add_u32 s%d, s%d, 0x8000" % (sB, sA))
        g("s_waitcnt lgkmcnt(3)")
        for k in range(9):
            g("v_add_f32 v%d, v%d, v%d" % (O(0) + k, O(0) + k, T + k))
        g("s_waitcnt lgkmcnt(0)")
        for k in range(9):
            g("v_add_f32 v%d, v%d, v%d" % (O(1) + k, O(1) + k, T + 12 + k))
        g("v_subrev_u32 v10, 0x21800000, v%d" % (O(0) + 8), "v_subrev_u32 v11, 0x21800000, v%d" % (O(1) + 8), "v_max_u32 v10, v10, v11")
        g("v_cmp_lt_u32 vcc, 0x3c000000, v10", "s_nop 1", "s_and_b64 vcc, exec, vcc", "s_cbranch_vccnz L_at_slow")
        g.label("L_at_norm")
        g("v_rcp_f32 v10, v%d" % (O(0) + 8), "v_rcp_f32 v11, v%d" % (O(1) + 8), "s_nop 0")
        for i in range(2):
            for k in range(8):
                g("v_mul_f32 v%d, v%d, v%d" % (O(i) + k, O(i) + k, 10 + i))
            for k in range(4):
                g("v_cvt_pk_bf16_f32 v%d, v%d, v%d" % (T + 4 * i + k, O(i) + 2 * k, O(i) + 2 * k + 1))
            g("buffer_store_dwordx4 %s, v4, %s, s%d offen%s" % (vr(T + 4 * i, 4), sr(S_WS, 4), sA + i, cc))
        g("s_lshl_b32 s%d, s%d, 4" % (sA, sE), "s_add_u32 s%d, s%d, s%d" % (sA, sA, sHEAD), "s_lshl_b32 s%d, s%d, 2" % (sA, sA),
          "s_add_u32 s%d, s%d, 0x%x" % (sA, sA, F3))
        g.stamp(9)
        g("s_waitcnt vmcnt(0)")
        g.flag_store(sA, 2)

    def role_attn_slow(self):
        g = self
        O = lambda i: 128 + 16 * i
        Q = lambda i: 16 + 4 * i
        S0, P, KB0, V0, V1 = 32, 64, 72, 76, 80
        cc = g.cc
        g.label("L_at_slow")
        g("s_lshl_b32 s%d, s%d, 17" % (sC, sHEAD), "s_add_u32 s%d, s%d, 0x%x" % (sC, sC, WS_KV))
        g("s_add_u32 s%d, s22, s%d" % (S_KV, sC), "s_addc_u32 s%d, s23, 0" % (S_KV + 1), "s_mov_b32 s%d, 0x20000" % (S_KV + 2),
          "s_mov_b32 s%d, 0x20000" % (S_KV + 3))
        g("s_mov_b32 s%d, 0" % sCNT)
        g.label("L_sl_tile")
        g("v_mov_b32 v12, 0xff800000", "s_mov_b32 s%d, 0" % sD)
        g.label("L_sl_max")
        g("buffer_load_dwordx4 %s, v4, %s, s%d offen%s" % (vr(KB0, 4), sr(S_KV, 4), sD, cc), "s_waitcnt vmcnt(0)")
        g.mfma(S0, KB0, Q(0), 0)
        g("s_nop 11")
        for k in range(8):
            g("v_max3_f32 v12, v12, v%d, v%d" % (S0 + 2 * k, S0 + 2 * k + 1))
        g("s_add_u32 s%d, s%d, 0x800" % (sD, sD), "s_cmp_lt_u32 s%d, 0x20000" % sD, "s_cbranch_scc1 L_sl_max")
        g("v_mov_b32 v13, v12", "s_nop 1", "v_permlane32_swap_b32 v12, v13", "s_nop 1", "v_max_f32 v12, v12, v13")
        for k in range(16):
            g("v_mov_b32 v%d, 0" % (O(0) + k))
        g("s_mov_b32 s%d, 0" % sD)
        g.label("L_sl_acc")
        g("buffer_load_dwordx4 %s, v4, %s, s%d offen%s" % (vr(KB0, 4), sr(S_KV, 4), sD, cc))
        g("s_mov_b64 exec, %s" % sr(sMASK, 2))
        g("buffer_load_dwordx4 %s, v5, %s, s%d offen offset:1024%s" % (vr(V0, 4), sr(S_KV, 4), sD, cc))
        g("buffer_load_dwordx4 %s, v5, %s, s%d offen offset:1536%s" % (vr(V1, 4), sr(S_KV, 4), sD, cc))
        g("s_mov_b64 exec, -1", "s_waitcnt vmcnt(0)")
        g.mfma(S0, KB0, Q(0), 0)
        g("s_nop 11")
        for k in range(16):
            g("v_sub_f32 v%d, v%d, v12" % (S0 + k, S0 + k))
        for k in range(16):
            g("v_exp_f32 v%d, v%d" % (S0 + k, S0 + k))
        g("s_nop 0")
        for k in range(8):
            g("v_cvt_pk_bf16_f32 v%d, v%d, v%d" % (P + k, S0 + 2 * k, S0 + 2 * k + 1))
        g("s_nop 1")
        g.mfma(O(0), V0, P)
        g.mfma(O(0), V1, P + 4)
        g("s_add_u32 s%d, s%d, 0x800" % (sD, sD), "s_cmp_lt_u32 s%d, 0x20000" % sD, "s_cbranch_scc1 L_sl_acc")
        g("s_nop 11")
        g("s_cmp_eq_u32 s%d, 1" % sCNT, "s_cbranch_scc1 L_sl_done")
        for k in range(9):
            g("v_mov_b32 v%d, v%d" % (O(2) + k, O(0) + k))
        for k in range(4):
            g("v_mov_b32 v%d, v%d" % (Q(0) + k, Q(1) + k))
        g("s_mov_b32 s%d, 1" % sCNT, "s_branch L_sl_tile")
        g.label("L_sl_done")
        for k in range(9):
            g("v_mov_b32 v%d, v%d" % (O(1) + k, O(0) + k), "v_mov_b32 v%d, v%d" % (O(0) + k, O(2) + k))
        g("s_branch L_at_norm")

    def attn_wait_inputs(self):
        g = self
        g("v_lshlrev_b32 v6, 2, v0", "s_lshr_b32 s%d, s%d, 1" % (sC, sHEAD), "s_lshl_b32 s%d, s%d, 8" % (sC, sC))
        g.stamp(4)
        g.poll("qkv", 6, sC, 7, 1)

    def attn_pair_sync(self):
        g = self
        g("s_xor_b32 s%d, s%d, 2" % (sA, sW), "s_lshl_b32 s%d, s%d, 2" % (sA, sA), "s_add_u32 s%d, s%d, 0x%x" % (sA, sA, L_FLAG), "v_mov_b32 v10, s%d" % sA,
          "s_xor_b32 s%d, s%d, 8" % (sA, sA), "v_mov_b32 v11, s%d" % sA, "v_mov_b32 v12, 1", "ds_write_b32 v10, v12", "s_mov_b32 s3, 0")
        g.label("L_pair")
        g("ds_read_b32 v12, v11", "s_add_u32 s3, s3, 1", "s_waitcnt lgkmcnt(0)", "v_cmp_ne_u32 vcc, 1, v12", "s_cmp_gt_u32 s3, 0x%x" % (POLL_LIMIT * 8),
          "s_cbranch_vccz L_paird", "s_cbranch_scc0 L_pair")
        g.label("L_paird")
        g.stamp(8)

    def down_wait_h(self):
        g = self
        g("s_cmp_eq_u32 s%d, 7" % sCB, "s_cbranch_scc1 L_dn_noflag")
        g("s_lshl_b32 s%d, s%d, 3" % (sA, sRB), "s_add_u32 s%d, s%d, s%d" % (sA, sA, sCB), "s_lshl_b32 s%d, s%d, 2" % (sA, sA),
          "s_add_u32 s%d, s%d, s%d" % (sA, sA, sW), "s_lshl_b32 s%d, s%d, 2" % (sA, sA), "s_add_u32 s%d, s%d, 0x%x" % (sA, sA, F2))
        g("s_waitcnt vmcnt(18)")
        g.flag_store(sA, 2)
        g.label("L_dn_noflag")
        g("v_min_u32 v2, 27, v0", "v_lshlrev_b32 v2, 2, v2", "s_lshl_b32 s%d, s%d, 7" % (sA, sRB2), "s_add_u32 s%d, s%d, 0x%x" % (sA, sA, F2))
        g.poll("h", 2, sA, 3, 4)

    def down_wait_o(self):
        g = self
        g("v_and_b32 v2, 7, v0", "v_lshlrev_b32 v2, 2, v2", "s_lshl_b32 s%d, s%d, 2" % (sA, sRB2), "s_add_u32 s%d, s%d, s%d" % (sA, sA, sW),
          "s_lshl_b32 s%d, s%d, 5" % (sA, sA), "s_add_u32 s%d, s%d, 0x%x" % (sA, sA, F3))
        g.poll("o", 2, sA, 3, 2)
        g.stamp(10)

    def role_down(self):
        g = self
        ACC = lambda ln, lt: 128 + 16 * (ln + 2 * lt)
        HB = lambda slot, lt: 32 + 8 * slot + 4 * lt
        AB = (16, 24)
        vH = (4, 5)
        vT = (6, 7)
        vD = (8, 9)
        vX = 10
        cc = g.cc
        R = 7
        g("v_lshrrev_b32 v2, 3, v0", "v_lshrrev_b32 v3, 2, v0", "v_and_b32 v3, 4, v3", "v_xor_b32 v3, v3, v0", "v_and_b32 v3, 7, v3")
        g("v_lshlrev_b32 v2, 10, v2", "v_lshl_add_u32 v2, v3, 4, v2", "s_lshl_b32 s%d, s%d, 7" % (sA, sCB2),
          "v_add_u32 v8, s%d, v2" % sA, "v_add_u32 v9, 0x1c00, v8")
        g("s_lshl_b32 s%d, s%d, 14" % (sC, sW), "s_add_u32 s%d, s%d, 0x%x" % (sC, sC, g.o["l_ring"]))
        g("s_mul_i32 s%d, s%d, 0x%x" % (sD, sW, 28 * 16384))
        g("s_lshr_b32 s%d, s%d, 1" % (sA, sW), "s_mul_i32 s%d, s%d, 0x%x" % (sB, sA, 112 * 1024), "v_lshlrev_b32 v1, 4, v0",
          "v_add_u32 v4, s%d, v1" % sB, "s_xor_b32 s%d, s%d, 0x%x" % (sB, sB, 112 * 1024), "v_add_u32 v5, s%d, v1" % sB)
        g("s_mul_i32 s%d, s%d, 0x%x" % (sE, sRB2, 224 * 1024), "s_mul_i32 s%d, s%d, 0x%x" % (sB, sW, 28 * 1024),
          "s_add_u32 s%d, s%d, s%d" % (sE, sE, sB), "s_add_u32 s%d, s%d, 0x%x" % (sE, sE, WS_H))

        def wdma(slot, srd, soff, inc):
            return ["s_add_u32 m0, s%d, 0x%x" % (sC, slot * 2048), "s_nop 0",
                    "buffer_load_dwordx4 v8, %s, s%d offen lds" % (sr(srd, 4), soff),
                    "buffer_load_dwordx4 v9, %s, s%d offen offset:1024 lds" % (sr(srd, 4), soff),
                    "s_add_u32 s%d, s%d, 0x%x" % (soff, soff, inc)]

        def hload(slot):
            return ["buffer_load_dwordx4 %s, v4, %s, s%d offen%s" % (vr(HB(slot, 0), 4), sr(S_WS, 4), sE, cc),
                    "buffer_load_dwordx4 %s, v5, %s, s%d offen%s" % (vr(HB(slot, 1), 4), sr(S_WS, 4), sE, cc),
                    "s_add_u32 s%d, s%d, 0x400" % (sE, sE)]
        g("v_and_b32 v2, 31, v0", "v_lshrrev_b32 v3, 5, v0", "v_lshlrev_b32 v2, 10, v2")
        g("s_lshl_b32 s%d, s%d, 1" % (sB, sRB2), "s_add_u32 s%d, s%d, s%d" % (sB, sB, sA), "s_lshl_b32 s%d, s%d, 15" % (sB, sB))
        g("s_lshl_b32 s%d, s%d, 1" % (sF, sCB2), "s_and_b32 s%d, s%d, 1" % (sA, sW), "s_add_u32 s%d, s%d, s%d" % (sF, sF, sA),
          "s_lshl_b32 s%d, s%d, 6" % (sF, sF), "s_add_u32 s%d, s%d, s%d" % (sOUT, sB, sF))
        g("v_lshl_add_u32 v10, v3, 3, v2", "v_lshl_add_u32 v11, v3, 4, v2")
        for i in range(4):
            g("buffer_load_dwordx2 %s, v10, %s, s%d offen offset:%d" % (vr(96 + 2 * i, 2), sr(S_X, 4), sOUT, 16 * i))
        g("v_bfe_u32 v2, v0, 2, 2", "v_lshl_add_u32 v3, v3, 2, v2", "v_lshlrev_b32 v3, 7, v3")
        g("v_bfe_u32 v12, v0, 4, 1", "v_lshl_add_u32 v3, v12, 5, v3", "v_and_b32 v12, 3, v0", "v_lshl_add_u32 v3, v12, 3, v3")
        g("v_add_u32 v3, s%d, v3" % sC, "v_lshrrev_b32 v2, 1, v2", "v_xor_b32 v2, s%d, v2" % sA)
        g("v_lshl_add_u32 v6, v2, 6, v3", "v_xor_b32 v2, 1, v2", "v_lshl_add_u32 v7, v2, 6, v3")
        for s in range(R):
            g(*wdma(s, S_WD, sD, 16384))
        self.down_wait_h()
        for s in range(R):
            g(*hload(s))
        g("s_waitcnt vmcnt(28)")
        g("s_mov_b32 s%d, 0xffff0000" % sA)
        for k in range(8):
            g("v_lshlrev_b32 v%d, 16, v%d" % (ACC(0, 0) + 2 * k, 96 + k), "v_and_b32 v%d, s%d, v%d" % (ACC(0, 0) + 2 * k + 1, sA, 96 + k))

        def treads(slot, b):
            return ["ds_read_b64_tr_b16 %s, v%d offset:%d" % (vr(AB[b] + 4 * ln + 2 * p, 2), vT[ln], slot * 2048 + p * 1024)
                    for ln in range(2) for p in range(2)]

        def mms(hslot, b, first=False):
            return [(ACC(ln, lt), AB[b] + 4 * ln, HB(hslot, lt), (0 if first and (ln or lt) else None)) for ln in range(2) for lt in range(2)]
        g("s_waitcnt vmcnt(14)")
        g.stamp(8)
        g(*treads(0, 0))
        def step(u, par, vmwait, refill, first=False, nxt=True):
            M = mms(u, par, first)
            if vmwait is not None:
                g("s_waitcnt vmcnt(%d) lgkmcnt(0)" % vmwait)
            else:
                g("s_waitcnt lgkmcnt(0)")
            Rd = treads(nxt, par ^ 1) if nxt is not None else []
            g.mfma(*M[0])
            g(*Rd[:2])
            g.mfma(*M[1])
            g(*Rd[2:])
            g.mfma(*M[2])
            g(*refill[:len(refill) // 2])
            g.mfma(*M[3])
            g(*refill[len(refill) // 2:])
        for s in range(R):
            need_h = 2 * (R - 1 - s) + 4 * s
            if s == R - 1:
                need_h = min(need_h, 4 * (R - 2) + 2)
            ref = wdma(s, S_WD, sD, 16384)[:] + hload(s)
            step(s, s & 1, need_h, ref, first=(s == 0), nxt=(s + 1) % R)
        for it in range(2):
            for s in range(R):
                gs = R * (it + 1) + s
                ref = wdma(s, S_WD, sD, 16384) + hload(s)
                step(s, gs & 1, 4 * (R - 2) + 2, ref, nxt=(s + 1) % R)
        g("s_lshl_b32 s%d, s%d, 17" % (sF, sW))
        for s in range(R):
            gs = 3 * R + s
            if s < R - 1:
                vm = 2 + 4 * (R - 2 - s) + 2 * s
                nxt = s + 1
            else:
                vm = 2 * (R - 1) - 2 if False else 2 * s
                nxt = None
            ref = wdma(s, S_WO, sF, 16384)
            step(s, gs & 1, vm, ref, nxt=nxt)
        g.stamp(9)
        g(*wdma(7, S_WO, sF, 16384))
        g("s_lshl_b32 s%d, s%d, 16" % (sE, sRB2), "s_lshl_b32 s%d, s%d, 13" % (sB, sW), "s_add_u32 s%d, s%d, s%d" % (sE, sE, sB),
          "s_add_u32 s%d, s%d, 0x%x" % (sE, sE, WS_O), "s_add_u32 s%d, s%d, 0x1000" % (sB, sE))
        g("s_lshr_b32 s%d, s%d, 1" % (sA, sW), "s_lshl_b32 s%d, s%d, 15" % (sA, sA), "v_add_u32 v4, s%d, v1" % sA,
          "s_xor_b32 s%d, s%d, 0x8000" % (sA, sA), "v_add_u32 v5, s%d, v1" % sA)
        self.down_wait_o()
        for s in range(8):
            for lt in range(2):
                g("buffer_load_dwordx4 %s, v%d, %s, s%d offen offset:%d%s" % (vr(HB(s, lt), 4), vH[lt], sr(S_WS, 4), sE if s < 4 else sB, (s & 3) * 1024, cc))
        g("s_waitcnt vmcnt(16)")
        g(*treads(0, 0))
        for s in range(8):
            step(s, s & 1, 14 - 2 * s, [], nxt=(s + 1 if s < 7 else None))
        g("v_add_u32 v2, s%d, v1" % sC)
        for k in range(1, 4):
            g("s_xor_b32 s%d, s%d, %d" % (sA, sW, k), "s_lshl_b32 s%d, s%d, 14" % (sA, sA), "s_add_u32 s%d, s%d, 0x%x" % (sA, sA, g.o["l_ring"]),
              "v_add_u32 v%d, s%d, v1" % (12 + k, sA))
        for k in (2, 1, 3):
            a = ACC(k & 1, k >> 1)
            if k == 3:
                g("s_nop 1")
            for i in range(4):
                g("ds_write_b128 v2, %s offset:%d" % (vr(a + 4 * i, 4), (k - 1) * 4096 + i * 1024))
        g("s_waitcnt lgkmcnt(0)", "s_barrier")
        for k in range(1, 4):
            for i in range(4):
                g("ds_read_b128 %s, v%d offset:%d" % (vr(32 + 16 * (k - 1) + 4 * i, 4), 12 + k, (k - 1) * 4096 + i * 1024))
        a = ACC(0, 0)
        for k in range(1, 4):
            g("s_waitcnt lgkmcnt(%d)" % (4 * (3 - k)))
            for i in range(16):
                g("v_add_f32 v%d, v%d, v%d" % (a + i, a + i, 32 + 16 * (k - 1) + i))
        for k in range(8):
            g("v_cvt_pk_bf16_f32 v%d, v%d, v%d" % (16 + k, a + 2 * k, a + 2 * k + 1))
        g("s_nop 0")
        g("v_permlane32_swap_b32 v16, v18", "v_permlane32_swap_b32 v17, v19", "v_permlane32_swap_b32 v20, v22", "v_permlane32_swap_b32 v21, v23")
        g("buffer_store_dwordx4 v[16:19], v11, %s, s%d offen" % (sr(S_OUT, 4), sOUT), "buffer_store_dwordx4 v[20:23], v11, %s, s%d offen offset:32" % (sr(S_OUT, 4), sOUT))
        g("s_lshl_b32 s3, s2, 2", "s_add_u32 s3, s3, s%d" % sW, "s_cmp_lg_u32 s3, 0", "s_cbranch_scc1 L_dn_end", "s_mov_b32 s%d, 0x%x" % (sA, F_EPOCH))
        g.flag_store(sA, 2)
        g.label("L_dn_end")


def probe_kernel(g, a, b, mult):
    kernel_head(g, "kp_kernel")
    g("s_cmp_ge_u32 s2, 1", "s_cbranch_scc1 L_kp_end")
    g("s_load_dwordx2 s[22:23], s[0:1], 72", "s_memrealtime s[30:31]", "s_waitcnt lgkmcnt(0)")
    g.srd(S_WS, 22, WS_SIZE)
    g("v_lshlrev_b32 v1, 9, v0")
    for n, (k, w, sl, op) in enumerate((a, b)):
        for q in range(4):
            g("s_mov_b32 s3, 0x%x" % (WS_FLAG + 65536 + k * 131072 + w * 64 + sl * 4 + q * 32768))
            g("buffer_load_dword v%d, v1, %s, s3 offen" % (4 + q, sr(S_WS, 4)))
        g("s_waitcnt vmcnt(0)")
        if op == "min":
            for q in range(4):
                g("v_subrev_u32 v%d, 1, v%d" % (4 + q, 4 + q))
        g("v_%s_u32 v4, v4, v5" % op, "v_%s_u32 v6, v6, v7" % op, "v_%s_u32 v4, v4, v6" % op, "s_nop 1")
        g("v_readlane_b32 s%d, v4, 0" % (40 + n))
        for l in range(1, 64):
            g("v_readlane_b32 s35, v4, %d" % l, "s_nop 0", "s_%s_u32 s%d, s%d, s35" % (op, 40 + n, 40 + n))
    g("s_sub_u32 s42, s41, s40", "s_mul_i32 s42, s42, %d" % mult, "s_min_u32 s42, s42, 100000")
    g.label("L_kp_spin")
    g("s_memrealtime s[32:33]", "s_waitcnt lgkmcnt(0)", "s_sub_u32 s34, s32, s30", "s_cmp_lt_u32 s34, s42", "s_cbranch_scc1 L_kp_spin")
    g.label("L_kp_end")
    g("s_endpgm")


HEADER = """; Kernarg layout (80 bytes, pointers only):
"""


def kd(name, vgpr=256, sgpr=102):
    return """.amdhsa_kernel %s
  .amdhsa_next_free_vgpr %d
  .amdhsa_next_free_sgpr %d
  .amdhsa_accum_offset %d
  .amdhsa_group_segment_fixed_size 0
  .amdhsa_kernarg_size 80
  .amdhsa_user_sgpr_count 2
  .amdhsa_user_sgpr_kernarg_segment_ptr 1
  .amdhsa_system_sgpr_workgroup_id_x 1
.end_amdhsa_kernel
""" % (name, vgpr, sgpr, (vgpr + 3) // 4 * 4)


def kernel_head(g, name):
    g(".globl %s" % name, ".p2align 8", ".type %s,@function" % name)
    g.label(name)


DEFAULT = dict(l_att=L_ATT, l_ring=L_RING, sc1=1, lognc=1, stamps=0,
               order="A e0 e1 e2 B e3 e4 e5 | S c0 c1 e6 x0 e7 e8 x1 c2 c3 x2 e9 e10 e11 c4 x3 e12 e13 c5 e14 e15 c6 c7")


def build(opts, probe=None):
    o = dict(DEFAULT)
    o.update(opts)
    K = NAME + "_kernel"
    out = HEADER
    if probe:
        out += "; @launch kernel=%s grid=(256,1,1) block=(512,1,1) lds=163840\n; @launch kernel=kp_kernel grid=(256,1,1) block=(64,1,1) lds=0\n" % K
    else:
        out += "; @launch grid=(256,1,1) block=(512,1,1) lds=163840\n"
    out += '.amdgcn_target "amdgcn-amd-amdhsa--gfx950"\n.text\n'
    g = G(o)
    kernel_head(g, K)
    g.prologue("L_end", "L_gemm")
    g.role_ln()
    g.role_attn()
    g.stamp_dump(0)
    g.label("L_end")
    g("s_endpgm")
    g.role_attn_slow()
    g(".p2align 6")
    g.label("L_gemm")
    g.role_qkv()
    g.role_gu("L_down")
    g.label("L_down")
    g.role_down()
    g.stamp_dump(0)
    g("s_endpgm")
    names = [K]
    if probe:
        probe_kernel(g, *probe)
        names.append("kp_kernel")
    body = "\n".join(("" if l.endswith(":") or l.startswith(".") else "  ") + l for l in g.L)
    out += body + "\n" + '.section .rodata,"a"\n'
    for n in names:
        out += ".p2align 6\n" + kd(n)
    return out, names


if __name__ == "__main__":
    dst = sys.argv[1]
    opts = eval("dict(%s)" % sys.argv[2]) if len(sys.argv) > 2 else {}
    probe = opts.pop("probe", None)
    asm, names = build(opts, probe)
    errs = check.check(asm, names)
    for e in errs:
        print(e)
    print("%s: %d checker problems, %d lines" % (dst, len(errs), asm.count("\n")))
    open(dst, "w").write(asm)
```

```python
import sys, os, math, struct
sys.path.insert(0, os.path.dirname(os.path.abspath(__file__)))
import check

NAME = "parallel_sum__softmax_full_mha__glu_gated_reglu__prompt"

F_EPOCH = 0
F1 = 0x40000
F2 = 0x60000
F3 = 0x80000
WS_STAMP = 0x10000
WS_Q = 1 << 20
WS_KV = 3 << 20
WS_O = 7 << 20
WS_H = 9 << 20
WS_SIZE = 17 << 20

L_W = 65536
L_FLAG = 65536
L_RING = 65536 + 256
L_ATT = 139264

S_X, S_WQ, S_WG, S_WU, S_WD, S_WO, S_OUT, S_WS, S_KV = 24, 28, 32, 36, 40, 44, 48, 52, 56
sW = 60
sRB, sCB, sHEAD, sQB, sRB2, sCB2, sCNT = 61, 62, 63, 64, 65, 66, 67
sA, sB, sC, sD, sE, sF = 68, 69, 70, 71, 72, 73
sOUT, sEP = 74, 75
sMASK = 76
gQ0, gQ1, gK0, gK1, gF1, gH0, gH1, gRING, gF2, gP2, gP3, gHL, gWD, gTT = 4, 5, 6, 7, 8, 12, 13, 14, 15, 16, 17, 18, 19, 20
gHL0, gWD0, gROT2 = 56, 57, 58
sROT = 21
vEP, vZ = 110, 111
aQ0, aQ1, aO0, aO1, aF3, aP1 = 4, 5, 6, 7, 8, 9
POLL_LIMIT = 0x40000


def f2u(x):
    return struct.unpack("<I", struct.pack("<f", x))[0]


def vr(b, n=1):
    return "v%d" % b if n == 1 else "v[%d:%d]" % (b, b + n - 1)


def sr(b, n=1):
    return "s%d" % b if n == 1 else "s[%d:%d]" % (b, b + n - 1)


class G:
    def __init__(self, opts):
        self.L = []
        self.o = opts
        self.cc = " sc1"
        self.lc = opts.get("ldmod", " sc1")
        self.fs = opts["logfs"]

    def __call__(self, *lines):
        for l in lines:
            self.L.extend(l.split("\n"))

    def s(self, fmt, *a):
        self(fmt % a)

    def label(self, n):
        self.L.append(n + ":")

    def mfma(self, d, a, b, c=None):
        cs = "0" if c == 0 else vr(d, 16)
        self("v_mfma_f32_32x32x16_bf16 %s, %s, %s, %s" % (vr(d, 16), vr(a, 4), vr(b, 4), cs))

    def srd(self, s, ptr, nbytes):
        self("s_mov_b32 s%d, s%d" % (s, ptr), "s_mov_b32 s%d, s%d" % (s + 1, ptr + 1),
             "s_mov_b32 s%d, 0x%x" % (s + 2, nbytes), "s_mov_b32 s%d, 0x20000" % (s + 3))

    def shladd(self, d, a, k, b):
        if isinstance(b, str):
            self("s_lshl_b32 s%d, s%d, %d" % (d, a, k), "s_add_u32 s%d, s%d, %s" % (d, d, b))
        elif d != b and 1 <= k <= 4:
            self("s_lshl%d_add_u32 s%d, s%d, s%d" % (k, d, a, b))
        elif 1 <= k <= 4:
            self("s_lshl%d_add_u32 s%d, s%d, s%d" % (k, d, a, b))
        else:
            assert d != b
            self("s_lshl_b32 s%d, s%d, %d" % (d, a, k), "s_add_u32 s%d, s%d, s%d" % (d, d, b))

    def stamp(self, slot, grp="main"):
        if self.o.get("stamps") and (slot in (0, 11) or grp == self.o.get("diag", "main")):
            self("%s s[%d:%d]" % ("s_memtime" if self.o.get("stamps") == 2 else "s_memrealtime", 78 + 2 * slot, 79 + 2 * slot))

    def stamp_init(self):
        if self.o.get("stamps"):
            for k in range(1, 12):
                self("s_mov_b32 s%d, 0" % (78 + 2 * k))

    def stamp_dump(self):
        if not self.o.get("stamps"):
            return
        g = self
        g("s_waitcnt vmcnt(0)")
        g.stamp(11)
        g("s_lshl_b32 s3, s2, 3", "s_add_u32 s3, s3, s11", "s_lshl_b32 s3, s3, 6",
          "s_add_u32 s3, s3, 0x%x" % WS_STAMP, "s_waitcnt lgkmcnt(0)", "v_mov_b32 v1, 0", "s_mov_b64 exec, 1")
        for k in range(12):
            g("v_mov_b32 v2, s%d" % (78 + 2 * k), "buffer_store_dword v2, v1, %s, s3 offen offset:%d" % (sr(S_WS, 4), 4 * k))

    def prologue(self, end, gemm):
        g = self
        g.stamp(0)
        g("s_cmp_ge_u32 s2, 0x100", "s_cbranch_scc1 %s" % end)
        g("s_load_dwordx4 s[4:7], s[0:1], 0", "s_load_dwordx2 s[22:23], s[0:1], 72", "s_load_dwordx2 s[8:9], s[0:1], 16",
          "s_load_dwordx8 s[12:19], s[0:1], 32")
        g.stamp_init()
        g("v_lshrrev_b32 v1, 6, v0", "v_and_b32 v0, 63, v0")
        g("s_and_b32 s3, s2, 7", "s_lshr_b32 s10, s2, 3")
        g("v_readfirstlane_b32 s11, v1")
        lc = g.o["lognc"]
        g("s_and_b32 s%d, s3, %d" % (sCB, (8 >> lc) - 1), "s_lshl_b32 s%d, s%d, %d" % (sCB, sCB, lc), "s_and_b32 s%d, s10, %d" % (sA, (1 << lc) - 1),
          "s_or_b32 s%d, s%d, s%d" % (sCB, sCB, sA))
        g("s_lshr_b32 s%d, s3, %d" % (sRB, 3 - lc), "s_lshl_b32 s%d, s%d, %d" % (sRB, sRB, 5 - lc), "s_lshr_b32 s%d, s10, %d" % (sA, lc),
          "s_or_b32 s%d, s%d, s%d" % (sRB, sRB, sA))
        if g.o["rot"]:
            g("s_and_b32 s%d, s10, %d" % (sROT, (1 << lc) - 1), "s_lshl_b32 s%d, s%d, %d" % (sROT, sROT, 3 - lc), "s_add_u32 s%d, s%d, s%d" % (sROT, sROT, sA),
              "s_and_b32 s%d, s%d, 7" % (sROT, sROT))
        else:
            g("s_mov_b32 s%d, 0" % sROT)
        if g.o["codepf"]:
            g("s_getpc_b64 s[56:57]")
            g.label("L_pc")
            g("s_mov_b32 s58, L_code_end-L_pc", "s_mov_b32 s59, 0x20000", "s_lshl3_add_u32 s%d, s10, s11" % sB, "s_lshl_b32 s%d, s%d, 7" % (sB, sB))
            g("buffer_load_dword v255, off, s[56:59], s%d" % sB)
        g("s_and_b32 s%d, s11, 3" % sW)
        g("s_cmp_ge_u32 s11, 4", "s_cbranch_scc1 %s" % gemm)

    def epoch_load(self):
        self("s_load_dword s%d, s[22:23], 0x%x" % (sEP, F_EPOCH))

    def epoch_make(self):
        self("s_mul_i32 s%d, s%d, 0x19660d" % (sEP, sEP), "s_add_u32 s%d, s%d, 0x3c6ef35f" % (sEP, sEP))

    def flag_regs(self, ve, vz):
        self("v_mov_b32 v%d, s%d" % (ve, sEP), "v_mov_b32 v%d, 0" % vz)

    def flag_store(self, soff, ve=vEP, vz=vZ):
        self("s_mov_b64 exec, 1", "buffer_store_dword v%d, v%d, %s, s%d offen sc1" % (ve, vz, sr(S_WS, 4), soff), "s_mov_b64 exec, -1")

    def poll(self, name, voff, soff, vtmp, sleep):
        g = self
        g("s_mov_b32 s3, 0")
        g.label("L_poll_" + name)
        g("buffer_load_dword v%d, v%d, %s, s%d offen sc1" % (vtmp, voff, sr(S_WS, 4), soff), "s_add_u32 s3, s3, 1", "s_waitcnt vmcnt(0)")
        g("v_cmp_ne_u32 vcc, s%d, v%d" % (sEP, vtmp), "s_cmp_gt_u32 s3, 0x%x" % POLL_LIMIT, "s_cbranch_vccz L_polld_" + name)
        g("s_cbranch_scc1 L_polld_" + name)
        if sleep:
            g("s_sleep %d" % sleep)
        g("s_branch L_poll_" + name)
        g.label("L_polld_" + name)

    def role_ln(self):
        g = self
        X = lambda e, i: 16 + 32 * e + 4 * i
        SUM, SQ = (6, 8), (7, 9)
        RI, NB = (10, 12), (11, 13)
        T = 80
        lc = g.o["lognc"]
        g("v_lshrrev_b32 v2, 3, v0", "v_and_b32 v3, 7, v0")
        g("v_lshlrev_b32 v4, 10, v2", "v_lshl_add_u32 v4, v3, 4, v4")
        g.shladd(sA, sRB, 2, sW)
        g("s_lshl_b32 s%d, s%d, 14" % (sA, sA), "s_lshl_b32 s%d, s%d, 7" % (sB, sROT), "s_add_u32 s%d, s%d, s%d" % (sA, sA, sB), "v_add_u32 v14, 0x2000, v4")
        for i in range(8):
            g("s_xor_b32 s%d, s%d, 0x%x" % (28 + i, sA, 128 * i))
        g("s_waitcnt lgkmcnt(0)")
        g.srd(S_X, 4, 2048 * 1024)
        g.stamp(1)
        for i in range(8):
            for e in range(2):
                g("buffer_load_dwordx4 %s, v%d, %s, s%d offen" % (vr(X(e, i), 4), (4, 14)[e], sr(S_X, 4), 28 + i))
        g.stamp(1, "ln")
        if g.o["barP"]:
            g("s_barrier")
        g.epoch_load()
        g.srd(S_WS, 22, WS_SIZE)
        g("s_and_b32 s%d, s10, 3" % sA)
        g.shladd(sHEAD, 3, 2, sA)
        g("s_lshr_b32 s%d, s10, 2" % sQB)
        g("v_xor_b32 v5, v2, v3", "v_lshlrev_b32 v5, 4, v5", "v_lshl_add_u32 v5, v3, 9, v5")
        g("s_lshr_b32 s%d, s%d, 1" % (sC, sW), "s_lshl_b32 s%d, s%d, 15" % (sC, sC),
          "s_and_b32 s%d, s%d, 1" % (sD, sW), "s_lshl_b32 s%d, s%d, 8" % (sD, sD), "s_add_u32 s%d, s%d, s%d" % (sC, sC, sD))
        g("v_add_u32 v5, s%d, v5" % sC)
        g("s_mov_b32 s%d, 0x3f803f80" % sC, "s_mov_b32 s%d, 0xffff0000" % sD)
        for r in (6, 7, 8, 9):
            g("v_mov_b32 v%d, 0" % r)
        for i in range(8):
            for e in range(2):
                g("s_waitcnt vmcnt(%d)" % (15 - 2 * i - e))
                if e == 0 and i in (0, 4):
                    g.stamp(2 + i // 4, "ln")
                for k in range(4):
                    x = X(e, i) + k
                    g("v_dot2c_f32_bf16 v%d, s%d, v%d" % (SUM[e], sC, x), "v_dot2c_f32_bf16 v%d, v%d, v%d" % (SQ[e], x, x))
        g.stamp(2)
        g.stamp(4, "ln")
        g("s_nop 0")
        for dpp in ("quad_perm:[1,0,3,2]", "quad_perm:[2,3,0,1]", "row_half_mirror"):
            for r in (6, 7, 8, 9):
                g("v_add_f32_dpp v%d, v%d, v%d %s row_mask:0xf bank_mask:0xf" % (r, r, r, dpp))
        inv = "0x%x" % f2u(1.0 / 512)
        eps = "0x%x" % f2u(1e-5)
        for e in range(2):
            g("v_mul_f32 v%d, %s, v%d" % (SUM[e], inv, SUM[e]), "v_mul_f32 v%d, %s, v%d" % (SQ[e], inv, SQ[e]))
        for e in range(2):
            g("v_fma_f32 v%d, -v%d, v%d, v%d" % (SQ[e], SUM[e], SUM[e], SQ[e]))
        for e in range(2):
            g("v_max_f32 v%d, 0, v%d" % (SQ[e], SQ[e]))
        for e in range(2):
            g("v_cvt_pk_bf16_f32 v%d, v%d, v%d" % (SQ[e], SUM[e], SQ[e]))
        for e in range(2):
            g("v_lshlrev_b32 v%d, 16, v%d" % (SUM[e], SQ[e]), "v_and_b32 v%d, s%d, v%d" % (SQ[e], sD, SQ[e]))
        for e in range(2):
            g("v_add_f32 v%d, %s, v%d" % (SQ[e], eps, SQ[e]))
        g("v_cvt_pk_bf16_f32 v7, v7, v9", "v_and_b32 v9, s%d, v7" % sD, "v_lshlrev_b32 v7, 16, v7")
        g("v_sqrt_f32 v7, v7", "v_sqrt_f32 v9, v9", "s_nop 0")
        g("v_cvt_pk_bf16_f32 v7, v7, v9", "v_and_b32 v9, s%d, v7" % sD, "v_lshlrev_b32 v7, 16, v7")
        g("v_rcp_f32 v%d, v7" % RI[0], "v_rcp_f32 v%d, v9" % RI[1], "s_nop 0")
        for e in range(2):
            g("v_mul_f32 v%d, v%d, v%d" % (NB[e], SUM[e], RI[e]))
        g.stamp(5, "ln")

        def chunk(i, pk):
            for e in range(2):
                x = X(e, i)
                for k in range(4):
                    g("v_lshlrev_b32 v%d, 16, v%d" % (T + 2 * k, x + k), "v_and_b32 v%d, s%d, v%d" % (T + 2 * k + 1, sD, x + k))
                for k in range(4):
                    t = T + 2 * k
                    if pk:
                        g("v_pk_fma_f32 %s, %s, %s, %s op_sel:[0,0,1] op_sel_hi:[1,0,1] neg_lo:[0,0,1] neg_hi:[0,0,1]" % (vr(t, 2), vr(t, 2), vr(RI[e], 2), vr(RI[e], 2)))
                    else:
                        g("v_fma_f32 v%d, v%d, v%d, -v%d" % (t, t, RI[e], NB[e]), "v_fma_f32 v%d, v%d, v%d, -v%d" % (t + 1, t + 1, RI[e], NB[e]))
                for k in range(4):
                    g("v_cvt_pk_bf16_f32 v%d, v%d, v%d" % (x + k, T + 2 * k, T + 2 * k + 1))
                g("ds_write_b128 v5, %s offset:%d" % (vr(x, 4), i * 4096 + e * 128))
        sched = g.o["lnsched"]
        done = 0
        for i in range(8):
            for _ in range(sched[i]):
                chunk(done, g.o["lnpk"] == 2 or (g.o["lnpk"] == 1 and i == 0))
                done += 1
                if done % 2 == 0:
                    g.stamp(5 + done // 2, "ln")
            assert done > i
            if i == 7:
                g.shladd(sA, sW, 2, "0x%x" % L_FLAG)
                g("v_mov_b32 v14, s%d" % sA, "v_mov_b32 v15, 0", "ds_write_b32 v14, v15")
            if sched[i] or i == 7:
                g("s_waitcnt lgkmcnt(0)")
            if i == 0:
                g.stamp(3)
            g.stamp(i + 1, "qkv")
            g("s_barrier")
            if i == 0:
                g.epoch_make()
            if g.o["warm_gu"] and i == g.o["warm_gu"]:
                rows = 4 << lc
                g.srd(S_WG, 12, 512 * 3584)
                g.srd(S_WU, 14, 512 * 3584)
                g("s_lshr_b32 s%d, s10, %d" % (sA, lc))
                g.shladd(sA, sA, 2, sW)
                g("s_mul_i32 s%d, s%d, 0x%x" % (sA, sA, rows * 3584), "s_lshl_b32 s%d, s%d, 9" % (sB, sCB), "s_add_u32 s%d, s%d, s%d" % (sE, sA, sB))
                g("v_lshrrev_b32 v14, 2, v0", "v_and_b32 v14, %d, v14" % (min(rows, 16) - 1), "v_mul_u32_u24 v14, 0xe00, v14", "v_and_b32 v15, 3, v0",
                  "v_lshl_add_u32 v14, v15, 7, v14")
                g("s_cmp_eq_u32 s%d, 7" % sCB, "s_cbranch_scc1 L_ln_nowarm")
                for rep in range(max(1, rows // 16)):
                    if rep:
                        g("s_add_u32 s%d, s%d, 0x%x" % (sE, sE, 16 * 3584))
                    g("buffer_load_dword v12, v14, %s, s%d offen" % (sr(S_WG, 4), sE), "buffer_load_dword v13, v14, %s, s%d offen" % (sr(S_WU, 4), sE))
                g.label("L_ln_nowarm")
        assert done == 8

    def role_attn(self):
        g = self
        O = lambda i: 128 + 16 * i
        Q = lambda i: 16 + 4 * i
        S = (32, 48)
        P = 64
        KB = lambda b: (72 + 12 * b) if b < 4 else (192 + 12 * (b - 4))
        VB = lambda b, t: KB(b) + 4 + 4 * t
        cc = g.cc
        fs = g.fs
        g("v_lshlrev_b32 v4, 4, v0")
        g("v_lshrrev_b32 v1, 5, v0", "v_and_b32 v2, 15, v0", "v_lshlrev_b32 v2, 4, v2", "v_lshl_add_u32 v5, v1, 8, v2")
        g("s_and_b32 s%d, s%d, 1" % (sA, sW), "s_lshr_b32 s%d, s%d, 1" % (sB, sW))
        g.shladd(sC, sQB, 1, sA)
        g("s_lshl_b32 s%d, s%d, 2" % (sC, sC), "s_lshl_b32 s%d, s%d, 6" % (sD, sHEAD))
        g("s_lshl_b32 s%d, s%d, 5" % (sA, sB), "s_add_u32 s%d, s%d, s%d" % (sA, sA, sD), "s_lshl_b32 s%d, s%d, 11" % (sA, sA),
          "s_add_u32 s%d, s%d, 0x%x" % (sA, sA, WS_KV))
        g("s_add_u32 s%d, s22, s%d" % (S_KV, sA), "s_addc_u32 s%d, s23, 0" % (S_KV + 1), "s_mov_b32 s%d, 0x10000" % (S_KV + 2),
          "s_mov_b32 s%d, 0x20000" % (S_KV + 3))
        g.shladd(sE, sB, 1, sC)
        g("s_xor_b32 s%d, s%d, 2" % (sF, sE), "s_add_u32 s%d, s%d, 0x%x" % (sD, sD, WS_Q >> 10))
        g("s_add_u32 s%d, s%d, s%d" % (aQ0, sE, sD), "s_lshl_b32 s%d, s%d, 10" % (aQ0, aQ0))
        g("s_add_u32 s%d, s%d, s%d" % (aQ1, sF, sD), "s_lshl_b32 s%d, s%d, 10" % (aQ1, aQ1))
        g.shladd(aO0, sE, 5, sHEAD)
        g.shladd(aO0, aO0, 10, "0x%x" % WS_O)
        g("s_add_u32 s%d, s%d, 0x8000" % (aO1, aO0))
        g.shladd(aF3, sE, 4, sHEAD)
        g.shladd(aF3, aF3, fs, "0x%x" % F3)
        if g.o["f1wg"]:
            g("s_lshr_b32 s%d, s%d, 2" % (aP1, sHEAD))
            g.shladd(aP1, aP1, 5 + fs, "0x%x" % F1)
            g("v_and_b32 v6, 31, v0", "v_lshlrev_b32 v6, %d, v6" % fs)
        else:
            g("s_lshr_b32 s%d, s%d, 1" % (aP1, sHEAD))
            g.shladd(aP1, aP1, 6 + fs, "0x%x" % F1)
            g("v_lshlrev_b32 v6, %d, v0" % fs)
        g("s_mov_b32 s%d, 0xffff" % sMASK, "s_mov_b32 s%d, 0xffff" % (sMASK + 1))
        g("v_and_b32 v2, 27, v0", "v_mov_b32 v3, 0x3f803f80", "v_cmp_eq_u32 vcc, 16, v2", "s_mov_b32 s%d, %d" % (sCNT, g.o.get("x_attn_it", 32 // g.o["kvbuf"])), "s_mov_b32 s%d, 0" % sD,
          "v_cndmask_b32 v2, 0, v3, vcc")
        g("s_xor_b32 s%d, s%d, 2" % (sA, sW), "s_mul_i32 s%d, s%d, 0x1200" % (sB, sA), "s_add_u32 s%d, s%d, 0x%x" % (sB, sB, L_ATT))
        g("s_mul_i32 s%d, s%d, 0x1200" % (sC, sW), "s_add_u32 s%d, s%d, 0x%x" % (sC, sC, L_ATT))
        g("v_add_u32 v120, s%d, v4" % sB, "v_add_u32 v121, s%d, v4" % sC)
        g("v_lshlrev_b32 v8, 2, v0", "v_add_u32 v122, s%d, v8" % sB, "v_add_u32 v123, s%d, v8" % sC)
        g.shladd(sA, sA, 2, "0x%x" % L_FLAG)
        g("v_mov_b32 v124, s%d" % sA, "s_xor_b32 s%d, s%d, 8" % (sA, sA), "v_mov_b32 v125, s%d" % sA)
        g.flag_regs(126, 127)
        g("s_barrier")
        for b in range(g.o["kvbuf"]):
            for k in range(8):
                g("v_mov_b32 v%d, v2" % (VB(b, 0) + k))
        for k in range(64):
            g("v_mov_b32 v%d, 0" % (O(0) + k))
        if g.o["f1wg"]:
            g("s_barrier")
        g("s_setprio %d" % g.o.get("aprio", 2))
        g.stamp(4)
        g.stamp(1, "f1")
        if g.o["presleep"]:
            g("s_sleep %d" % g.o["presleep"])
        g.poll("qkv", 6, aP1, 7, g.o["sleep1"])
        g.stamp(5)
        g.stamp(3, "f1")
        if g.o.get("diag") == "f1":
            g("s_waitcnt lgkmcnt(0)", "s_mul_i32 s3, s3, 100", "s_add_u32 s82, s78, s3")
        NB = g.o["kvbuf"]
        NS = 4 * NB

        def qload(i):
            return "buffer_load_dwordx4 %s, v4, %s, s%d offen offset:%d%s" % (vr(Q(i), 4), sr(S_WS, 4), aQ0 + (i >> 1), (i & 1) * 1024, g.lc)

        def loads(b0):
            L = []
            for t in range(2):
                L.append("buffer_load_dwordx4 %s, v4, %s, s%d offen offset:%d%s" % (vr(KB(b0 + t), 4), sr(S_KV, 4), sD, t * 2048, g.lc))
            L.append("s_mov_b64 exec, %s" % sr(sMASK, 2))
            for t in range(2):
                for hh in range(2):
                    L.append("buffer_load_dwordx4 %s, v5, %s, s%d offen offset:%d%s" % (vr(VB(b0 + t, hh), 4), sr(S_KV, 4), sD, t * 2048 + 1024 + hh * 512, g.lc))
            L.append("s_mov_b64 exec, -1")
            if g.o["kvrot"]:
                L.append("s_add_u32 s12, s12, 0x1000\ns_xor_b32 s%d, s12, s13" % sD)
            else:
                L.append("s_add_u32 s%d, s%d, 0x1000" % (sD, sD))
            return L
        if g.o["kvrot"]:
            g("s_mov_b32 s12, 0", "s_lshl_b32 s13, s%d, 13" % sQB, "s_mov_b32 s%d, s13" % sD)
        L0 = loads(0)
        g(qload(0), L0[0], qload(1), qload(2), qload(3), *L0[1:])
        ahead = NB // 2 - 2
        for p in range(1, NB // 2 - 1):
            g(*loads(2 * p))
        if g.o["gu_wait"]:
            g("s_barrier")
        g("s_waitcnt vmcnt(%d)" % (8 + 6 * ahead))
        g.mfma(S[0], KB(0), Q(0), 0)
        g("s_nop 11")
        g.stamp(6)
        g.stamp(9, "att")
        g.stamp(4, "f1")
        order = g.o["order"].split()

        def step(n, skip_pv=False, only=None):
            pn, nn = (n - 1) % NS, (n + 1) % NS
            X = loads((n // 4 - 2) % NB) if n % 8 == 0 else None
            if g.o.get("x_nokv"):
                X = None
            s0 = S[n & 1]
            for t in (order if only is None else only):
                if t == "A":
                    if not skip_pv:
                        g.mfma(O(pn & 3), VB(pn >> 2, 0), P)
                elif t == "B":
                    if not skip_pv:
                        g.mfma(O(pn & 3), VB(pn >> 2, 1), P + 4)
                elif t == "S":
                    if n % 8 == 7:
                        g("s_waitcnt vmcnt(%d)" % ((3 if g.o.get("x_halfkv") else 6) * ahead))
                    g.mfma(S[nn & 1], KB(nn >> 2), Q(nn & 3), 0)
                elif t == "|":
                    if n == 0 and only is None:
                        g.label("L_at_entry")
                elif t[0] == "x":
                    if X and g.o.get("x_halfkv"):
                        g(*{"x0": X[0:1], "x1": [], "x2": X[2:5] + X[7:8], "x3": X[8:9]}[t])
                    elif X:
                        g(*{"x0": X[0:1], "x1": X[1:2], "x2": X[2:8], "x3": X[8:9]}[t])
                    if n == NS - 1 and t == "x0":
                        g("s_sub_u32 s%d, s%d, 1" % (sCNT, sCNT))
                elif t[0] == "e":
                    k = int(t[1:])
                    g("v_exp_f32 v%d, v%d" % (s0 + k, s0 + k))
                elif t[0] == "c":
                    k = int(t[1:])
                    g("v_cvt_pk_bf16_f32 v%d, v%d, v%d" % (P + k, s0 + 2 * k, s0 + 2 * k + 1))
        step(0, skip_pv=True, only=order[:order.index("|")])
        g("s_waitcnt vmcnt(%d)" % (6 * ahead), "s_branch L_at_entry")
        g(".p2align 6")
        g.label("L_at_loop")
        for n in range(NS):
            step(n)
            if g.o.get("diag") == "att" and n % 16 == 15:
                g("s_waitcnt lgkmcnt(0)")
                for k in range(1, 9):
                    g("s_mov_b32 s%d, s%d" % (78 + 2 * k, 80 + 2 * k))
                g.stamp(9, "att")
        g("s_cmp_lg_u32 s%d, 0" % sCNT, "s_cbranch_scc1 L_at_loop")
        g.mfma(O(3), VB(NB - 1, 0), P)
        g.mfma(O(3), VB(NB - 1, 1), P + 4)
        g("s_waitcnt vmcnt(0)")
        g.stamp(7)
        g("ds_write_b128 v120, %s" % vr(O(2), 4), "ds_write_b128 v120, %s offset:1024" % vr(O(2) + 4, 4), "ds_write_b32 v122, v%d offset:2048" % (O(2) + 8))
        g("v_mov_b32 v12, 1", "s_mov_b32 s3, 0", "s_nop 5")
        g("ds_write_b128 v120, %s offset:2304" % vr(O(3), 4), "ds_write_b128 v120, %s offset:3328" % vr(O(3) + 4, 4),
          "ds_write_b32 v122, v%d offset:4352" % (O(3) + 8))
        g("s_waitcnt lgkmcnt(0)", "ds_write_b32 v124, v12")
        g.label("L_pair")
        g("ds_read_b32 v12, v125", "s_add_u32 s3, s3, 1", "s_waitcnt lgkmcnt(0)", "v_cmp_ne_u32 vcc, 1, v12", "s_cmp_gt_u32 s3, 0x%x" % (POLL_LIMIT * 8),
          "s_cbranch_vccz L_paird", "s_cbranch_scc0 L_pair")
        g.label("L_paird")
        g.stamp(8)
        T = 32
        g("ds_read_b128 %s, v121" % vr(T, 4), "ds_read_b128 %s, v121 offset:1024" % vr(T + 4, 4), "ds_read_b32 v%d, v123 offset:2048" % (T + 8))
        g("ds_read_b128 %s, v121 offset:2304" % vr(T + 12, 4), "ds_read_b128 %s, v121 offset:3328" % vr(T + 16, 4), "ds_read_b32 v%d, v123 offset:4352" % (T + 20))
        g("s_waitcnt lgkmcnt(3)")
        for k in (8, 0, 1, 2, 3, 4, 5, 6, 7):
            g("v_add_f32 v%d, v%d, v%d" % (O(0) + k, O(0) + k, T + k))
        g("s_waitcnt lgkmcnt(0)")
        for k in (8, 0, 1, 2, 3, 4, 5, 6, 7):
            g("v_add_f32 v%d, v%d, v%d" % (O(1) + k, O(1) + k, T + 12 + k))
        g("v_subrev_u32 v10, 0x21800000, v%d" % (O(0) + 8), "v_subrev_u32 v11, 0x21800000, v%d" % (O(1) + 8), "v_max_u32 v10, v10, v11")
        g("v_cmp_lt_u32 vcc, 0x3c000000, v10", "s_nop 1", "s_and_b64 vcc, exec, vcc", "s_cbranch_vccnz L_at_slow")
        g.label("L_at_norm")
        g("v_rcp_f32 v10, v%d" % (O(0) + 8), "v_rcp_f32 v11, v%d" % (O(1) + 8), "s_nop 0")
        for i in range(2):
            for k in range(8):
                g("v_mul_f32 v%d, v%d, v%d" % (O(i) + k, O(i) + k, 10 + i))
            for k in range(4):
                g("v_cvt_pk_bf16_f32 v%d, v%d, v%d" % (T + 4 * i + k, O(i) + 2 * k, O(i) + 2 * k + 1))
            g("buffer_store_dwordx4 %s, v4, %s, s%d offen%s" % (vr(T + 4 * i, 4), sr(S_WS, 4), aO0 + i, cc))
        g.stamp(9)
        g("s_waitcnt vmcnt(0)")
        g.stamp(10)
        g.flag_store(aF3, 126, 127)

    def role_attn_slow(self):
        g = self
        O = lambda i: 128 + 16 * i
        Q = lambda i: 16 + 4 * i
        S0, P, KB0, V0, V1 = 32, 64, 72, 76, 80
        cc = g.cc
        g.label("L_at_slow")
        g("s_lshl_b32 s%d, s%d, 17" % (sC, sHEAD), "s_add_u32 s%d, s%d, 0x%x" % (sC, sC, WS_KV))
        g("s_add_u32 s%d, s22, s%d" % (S_KV, sC), "s_addc_u32 s%d, s23, 0" % (S_KV + 1), "s_mov_b32 s%d, 0x20000" % (S_KV + 2),
          "s_mov_b32 s%d, 0x20000" % (S_KV + 3))
        g("s_mov_b32 s%d, 0" % sCNT)
        g.label("L_sl_tile")
        g("v_mov_b32 v12, 0xff800000", "s_mov_b32 s%d, 0" % sD)
        g.label("L_sl_max")
        g("buffer_load_dwordx4 %s, v4, %s, s%d offen%s" % (vr(KB0, 4), sr(S_KV, 4), sD, cc), "s_waitcnt vmcnt(0)")
        g.mfma(S0, KB0, Q(0), 0)
        g("s_nop 11")
        for k in range(8):
            g("v_max3_f32 v12, v12, v%d, v%d" % (S0 + 2 * k, S0 + 2 * k + 1))
        g("s_add_u32 s%d, s%d, 0x800" % (sD, sD), "s_cmp_lt_u32 s%d, 0x20000" % sD, "s_cbranch_scc1 L_sl_max")
        g("v_mov_b32 v13, v12", "s_nop 1", "v_permlane32_swap_b32 v12, v13", "s_nop 1", "v_max_f32 v12, v12, v13")
        for k in range(16):
            g("v_mov_b32 v%d, 0" % (O(0) + k))
        g("s_mov_b32 s%d, 0" % sD)
        g.label("L_sl_acc")
        g("buffer_load_dwordx4 %s, v4, %s, s%d offen%s" % (vr(KB0, 4), sr(S_KV, 4), sD, cc))
        g("s_mov_b64 exec, %s" % sr(sMASK, 2))
        g("buffer_load_dwordx4 %s, v5, %s, s%d offen offset:1024%s" % (vr(V0, 4), sr(S_KV, 4), sD, cc))
        g("buffer_load_dwordx4 %s, v5, %s, s%d offen offset:1536%s" % (vr(V1, 4), sr(S_KV, 4), sD, cc))
        g("s_mov_b64 exec, -1", "s_waitcnt vmcnt(0)")
        g.mfma(S0, KB0, Q(0), 0)
        g("s_nop 11")
        for k in range(16):
            g("v_sub_f32 v%d, v%d, v12" % (S0 + k, S0 + k))
        for k in range(16):
            g("v_exp_f32 v%d, v%d" % (S0 + k, S0 + k))
        g("s_nop 0")
        for k in range(8):
            g("v_cvt_pk_bf16_f32 v%d, v%d, v%d" % (P + k, S0 + 2 * k, S0 + 2 * k + 1))
        g("s_nop 1")
        g.mfma(O(0), V0, P)
        g.mfma(O(0), V1, P + 4)
        g("s_add_u32 s%d, s%d, 0x800" % (sD, sD), "s_cmp_lt_u32 s%d, 0x20000" % sD, "s_cbranch_scc1 L_sl_acc")
        g("s_nop 11")
        g("s_cmp_eq_u32 s%d, 1" % sCNT, "s_cbranch_scc1 L_sl_done")
        for k in range(9):
            g("v_mov_b32 v%d, v%d" % (O(2) + k, O(0) + k))
        for k in range(4):
            g("v_mov_b32 v%d, v%d" % (Q(0) + k, Q(1) + k))
        g("s_mov_b32 s%d, 1" % sCNT, "s_branch L_sl_tile")
        g.label("L_sl_done")
        for k in range(9):
            g("v_mov_b32 v%d, v%d" % (O(1) + k, O(0) + k), "v_mov_b32 v%d, v%d" % (O(0) + k, O(2) + k))
        g("s_branch L_at_norm")

    def role_qkv(self):
        g = self
        AQ, AK, AV = 16, 32, 48
        WB = (128, 144, 160)
        XB = (140, 156, 172)
        vXr = 4
        vT = (8, 9)
        vD = 96
        lc = g.o["lognc"]
        fs = g.fs
        g("v_lshrrev_b32 v2, 3, v0", "v_lshrrev_b32 v1, 2, v0", "v_and_b32 v1, 4, v1", "v_xor_b32 v3, v0, v1", "v_and_b32 v12, 7, v3")
        g("s_lshl_b32 s%d, s%d, 4" % (sA, sW), "v_add_u32 v3, s%d, v2" % sA, "v_mul_u32_u24 v3, 0xc00, v3")
        g("s_lshl_b32 s%d, s%d, 7" % (sA, sCB), "v_lshl_add_u32 v3, v12, 4, v3", "v_add_u32 v%d, s%d, v3" % (vD, sA))
        for seg in range(3):
            for e in range(2):
                if seg or e:
                    g("v_add_u32 v%d, 0x%x, v%d" % (vD + 2 * seg + e, seg * 1024 + e * (8 * 3072 - 1024), vD))
        g("s_mul_i32 s%d, s%d, 0x1800" % (sC, sW), "s_add_u32 s%d, s%d, 0x%x" % (sC, sC, L_W))

        def dma(st, seg):
            L = []
            if seg == 0:
                L += ["s_xor_b32 s%d, s%d, %d" % (sCNT, sROT, st), "s_mul_i32 s%d, s%d, 0x%x" % (sCNT, sCNT, 64 * 3072)]
            L.append("s_add_u32 m0, s%d, 0x%x" % (sC, (st & 3) * 24576 + seg * 2048))
            L.append("s_nop 0")
            L.append("buffer_load_dwordx4 v%d, %s, s%d offen lds" % (vD + 2 * seg, sr(S_WQ, 4), sCNT))
            L.append("buffer_load_dwordx4 v%d, %s, s%d offen offset:1024 lds" % (vD + 2 * seg + 1, sr(S_WQ, 4), sCNT))
            return L
        g("s_waitcnt lgkmcnt(0)")
        g.srd(S_WQ, 6, 512 * 3072)
        g.stamp(1)
        g.epoch_load()
        g.srd(S_X, 4, 2048 * 1024)
        g.srd(S_WG, 12, 512 * 3584)
        g.srd(S_WU, 14, 512 * 3584)
        g.srd(S_WD, 16, 1792 * 1024)
        g.srd(S_WO, 8, 512 * 1024)
        g.srd(S_OUT, 18, 2048 * 1024)
        g.srd(S_WS, 22, WS_SIZE)
        def first_dma():
            g.stamp(1, "ln")
            if g.o["barP"]:
                g("s_barrier")
            for st in range(2):
                for seg in range(3):
                    g(*dma(st, seg))
            g.stamp(2, "ln")
        if g.o["dma_first"]:
            first_dma()
        g("s_lshr_b32 s%d, s10, 3" % sA)
        g.shladd(sRB2, 3, 2, sA)
        g("s_and_b32 s%d, s10, 7" % sCB2)
        g("s_add_u32 s%d, s%d, s%d" % (gROT2, sA, sCB2), "s_and_b32 s%d, s%d, %d" % (gROT2, gROT2, 3 if g.o["rot"] else 0))
        g("v_lshrrev_b32 v1, 5, v0", "v_lshlrev_b32 v10, 4, v0")
        g("s_and_b32 s%d, s%d, 1" % (sA, sW), "s_lshl_b32 s%d, s%d, 15" % (gTT, sA))
        g("v_xor_b32 v3, v0, v1")
        for q in range(4):
            g("v_xor_b32 v15, %d, v3" % (2 * q), "v_lshlrev_b32 v15, 4, v15", "v_add_u32 v15, 0x%x, v15" % (q * 1024),
              "v_add_u32 v%d, s%d, v15" % (vXr + q, gTT))
        g("v_bfe_u32 v104, v0, 2, 2", "v_bfe_u32 v105, v0, 3, 1", "v_bfe_u32 v106, v0, 4, 1", "v_and_b32 v107, 3, v0", "v_lshlrev_b32 v107, 3, v107")
        g("v_lshl_add_u32 v108, v1, 3, v104", "v_lshl_add_u32 v108, v108, 7, v107")
        g("v_lshl_add_u32 v107, v106, 5, v107")
        g("s_lshr_b32 s%d, s%d, 1" % (sB, sW), "v_xor_b32 v3, s%d, v105" % sB, "v_lshl_add_u32 v3, v3, 6, v108", "v_lshl_add_u32 v3, v106, 5, v3")
        g("v_add_u32 v%d, 0x%x, v3" % (vT[0], L_W), "v_add_u32 v%d, 0x%x, v3" % (vT[1], L_W + 49152))
        g.shladd(sD, sRB, 1, sA)
        g("s_and_b32 s%d, s%d, 2" % (sE, sW))
        g.shladd(sE, sCB, 2, sE)
        g.shladd(sF, sE, 6, sD)
        g.shladd(gQ0, sF, 10, "0x%x" % WS_Q)
        g("s_add_u32 s%d, s%d, 0x10000" % (gQ1, gQ0))
        g.shladd(gK0, sF, 11, "0x%x" % WS_KV)
        g("s_add_u32 s%d, s%d, 0x20000" % (gK1, gK0))
        if g.o["f1wg"]:
            g.shladd(gF1, sCB, 5, sRB)
        else:
            g.shladd(gF1, sE, 5, sD)
        g.shladd(gF1, gF1, fs, "0x%x" % F1)
        g("v_lshlrev_b32 v3, 17, v106", "v_lshl_add_u32 v3, v1, 8, v3", "v_and_b32 v15, 15, v0", "v_lshl_add_u32 v11, v15, 4, v3")
        g.shladd(gRING, sW, 14, "0x%x" % L_RING)
        g.shladd(sD, sCB, 2, sW)
        g("s_lshl_b32 s%d, s%d, 7" % (sE, sD), "v_mul_u32_u24 v3, 0xe00, v2", "v_add_u32 v3, s%d, v3" % sE)
        g("v_lshlrev_b32 v15, 1, v106", "v_xor_b32 v15, v15, v0", "v_and_b32 v15, 7, v15")
        g("v_lshl_add_u32 v116, v15, 4, v3", "v_xor_b32 v15, 4, v15", "v_lshl_add_u32 v118, v15, 4, v3")
        g("v_add_u32 v117, 0x%x, v116" % (8 * 3584 - 1024), "v_add_u32 v119, 0x%x, v118" % (8 * 3584 - 1024))
        g("v_lshl_add_u32 v3, v106, 11, v108", "v_add_u32 v3, s%d, v3" % gRING, "v_lshl_add_u32 v109, v106, 1, v105")
        for j in range(4):
            g("v_xor_b32 v15, %d, v109" % j, "v_lshl_add_u32 v%d, v15, 5, v3" % (112 + j))
        g("s_mul_i32 s%d, s%d, 224" % (sE, sRB))
        g.shladd(gH0, sD, 2, sE)
        g.shladd(gH0, gH0, 10, "0x%x" % WS_H)
        g("s_add_u32 s%d, s%d, 0x%x" % (gH1, gH0, 112 * 1024))
        g.shladd(gF2, sRB, 5, sD)
        g.shladd(gF2, gF2, fs, "0x%x" % F2)
        g("s_mul_i32 s%d, s%d, 0x%x" % (sD, sB, 112 * 1024), "v_add_u32 v120, s%d, v10" % sD, "s_xor_b32 s%d, s%d, 0x%x" % (sD, sD, 112 * 1024),
          "v_add_u32 v121, s%d, v10" % sD)
        g("s_mul_i32 s%d, s%d, 0x%x" % (gHL0, sRB2, 224 * 1024), "s_mul_i32 s%d, s%d, 0x%x" % (sD, sW, 28 * 1024),
          "s_add_u32 s%d, s%d, s%d" % (gHL0, gHL0, sD), "s_add_u32 s%d, s%d, 0x%x" % (gHL0, gHL0, WS_H))
        g("s_mul_i32 s%d, s%d, 0x%x" % (gWD0, sW, 28 * 16384))
        g("v_lshl_add_u32 v3, v1, 2, v104", "v_lshl_add_u32 v3, v3, 7, v107", "v_add_u32 v3, s%d, v3" % gRING, "v_xor_b32 v15, s%d, v105" % sA)
        g("v_lshl_add_u32 v122, v15, 6, v3", "v_xor_b32 v15, 1, v15", "v_lshl_add_u32 v123, v15, 6, v3")
        g("v_lshlrev_b32 v3, 10, v2", "v_lshl_add_u32 v3, v12, 4, v3", "s_lshl_b32 s%d, s%d, 7" % (sD, sCB2), "v_add_u32 v124, s%d, v3" % sD,
          "v_add_u32 v125, 0x1c00, v124")
        g("v_and_b32 v3, 31, v0", "v_lshlrev_b32 v3, 10, v3", "v_lshl_add_u32 v126, v1, 3, v3", "v_lshl_add_u32 v127, v1, 4, v3")
        g.shladd(sD, sRB2, 1, sB)
        g.shladd(sE, sCB2, 1, sA)
        g("s_lshl_b32 s%d, s%d, 15" % (sD, sD), "s_lshl_b32 s%d, s%d, 6" % (sE, sE), "s_add_u32 s%d, s%d, s%d" % (sOUT, sD, sE))
        g("s_mul_i32 s%d, s%d, 7" % (sD, sW))
        g.shladd(gP2, sRB2, 5, sD)
        g.shladd(gP2, gP2, fs, "0x%x" % F2)
        g.shladd(gP3, sRB2, 2, sW)
        g.shladd(gP3, gP3, 3 + fs, "0x%x" % F3)
        g("s_mov_b32 s%d, 0x%x" % (sF, f2u(0.25 * math.log2(math.e))))
        if not g.o["dma_first"]:
            first_dma()
        g("s_setprio 1")

        def reads(n):
            if n >= 32:
                return []
            st, ks = n >> 2, n & 3
            b = n % 3
            slot = st & 3
            L = ["ds_read_b128 %s, v%d offset:%d" % (vr(XB[b], 4), vXr + ks, st * 4096)]
            for seg in range(3):
                for p in range(2):
                    L.append("ds_read_b64_tr_b16 %s, v%d offset:%d" % (vr(WB[b] + 4 * seg + 2 * p, 2), vT[slot >> 1],
                                                                      (slot & 1) * 24576 + ks * 6144 + seg * 2048 + p * 512))
            return L

        def mm(n):
            b = n % 3
            c = 0 if n == 0 else None
            return [(AK, WB[b] + 4, XB[b], c), (AV, XB[b], WB[b] + 8, c), (AQ, WB[b], XB[b], c)]
        g("s_waitcnt vmcnt(6) lgkmcnt(0)")
        g.epoch_make()
        g.flag_regs(vEP, vZ)
        g.stamp(3, "ln")
        g.stamp(2)
        g("s_barrier")
        g.stamp(3)
        g(*reads(0))
        g(*reads(1))
        refill = {}
        for st, n0 in ((2, 0), (3, 3), (4, 6), (5, 10), (6, 14), (7, 18)):
            for seg in range(3):
                refill[n0 + seg] = (st, seg)
        for n in range(32):
            st, ks = n >> 2, n & 3
            M = mm(n)
            R = reads(n + 2)
            D = dma(*refill[n]) if n in refill and not g.o.get("x_nodmaq") else []
            if ks == 2 and st < 7:
                vm = {0: 4, 6: 0}.get(st, 6)
                g("s_waitcnt vmcnt(%d) lgkmcnt(7)" % vm)
                if st in (0, 3, 4):
                    g.stamp({0: 2, 3: 5, 4: 8}[st], "qkv")
                g("s_barrier")
                if st in (0, 3, 4):
                    g.stamp({0: 3, 3: 6, 4: 9}[st], "qkv")
            elif n == 31:
                g("s_waitcnt lgkmcnt(0)", "s_barrier")
            else:
                g("s_waitcnt lgkmcnt(7)")
            g.mfma(*M[0])
            g(*R[:4])
            g.mfma(*M[1])
            g(*R[4:])
            g(*D[:-1])
            g.mfma(*M[2])
            g(*D[-1:])
        g.stamp(4)
        g.stamp(10, "qkv")
        g.stamp(1, "f1")
        P = 64
        for q in range(4):
            g("v_subrev_u32 v%d, s%d, v%d" % (vXr + q, gTT, vXr + q))
        g("s_mul_i32 s%d, s%d, 0x%x" % (sD, sROT, 64 * 3584), "s_nop 4")
        for k in range(8):
            g("v_cvt_pk_bf16_f32 v%d, v%d, v%d" % (P + 8 + k, AK + 2 * k, AK + 2 * k + 1))
            if k == 3:
                g("buffer_store_dwordx4 %s, v10, %s, s%d offen%s" % (vr(P + 8, 4), sr(S_WS, 4), gK0, g.cc))
        g("buffer_store_dwordx4 %s, v10, %s, s%d offen%s" % (vr(P + 12, 4), sr(S_WS, 4), gK1, g.cc))
        for k in range(8):
            g("v_cvt_pk_bf16_f32 v%d, v%d, v%d" % (P + 16 + k, AV + 2 * k, AV + 2 * k + 1))
            if k == 3:
                g("buffer_store_dwordx4 %s, v11, %s, s%d offen offset:1024%s" % (vr(P + 16, 4), sr(S_WS, 4), gK0, g.cc))
        g("buffer_store_dwordx4 %s, v11, %s, s%d offen offset:1536%s" % (vr(P + 20, 4), sr(S_WS, 4), gK0, g.cc))
        for k in range(8):
            g("v_mul_f32 v%d, s%d, v%d" % (AQ + 2 * k, sF, AQ + 2 * k), "v_mul_f32 v%d, s%d, v%d" % (AQ + 2 * k + 1, sF, AQ + 2 * k + 1))
            g("v_cvt_pk_bf16_f32 v%d, v%d, v%d" % (P + k, AQ + 2 * k, AQ + 2 * k + 1))
            if k == 3:
                g("buffer_store_dwordx4 %s, v10, %s, s%d offen%s" % (vr(P, 4), sr(S_WS, 4), gQ0, g.cc))
        g("buffer_store_dwordx4 %s, v10, %s, s%d offen%s" % (vr(P + 4, 4), sr(S_WS, 4), gQ1, g.cc))
        g.stamp(2, "f1")

    def f1_signal(self, tag):
        g = self
        g.stamp(4, "f1")
        if g.o["f1wg"]:
            g("s_barrier", "s_cmp_lg_u32 s%d, 0" % sW, "s_cbranch_scc1 L_f1_%s" % tag)
            g.flag_store(gF1)
            g.label("L_f1_%s" % tag)
        else:
            g.flag_store(gF1)
        g.stamp(5)
        g.stamp(5, "f1")
        if g.o.get("diag") == "f1":
            g("s_waitcnt vmcnt(0)")
            g.stamp(6, "f1")

    def role_gu(self, done):
        g = self
        ACC = lambda tt, j: 128 + 16 * (4 * tt + j)
        AB = (16, 32)
        BB = (48, 56)
        vXr, vTg, vG = 4, 112, 116
        g("s_cmp_lg_u32 s%d, 7" % sCB, "s_cbranch_scc1 L_gu_go")
        g("s_waitcnt vmcnt(0)")
        g.f1_signal("a")
        if g.o["gu_wait"]:
            g("s_barrier")
        g.warm_d()
        g("s_branch %s" % done)
        g.label("L_gu_go")

        def dma(slot):
            L = []
            for gg in range(2):
                L.append("s_add_u32 m0, s%d, 0x%x" % (gRING, slot * 4096 + gg * 2048))
                L.append("s_nop 0")
                L.append("buffer_load_dwordx4 v%d, %s, s%d offen lds" % (vG + 2 * gg, sr(S_WG + 4 * gg, 4), sD))
                L.append("buffer_load_dwordx4 v%d, %s, s%d offen offset:1024 lds" % (vG + 2 * gg + 1, sr(S_WG + 4 * gg, 4), sD))
            L.append("s_add_u32 s%d, s%d, 0x%x" % (sD, sD, 16 * 3584))
            return L
        if g.o["gu_late"]:
            g("s_waitcnt vmcnt(0)")
            g.f1_signal("b")
            if g.o["lw_gu"]:
                g.shladd(sA, sCB, 2, sW)
                g("s_lshl_b32 s%d, s%d, 7" % (sA, sA), "s_add_u32 s%d, s%d, s%d" % (sA, sA, sD), "v_mul_u32_u24 v2, 0xe00, v0")
            if g.o["gu_wait"]:
                g("s_barrier")
            if g.o["lw_gu"]:
                g("buffer_load_dword v3, v2, %s, s%d offen" % (sr(S_WG, 4), sA), "buffer_load_dword v3, v2, %s, s%d offen" % (sr(S_WU, 4), sA),
                  "s_waitcnt vmcnt(0)")
            for s in range(4):
                if g.o["thr_gu"] is not None and s:
                    g("s_waitcnt vmcnt(%d)" % g.o["thr_gu0"])
                g(*dma(s))
        else:
            for s in range(4):
                g(*dma(s))
            g.stamp(3, "f1")
            g("s_waitcnt vmcnt(16)")
            g.f1_signal("b")

        def reads(u):
            b = u & 1
            L = []
            L.append("ds_read_b128 %s, v%d offset:%d" % (vr(BB[b], 4), vXr + u, 0))
            for p in range(2):
                L.append("ds_read_b64_tr_b16 %s, v%d offset:%d" % (vr(AB[b] + 2 * p, 2), vTg, u * 4096 + p * 512))
            L.append("ds_read_b128 %s, v%d offset:%d" % (vr(BB[b] + 4, 4), vXr + u, 32768))
            for j in range(1, 4):
                for p in range(2):
                    L.append("ds_read_b64_tr_b16 %s, v%d offset:%d" % (vr(AB[b] + 4 * j + 2 * p, 2), vTg + j, u * 4096 + p * 512))
            return L

        def step(u, first=False):
            b = u & 1
            c = 0 if first else None
            M = [(ACC(tt, j), AB[b] + 4 * j, BB[b] + 4 * tt, c) for j in range(4) for tt in range(2)]
            R = reads((u + 1) & 3)
            D = dma(u) if not g.o.get("x_nodma") else []
            g("s_waitcnt lgkmcnt(0)")
            g.mfma(*M[0])
            if u == 0:
                g("s_xor_b32 s%d, s%d, s%d" % (sD, sCNT, sROT), "s_mul_i32 s%d, s%d, 0x%x" % (sD, sD, 64 * 3584))
            if u == 3:
                g("s_setprio 3")
                for q in range(4):
                    g("v_add_u32 v%d, 0x1000, v%d" % (vXr + q, vXr + q))
                g("s_setprio 0")
            th = g.o["thr_gu"]
            if th is None:
                g("s_waitcnt vmcnt(8)")
            else:
                g("s_waitcnt vmcnt(%d)" % th)
                g(*D[:4])
            g(*R[0:3])
            g.mfma(*M[1])
            g(*R[3:6])
            g.mfma(*M[2])
            g(*R[6:8])
            g.mfma(*M[3])
            g(*R[8:10])
            g.mfma(*M[4])
            if th is None:
                g(*D[:4])
            else:
                g("s_waitcnt vmcnt(%d)" % th)
                g(*D[4:])
            g.mfma(*M[5])
            if th is None:
                g(*D[4:])
            g.mfma(*M[6])
            g.mfma(*M[7])
        g("s_waitcnt vmcnt(12)" if g.o["gu_late"] else "s_waitcnt vmcnt(%d)" % (12 if g.o["f1wg"] else 13))
        g.stamp(6)
        g.stamp(6, "att")
        g(*reads(0))
        g("s_mov_b32 s%d, 1" % sCNT, "s_setprio 0")
        step(0, first=True)
        g("s_branch L_gu_1")
        g.label("L_gu_0")
        step(0)
        g.label("L_gu_1")
        step(1)
        step(2)
        step(3)
        g("s_add_u32 s%d, s%d, 1" % (sCNT, sCNT), "s_cmp_lg_u32 s%d, 9" % sCNT, "s_cbranch_scc1 L_gu_0")
        g("s_waitcnt vmcnt(0) lgkmcnt(0)", "s_setprio 3")
        g.stamp(7)
        g.stamp(7, "att")
        g.warm_d()
        g("s_nop 5")
        order = [(tt, j) for j in range(4) for tt in range(2)]
        for n, (tt, j) in enumerate(order):
            a = ACC(tt, j)
            P = 16 + 4 * n
            for k in range(8):
                g("v_max_f32 v%d, 0, v%d" % (a + k, a + k))
            for k in range(8):
                g("v_mul_f32 v%d, v%d, v%d" % (a + k, a + k, a + 8 + k))
            for k in range(4):
                g("v_cvt_pk_bf16_f32 v%d, v%d, v%d" % (P + k, a + 2 * k, a + 2 * k + 1))
            if g.o["thr_d"] is not None and n >= 4:
                g("s_waitcnt vmcnt(%d)" % g.o["thr_d0"])
            g("buffer_store_dwordx4 %s, v10, %s, s%d offen offset:%d%s" % (vr(P, 4), sr(S_WS, 4), gH0 + tt, j * 1024, g.cc))

    def warm_d(self):
        g = self
        if not g.o["lw_d"]:
            return
        g("s_mul_i32 s%d, s%d, 0x%x" % (sA, gROT2, 7 * 16384), "s_add_u32 s%d, s%d, s%d" % (sA, sA, gWD0), "s_lshl_b32 s%d, s%d, 7" % (sB, sCB2))
        g("v_lshlrev_b32 v2, 10, v0", "s_add_u32 s%d, s%d, s%d" % (sA, sA, sB), "s_add_u32 s%d, s%d, 0xc000" % (sE, sA))
        g("buffer_load_dword v3, v2, %s, s%d offen" % (sr(S_WD, 4), sA), "buffer_load_dword v3, v2, %s, s%d offen" % (sr(S_WD, 4), sE))
        if g.o["lw_d"] > 1:
            g("s_lshl_b32 s%d, s%d, 17" % (sA, sW), "s_add_u32 s%d, s%d, s%d" % (sA, sA, sB), "s_add_u32 s%d, s%d, 0x10000" % (sE, sA))
            g("buffer_load_dword v3, v2, %s, s%d offen" % (sr(S_WO, 4), sA), "buffer_load_dword v3, v2, %s, s%d offen" % (sr(S_WO, 4), sE))

    def role_down(self):
        g = self
        ACC = lambda ln, lt: 128 + 16 * (ln + 2 * lt)
        HB = lambda slot, lt: 32 + 8 * slot + 4 * lt
        AB = (16, 24)
        vH = (120, 121)
        vT = (122, 123)
        cc = g.cc
        fs = g.fs
        R = 7

        def wdma(slot, srd, soff, inc):
            return ["s_add_u32 m0, s%d, 0x%x" % (gRING, slot * 2048), "s_nop 0",
                    "buffer_load_dwordx4 v124, %s, s%d offen lds" % (sr(srd, 4), soff),
                    "buffer_load_dwordx4 v125, %s, s%d offen offset:1024 lds" % (sr(srd, 4), soff),
                    "s_add_u32 s%d, s%d, 0x%x" % (soff, soff, inc)]

        def hload(slot):
            if g.o.get("x_noh"):
                return ["buffer_load_dword v2, off, %s, 0" % sr(S_OUT, 4), "buffer_load_dword v2, off, %s, 0" % sr(S_OUT, 4), "s_nop 0"]
            return ["buffer_load_dwordx4 %s, v120, %s, s%d offen%s" % (vr(HB(slot, 0), 4), sr(S_WS, 4), gHL, g.lc),
                    "buffer_load_dwordx4 %s, v121, %s, s%d offen%s" % (vr(HB(slot, 1), 4), sr(S_WS, 4), gHL, g.lc),
                    "s_add_u32 s%d, s%d, 0x400" % (gHL, gHL)]
        def round_base(r):
            return ["s_xor_b32 s%d, s%d, %d" % (sA, gROT2, r), "s_mul_i32 s%d, s%d, 0x%x" % (gWD, sA, R * 16384), "s_add_u32 s%d, s%d, s%d" % (gWD, gWD, gWD0),
                    "s_mul_i32 s%d, s%d, 0x%x" % (gHL, sA, R * 1024), "s_add_u32 s%d, s%d, s%d" % (gHL, gHL, gHL0)]
        g("s_setprio 3")
        g(*round_base(0))
        def first_loads():
            for i in range(4):
                g("buffer_load_dwordx2 %s, v126, %s, s%d offen offset:%d" % (vr(96 + 2 * i, 2), sr(S_X, 4), sOUT, 16 * i))
            for s in range(R):
                if g.o["thr_d"] is not None:
                    g("s_waitcnt vmcnt(%d)" % g.o["thr_d0"])
                g(*wdma(s, S_WD, gWD, 16384))
        if not g.o["dn_late"]:
            first_loads()
        g("s_cmp_eq_u32 s%d, 7" % sCB, "s_cbranch_scc1 L_dn_noflag")
        g("s_waitcnt vmcnt(%d)" % (0 if g.o["dn_late"] else 18))
        g.flag_store(gF2)
        g.label("L_dn_noflag")
        if g.o["dn_late"]:
            g("s_waitcnt vmcnt(1)")
            first_loads()
        g("v_min_u32 v2, 6, v0", "v_lshlrev_b32 v2, %d, v2" % fs)
        if not g.o.get("x_nof2"):
            g.poll("h", 2, gP2, 3, g.o["sleep2"])
        else:
            g("s_waitcnt vmcnt(0)")
        g.stamp(8)
        g.stamp(8, "att")
        if g.o["lw_h"]:
            g("v_lshlrev_b32 v2, 7, v0", "v_min_u32 v2, 0x1b80, v2", "s_lshr_b32 s%d, s%d, 1" % (sA, sW), "s_add_u32 s%d, s%d, 0x%x" % (sB, gHL, 112 * 1024))
            g("buffer_load_dword v3, v2, %s, s%d offen sc1" % (sr(S_WS, 4), gHL), "buffer_load_dword v3, v2, %s, s%d offen sc1" % (sr(S_WS, 4), sB),
              "s_waitcnt vmcnt(0)")
        for s in range(R):
            if g.o["thr_d"] is not None:
                g("s_waitcnt vmcnt(%d)" % g.o["thr_d0"])
            g(*hload(s))
        g("s_mov_b32 s%d, 0xffff0000" % sA)
        for k in range(8):
            g("v_lshlrev_b32 v%d, 16, v%d" % (ACC(0, 0) + 2 * k, 96 + k), "v_and_b32 v%d, s%d, v%d" % (ACC(0, 0) + 2 * k + 1, sA, 96 + k))

        def treads(slot, b):
            return ["ds_read_b64_tr_b16 %s, v%d offset:%d" % (vr(AB[b] + 4 * ln + 2 * p, 2), vT[ln], slot * 2048 + p * 1024)
                    for ln in range(2) for p in range(2)]

        def mms(hslot, b, first=False):
            return [(ACC(ln, lt), AB[b] + 4 * ln, HB(hslot, lt), (0 if first and (ln or lt) else None)) for ln in range(2) for lt in range(2)]
        g(*treads(0, 0))
        g("s_setprio 0")

        def step(u, par, vmwait, refill, first=False, nxt=None):
            M = mms(u, par, first)
            g("s_waitcnt vmcnt(%d) lgkmcnt(0)" % vmwait)
            Rd = treads(nxt, par ^ 1) if nxt is not None else []
            g.mfma(*M[0])
            g(*Rd)
            g.mfma(*M[1])
            if g.o["thr_d"] is not None and refill:
                g("s_waitcnt vmcnt(%d)" % g.o["thr_d"])
            g(*refill[:4])
            g.mfma(*M[2])
            g.mfma(*M[3])
            if g.o["thr_d"] is not None and len(refill) > 5:
                g("s_waitcnt vmcnt(%d)" % g.o["thr_d"])
            g(*refill[4:])
        g(*round_base(1))
        for s in range(R):
            need = 2 * (R - 1 - s) + 4 * s
            if s == R - 1:
                need = min(need, 4 * (R - 2) + 2)
            step(s, s & 1, need, wdma(s, S_WD, gWD, 16384) + hload(s), first=(s == 0), nxt=(s + 1) % R)
        for it in range(2):
            g(*round_base(it + 2))
            for s in range(R):
                gs = R * (it + 1) + s
                step(s, gs & 1, 4 * (R - 2) + 2, wdma(s, S_WD, gWD, 16384) + hload(s), nxt=(s + 1) % R)
        g("s_lshl_b32 s%d, s%d, 17" % (sF, sW))
        for s in range(R):
            gs = 3 * R + s
            if s < R - 1:
                step(s, gs & 1, 2 + 4 * (R - 2 - s) + 2 * s, wdma(s, S_WO, sF, 16384), nxt=s + 1)
            else:
                step(s, gs & 1, 2 * s, wdma(s, S_WO, sF, 16384))
        g.stamp(9)
        g.stamp(9, "att")
        g("s_setprio 3")
        g(*wdma(7, S_WO, sF, 16384))
        g("s_lshl_b32 s%d, s%d, 16" % (sE, sRB2), "s_lshl_b32 s%d, s%d, 13" % (sB, sW), "s_add_u32 s%d, s%d, s%d" % (sE, sE, sB),
          "s_add_u32 s%d, s%d, 0x%x" % (sE, sE, WS_O), "s_add_u32 s%d, s%d, 0x1000" % (sB, sE))
        g("s_lshr_b32 s%d, s%d, 1" % (sA, sW), "s_lshl_b32 s%d, s%d, 15" % (sA, sA), "v_add_u32 v120, s%d, v10" % sA,
          "s_xor_b32 s%d, s%d, 0x8000" % (sA, sA), "v_add_u32 v121, s%d, v10" % sA)
        g("v_add_u32 v4, s%d, v10" % gRING)
        for k in range(1, 4):
            g("s_xor_b32 s%d, s%d, %d" % (sA, sW, k))
            g.shladd(sA, sA, 14, "0x%x" % L_RING)
            g("v_add_u32 v%d, s%d, v10" % (4 + k, sA))
        g("v_and_b32 v2, 7, v0", "v_lshlrev_b32 v2, %d, v2" % fs, "s_waitcnt vmcnt(0)")
        g(*treads(0, 0))
        g.poll("o", 2, gP3, 3, g.o["sleep3"])
        g.stamp(10)
        for s in range(8):
            for lt in range(2):
                g("buffer_load_dwordx4 %s, v%d, %s, s%d offen offset:%d%s" % (vr(HB(s, lt), 4), vH[lt], sr(S_WS, 4), sE if s < 4 else sB, (s & 3) * 1024, g.lc))
        for s in range(8):
            step(s, s & 1, 14 - 2 * s, [], nxt=(s + 1 if s < 7 else None))
        g("s_nop 9")
        for k in (2, 1, 3):
            a = ACC(k & 1, k >> 1)
            for i in range(4):
                g("ds_write_b128 v4, %s offset:%d" % (vr(a + 4 * i, 4), (k - 1) * 4096 + i * 1024))
        g("s_waitcnt lgkmcnt(0)", "s_barrier")
        for k in range(1, 4):
            for i in range(4):
                g("ds_read_b128 %s, v%d offset:%d" % (vr(32 + 16 * (k - 1) + 4 * i, 4), 4 + k, (k - 1) * 4096 + i * 1024))
        a = ACC(0, 0)
        for k in range(1, 4):
            g("s_waitcnt lgkmcnt(%d)" % (4 * (3 - k)))
            for i in range(16):
                g("v_add_f32 v%d, v%d, v%d" % (a + i, a + i, 32 + 16 * (k - 1) + i))
        for k in range(8):
            g("v_cvt_pk_bf16_f32 v%d, v%d, v%d" % (16 + k, a + 2 * k, a + 2 * k + 1))
        g("s_lshl2_add_u32 s3, s2, s%d" % sW)
        g("v_permlane32_swap_b32 v16, v18", "v_permlane32_swap_b32 v17, v19", "v_permlane32_swap_b32 v20, v22", "v_permlane32_swap_b32 v21, v23")
        g("buffer_store_dwordx4 v[16:19], v127, %s, s%d offen" % (sr(S_OUT, 4), sOUT), "buffer_store_dwordx4 v[20:23], v127, %s, s%d offen offset:32" % (sr(S_OUT, 4), sOUT))
        g("s_cmp_lg_u32 s3, 0", "s_cbranch_scc1 L_dn_end", "s_mov_b32 s%d, 0x%x" % (sA, F_EPOCH))
        g.flag_store(sA)
        g.label("L_dn_end")


def probe_kernel(g, a, b, mult):
    kernel_head(g, "kp_kernel")
    g("s_cmp_ge_u32 s2, 1", "s_cbranch_scc1 L_kp_end")
    g("s_load_dwordx2 s[22:23], s[0:1], 72", "s_memrealtime s[30:31]", "s_waitcnt lgkmcnt(0)")
    g.srd(S_WS, 22, WS_SIZE)
    g("v_lshlrev_b32 v1, 9, v0")
    for n, (w, sl, op) in enumerate((a, b)):
        for q in range(4):
            g("s_mov_b32 s3, 0x%x" % (WS_STAMP + w * 64 + sl * 4 + q * 32768))
            g("buffer_load_dword v%d, v1, %s, s3 offen" % (4 + q, sr(S_WS, 4)))
        g("s_waitcnt vmcnt(0)")
        if op == "min":
            for q in range(4):
                g("v_subrev_u32 v%d, 1, v%d" % (4 + q, 4 + q))
        g("v_%s_u32 v4, v4, v5" % op, "v_%s_u32 v6, v6, v7" % op, "v_%s_u32 v4, v4, v6" % op, "s_nop 1")
        g("v_readlane_b32 s%d, v4, 0" % (40 + n))
        for l in range(1, 64):
            g("v_readlane_b32 s35, v4, %d" % l, "s_nop 0", "s_%s_u32 s%d, s%d, s35" % (op, 40 + n, 40 + n))
    g("s_sub_u32 s42, s41, s40", "s_mul_i32 s42, s42, %d" % mult, "s_min_u32 s42, s42, 100000")
    g.label("L_kp_spin")
    g("s_memrealtime s[32:33]", "s_waitcnt lgkmcnt(0)", "s_sub_u32 s34, s32, s30", "s_cmp_lt_u32 s34, s42", "s_cbranch_scc1 L_kp_spin")
    g.label("L_kp_end")
    g("s_endpgm")


HEADER = """; Kernarg layout (80 bytes, pointers only):
"""


def kd(name, vgpr=256, sgpr=102):
    return """.amdhsa_kernel %s
  .amdhsa_next_free_vgpr %d
  .amdhsa_next_free_sgpr %d
  .amdhsa_accum_offset %d
  .amdhsa_group_segment_fixed_size 0
  .amdhsa_kernarg_size 80
  .amdhsa_user_sgpr_count 2
  .amdhsa_user_sgpr_kernarg_segment_ptr 1
  .amdhsa_system_sgpr_workgroup_id_x 1
.end_amdhsa_kernel
""" % (name, vgpr, sgpr, (vgpr + 3) // 4 * 4)


def kernel_head(g, name):
    g(".globl %s" % name, ".p2align 8", ".type %s,@function" % name)
    g.label(name)


DEFAULT = dict(lognc=2, stamps=0, logfs=7, f1wg=1, gu_late=1, rot=1, lnsched=(8, 0, 0, 0, 0, 0, 0, 0), lnpk=1, gu_wait=1, warm_gu=0, barP=1, dma_first=1, codepf=1, kvbuf=8, kvrot=0, lw_gu=0, lw_d=0, lw_h=0, dn_late=0, thr_gu=None, thr_gu0=4, thr_d=None, thr_d0=4, presleep=0, sleep1=1, sleep2=4, sleep3=2,
               order="A e0 e1 e2 B e3 e4 e5 | S c0 c1 e6 x0 e7 e8 x1 c2 c3 x2 e9 e10 e11 c4 x3 e12 e13 c5 e14 e15 c6 c7")


def build(opts, probe=None):
    o = dict(DEFAULT)
    o.update(opts)
    K = NAME + "_kernel"
    out = HEADER
    if probe:
        out += "; @launch kernel=%s grid=(256,1,1) block=(512,1,1) lds=163840\n; @launch kernel=kp_kernel grid=(256,1,1) block=(64,1,1) lds=0\n" % K
    else:
        out += "; @launch grid=(256,1,1) block=(512,1,1) lds=163840\n"
    out += '.amdgcn_target "amdgcn-amd-amdhsa--gfx950"\n.text\n'
    g = G(o)
    kernel_head(g, K)
    g.prologue("L_end", "L_gemm")
    g.role_ln()
    g.role_attn()
    g.stamp_dump()
    g.label("L_end")
    g("s_endpgm")
    g(".p2align 6")
    g.label("L_gemm")
    g.role_qkv()
    g.role_gu("L_down")
    g.label("L_down")
    g.role_down()
    g.stamp_dump()
    g("s_endpgm")
    g.label("L_code_end")
    g.role_attn_slow()
    names = [K]
    if probe:
        probe_kernel(g, *probe)
        names.append("kp_kernel")
    body = "\n".join(("" if l.endswith(":") or l.startswith(".") else "  ") + l for l in g.L)
    out += body + "\n" + '.section .rodata,"a"\n'
    for n in names:
        out += ".p2align 6\n" + kd(n)
    return out, names


if __name__ == "__main__":
    dst = sys.argv[1]
    opts = eval("dict(%s)" % sys.argv[2]) if len(sys.argv) > 2 else {}
    probe = opts.pop("probe", None)
    asm, names = build(opts, probe)
    errs = check.check(asm, names)
    for e in errs[:6]:
        print(e)
    print("%s: %d checker problems, %d lines" % (dst, len(errs), asm.count("\n")))
    open(dst, "w").write(asm)
```

```python
import re, sys

TRANS = ("v_exp_", "v_log_", "v_rcp_", "v_rsq_", "v_sqrt_", "v_sin_", "v_cos_")


def regs(tok):
    tok = tok.strip()
    tok = tok.lstrip("-")
    m = re.fullmatch(r"abs\((.*)\)", tok) or re.fullmatch(r"\|(.*)\|", tok)
    if m:
        tok = m.group(1)
    m = re.fullmatch(r"([vsa])(\d+)", tok)
    if m:
        return {(m.group(1), int(m.group(2)))}
    m = re.fullmatch(r"([vsa])\[(\d+):(\d+)\]", tok)
    if m:
        return {(m.group(1), i) for i in range(int(m.group(2)), int(m.group(3)) + 1)}
    if tok in ("vcc", "vcc_lo", "vcc_hi"):
        return {("x", "vcc")}
    if tok in ("exec", "exec_lo", "exec_hi"):
        return {("x", "exec")}
    if tok == "m0":
        return {("x", "m0")}
    return set()


class I:
    def __init__(self, text, idx):
        self.text = text
        self.idx = idx
        p = text.split(None, 1)
        self.op = p[0]
        rest = p[1] if len(p) > 1 else ""
        self.ops = [o.strip() for o in rest.split(",")] if rest else []
        self.mods = ""
        if self.ops:
            q = self.ops[-1].split(None, 1)
            if len(q) > 1 and not self.op.startswith("s_waitcnt"):
                self.ops[-1] = q[0]
                self.mods = q[1]
        if "quad_perm" in rest or "op_sel" in rest or "neg_" in rest:
            m = re.match(r"(.*?)\s+((?:quad_perm|op_sel|neg_|row_).*)$", rest)
            self.ops = [o.strip() for o in m.group(1).split(",")]
            self.mods = m.group(2)
        op = self.op
        self.mfma = op.startswith("v_mfma") or op.startswith("v_smfmac")
        self.valu = op.startswith("v_") and not self.mfma
        self.trans = op.startswith(TRANS)
        self.dot = op.startswith("v_dot")
        self.ds = op.startswith("ds_")
        self.vmem = op.startswith("buffer_") or op.startswith("global_")
        self.smem = op.startswith("s_load") or op.startswith("s_memtime") or op.startswith("s_memrealtime")
        self.salu = op.startswith("s_") and not self.smem
        self.dpp = "quad_perm" in self.mods or "row_" in self.mods
        self.lds_dma = self.vmem and re.search(r"\blds\b", self.mods) is not None
        self.w, self.r = set(), set()
        self.srcA = self.srcB = self.srcC = self.addr = self.data = set()
        R = [regs(o) for o in self.ops]
        if self.mfma:
            self.w = R[0]
            self.srcA, self.srcB, self.srcC = R[1], R[2], R[3]
            self.r = R[1] | R[2] | R[3]
            self.passes = 8 if "32x32" in op else 4
        elif self.valu:
            if op == "v_nop":
                pass
            elif op.startswith("v_permlane") and "swap" in op:
                self.w = R[0] | R[1]
                self.r = R[0] | R[1]
            elif op.startswith(("v_add_co", "v_addc_co", "v_sub_co", "v_subb_co")):
                self.w = R[0] | R[1]
                self.r = set().union(*R[2:])
            else:
                self.w = R[0]
                self.r = set().union(*R[1:]) if len(R) > 1 else set()
                if op.startswith(("v_fmac", "v_dot2c", "v_writelane")) or self.dpp:
                    self.r |= R[0]
                if op.startswith("v_cndmask") and len(R) == 3:
                    self.r |= {("x", "vcc")}
        elif self.ds:
            if op.startswith("ds_read") or op.startswith("ds_bpermute") or "rtn" in op:
                self.w = R[0]
                self.r = set().union(*R[1:])
            else:
                self.r = set().union(*R)
        elif self.vmem:
            if op.startswith("buffer_inv") or op.startswith("buffer_wbl2"):
                pass
            elif self.lds_dma:
                self.r = set().union(*R) | {("x", "m0")}
            elif "load" in op:
                self.w = R[0]
                self.r = set().union(*R[1:])
            elif "store" in op:
                self.r = set().union(*R)
                self.data = R[0] if op.startswith("buffer_") else R[1]
                self.wide = op.endswith("x4") or op.endswith("x3")
            else:
                self.r = set().union(*R)
                if "sc0" in self.mods:
                    self.w = R[0]
        elif self.smem:
            self.w = R[0]
            self.r = set().union(*R[1:]) if len(R) > 1 else set()
        elif self.salu:
            if op.startswith(("s_cmp", "s_bitcmp")):
                self.r = set().union(*R)
            elif op.startswith(("s_waitcnt", "s_nop", "s_barrier", "s_endpgm", "s_branch", "s_cbranch", "s_setprio", "s_sleep")):
                if "vcc" in op:
                    self.r = {("x", "vcc")}
                if "exec" in op:
                    self.r = {("x", "exec")}
            elif "saveexec" in op:
                self.w = R[0] | {("x", "exec")}
                self.r = R[1] | {("x", "exec")}
            else:
                self.w = R[0] if R else set()
                self.r = set().union(*R[1:]) if len(R) > 1 else set()
                if op.startswith(("s_addk", "s_mulk", "s_cmov")):
                    self.r |= R[0]

    def states(self):
        if self.op == "s_nop":
            return int(self.ops[0], 0) + 1
        return 1


def parse(asm):
    ins, labels = [], {}
    in_text = True
    for raw in asm.splitlines():
        s = raw.split(";")[0].strip()
        if not s:
            continue
        if s.startswith(".section") or s.startswith(".amdhsa_kernel"):
            in_text = False
        if s == ".text":
            in_text = True
        if s.startswith(".") or not in_text:
            continue
        m = re.fullmatch(r"([\w.$]+):", s)
        if m:
            labels[m.group(1)] = len(ins)
            continue
        ins.append(I(s, len(ins)))
    return ins, labels


def cfg(ins, labels):
    succ = [[] for _ in ins]
    for i, x in enumerate(ins):
        if x.op == "s_endpgm":
            continue
        if x.op == "s_branch":
            succ[i].append(labels[x.ops[0]])
            continue
        if x.op.startswith("s_cbranch"):
            succ[i].append(labels[x.ops[0]])
        if i + 1 < len(ins):
            succ[i].append(i + 1)
    pred = [[] for _ in ins]
    for i, s in enumerate(succ):
        for j in s:
            pred[j].append(i)
    return succ, pred


def need(p, c):
    n = 0
    vw = {r for r in p.w if r[0] in "va"}
    sw = {r for r in p.w if r[0] == "s" or r == ("x", "vcc")}
    if p.valu:
        if c.mfma and vw & c.r:
            n = max(n, 2)
        if c.valu and vw & c.r:
            if p.trans and not c.trans:
                n = max(n, 1)
            if c.op.startswith("v_permlane") or c.dpp:
                n = max(n, 2)
            if c.op.startswith(("v_readfirstlane", "v_readlane")):
                n = max(n, 1)
        if p.dot and vw & (c.r | c.w):
            if c.op == p.op:
                others = set().union(*[regs(o) for o in c.ops[1:3]])
                if vw & others:
                    n = max(n, 3)
            else:
                n = max(n, 3)
        if sw:
            if c.vmem and sw & c.r:
                n = max(n, 5)
            if c.valu and sw & c.r:
                n = max(n, 4 if c.op.startswith(("v_readlane", "v_writelane")) else 2)
            if c.salu and sw & c.r:
                n = max(n, 1)
        if p.trans and (c.vmem or c.ds) and vw & c.r:
            n = max(n, 1)
    if p.mfma:
        big = 12 if p.passes == 8 else 8
        if c.mfma:
            if p.w & (c.srcA | c.srcB):
                n = max(n, big)
            if p.w & c.srcC:
                if not (p.w == c.srcC and p.passes == c.passes):
                    n = max(n, big - 2)
        elif (c.valu or c.vmem or c.ds) and p.w & (c.r | c.w):
            n = max(n, big)
        if c.valu and p.srcC & c.w:
            n = max(n, 7 if p.passes == 8 else 3)
    if p.vmem and "store" in p.op and getattr(p, "wide", False):
        if p.data & c.w:
            n = max(n, 2 if c.valu else 1)
    if p.salu and ("x", "m0") in p.w and c.lds_dma:
        n = max(n, 1)
    return n


def check_hazards(ins, labels):
    succ, pred = cfg(ins, labels)
    errs = []
    for c in ins:
        stack = [(q, 0) for q in pred[c.idx]]
        seen = {}
        while stack:
            j, d = stack.pop()
            if seen.get(j, 99) <= d:
                continue
            seen[j] = d
            p = ins[j]
            k = need(p, c)
            if k > d:
                errs.append("hazard: need %d have %d: [%d] %s  ->  [%d] %s" % (k, d, j, p.text, c.idx, c.text))
            d2 = d + p.states()
            if d2 < 13:
                for q in pred[j]:
                    stack.append((q, d2))
    return errs


def check_waits(ins, labels, entries):
    succ, pred = cfg(ins, labels)
    errs = set()
    seen = set()
    stack = [(labels[e], (), (), None) for e in entries]
    steps = 0
    while stack:
        pc, vm, lg, vz = stack.pop()
        while True:
            key = (pc, vm, lg, vz)
            if key in seen:
                break
            seen.add(key)
            steps += 1
            if steps > 3000000:
                errs.add("wait checker: state explosion")
                return sorted(errs)
            x = ins[pc]
            if x.op == "s_waitcnt":
                t = x.text
                m = re.search(r"vmcnt\((\d+)\)", t)
                if m:
                    n = int(m.group(1))
                    vm = vm[len(vm) - n:] if n < len(vm) and n > 0 else (() if n == 0 else vm)
                m = re.search(r"lgkmcnt\((\d+)\)", t)
                if m:
                    n = int(m.group(1))
                    if n > 0 and any(e[0] == "smem" for e in lg):
                        ds = [e for e in lg if e[0] == "ds"]
                        keep = set(id(e) for e in ds[max(0, len(ds) - n):])
                        lg = tuple(e for e in lg if e[0] == "smem" or id(e) in keep)
                    else:
                        lg = lg[len(lg) - n:] if n < len(lg) and n > 0 else (() if n == 0 else lg)
            else:
                touched = x.r | x.w
                for q in (vm, lg):
                    for e in q:
                        ov = e[1] & touched
                        if ov:
                            if not (ov & x.r) and ((q is vm and x.vmem) or (q is lg and x.ds and e[0] == "ds")):
                                continue
                            errs.add("wait: [%d] %s touches %s still in flight from [%d] %s" % (pc, x.text, sorted(ov)[:2], e[2], ins[e[2]].text))
                if x.vmem:
                    vm = (vm + (("vm", frozenset(x.w), pc),))
                    if len(vm) > 63:
                        errs.add("vmcnt overflow at [%d] %s" % (pc, x.text))
                        vm = vm[-63:]
                elif x.ds:
                    lg = (lg + (("ds", frozenset(x.w), pc),))
                    if len(lg) > 40:
                        lg = lg[-40:]
                elif x.smem:
                    lg = (lg + (("smem", frozenset(x.w), pc),))
            if ("x", "vcc") in x.w:
                vz = None
            s = succ[pc]
            if not s:
                break
            if x.op in ("s_cbranch_vccz", "s_cbranch_vccnz"):
                tz = x.op.endswith("vccz")
                if vz is None:
                    stack.append((s[0], vm, lg, tz))
                    vz = not tz
                    pc = s[1]
                else:
                    pc = s[0] if vz == tz else s[1]
                continue
            for j in s[:-1]:
                stack.append((j, vm, lg, vz))
            pc = s[-1]
    return sorted(errs)


def check(asm, entries):
    ins, labels = parse(asm)
    e = check_hazards(ins, labels)
    e += check_waits(ins, labels, entries)
    return e


if __name__ == "__main__":
    asm = open(sys.argv[1]).read()
    errs = check(asm, sys.argv[2:])
    for e in errs:
        print(e)
    print("%d problems" % len(errs))
```

```python
import sys, os, math, struct
sys.path.insert(0, os.path.dirname(os.path.abspath(__file__)))
import check

NAME = "parallel_sum__softmax_full_mha__glu_gated_reglu__prompt"

F_EPOCH = 0
F1 = 0x40000
F2 = 0x60000
F3 = 0x80000
WS_STAMP = 0x10000
WS_Q = 1 << 20
WS_KV = 3 << 20
WS_O = 7 << 20
WS_H = 9 << 20
WS_SIZE = 17 << 20

L_W = 65536
L_FLAG = 65536
L_RING = 65536 + 256
L_ATT = 139264

S_X, S_WQ, S_WG, S_WU, S_WD, S_WO, S_OUT, S_WS, S_KV = 24, 28, 32, 36, 40, 44, 48, 52, 56
sW = 60
sRB, sCB, sHEAD, sQB, sRB2, sCB2, sCNT = 61, 62, 63, 64, 65, 66, 67
sA, sB, sC, sD, sE, sF = 68, 69, 70, 71, 72, 73
sOUT, sEP = 74, 75
sMASK = 76
gQ0, gQ1, gK0, gK1, gF1, gH0, gH1, gRING, gF2, gP2, gP3, gHL, gWD, gTT = 4, 5, 6, 7, 8, 12, 13, 14, 15, 16, 17, 18, 19, 20
gHL0, gWD0, gROT2 = 56, 57, 58
sROT = 21
vEP, vZ = 110, 111
aQ0, aQ1, aO0, aO1, aF3, aP1 = 4, 5, 6, 7, 8, 9
POLL_LIMIT = 0x40000


def f2u(x):
    return struct.unpack("<I", struct.pack("<f", x))[0]


def vr(b, n=1):
    return "v%d" % b if n == 1 else "v[%d:%d]" % (b, b + n - 1)


def sr(b, n=1):
    return "s%d" % b if n == 1 else "s[%d:%d]" % (b, b + n - 1)


class G:
    def __init__(self, opts):
        self.L = []
        self.cold = []
        self.o = opts
        self.cc = " sc1"
        self.lc = opts.get("ldmod", " sc1")
        self.fs = opts["logfs"]

    def __call__(self, *lines):
        for l in lines:
            self.L.extend(l.split("\n"))

    def s(self, fmt, *a):
        self(fmt % a)

    def label(self, n):
        self.L.append(n + ":")

    def mfma(self, d, a, b, c=None):
        cs = "0" if c == 0 else vr(d, 16)
        self("v_mfma_f32_32x32x16_bf16 %s, %s, %s, %s" % (vr(d, 16), vr(a, 4), vr(b, 4), cs))

    def srd(self, s, ptr, nbytes):
        self("s_mov_b32 s%d, s%d" % (s, ptr), "s_mov_b32 s%d, s%d" % (s + 1, ptr + 1),
             "s_mov_b32 s%d, 0x%x" % (s + 2, nbytes), "s_mov_b32 s%d, 0x20000" % (s + 3))

    def shladd(self, d, a, k, b):
        if isinstance(b, str):
            self("s_lshl_b32 s%d, s%d, %d" % (d, a, k), "s_add_u32 s%d, s%d, %s" % (d, d, b))
        elif d != b and 1 <= k <= 4:
            self("s_lshl%d_add_u32 s%d, s%d, s%d" % (k, d, a, b))
        elif 1 <= k <= 4:
            self("s_lshl%d_add_u32 s%d, s%d, s%d" % (k, d, a, b))
        else:
            assert d != b
            self("s_lshl_b32 s%d, s%d, %d" % (d, a, k), "s_add_u32 s%d, s%d, s%d" % (d, d, b))

    def stamp(self, slot, grp="main"):
        if self.o.get("stamps") and (slot in (0, 11) or grp == self.o.get("diag", "main")):
            self("%s s[%d:%d]" % ("s_memtime" if self.o.get("stamps") == 2 else "s_memrealtime", 78 + 2 * slot, 79 + 2 * slot))

    def stamp_init(self):
        if self.o.get("stamps"):
            for k in range(1, 12):
                self("s_mov_b32 s%d, 0" % (78 + 2 * k))

    def stamp_dump(self):
        if not self.o.get("stamps"):
            return
        g = self
        g("s_waitcnt vmcnt(0)")
        g.stamp(11)
        g("s_lshl_b32 s3, s2, 3", "s_add_u32 s3, s3, s11", "s_lshl_b32 s3, s3, 6",
          "s_add_u32 s3, s3, 0x%x" % WS_STAMP, "s_waitcnt lgkmcnt(0)", "v_mov_b32 v1, 0", "s_mov_b64 exec, 1")
        for k in range(12):
            g("v_mov_b32 v2, s%d" % (78 + 2 * k), "buffer_store_dword v2, v1, %s, s3 offen offset:%d" % (sr(S_WS, 4), 4 * k))

    def prologue(self, end, gemm):
        g = self
        g.stamp(0)
        g("s_cmp_ge_u32 s2, 0x100", "s_cbranch_scc1 %s" % end)
        g("s_load_dwordx4 s[4:7], s[0:1], 0", "s_load_dwordx2 s[22:23], s[0:1], 72", "s_load_dwordx2 s[8:9], s[0:1], 16",
          "s_load_dwordx8 s[12:19], s[0:1], 32")
        g.stamp_init()
        g("v_lshrrev_b32 v1, 6, v0", "v_and_b32 v0, 63, v0")
        g("s_and_b32 s3, s2, 7", "s_lshr_b32 s10, s2, 3")
        g("v_readfirstlane_b32 s11, v1")
        lc = g.o["lognc"]
        g("s_and_b32 s%d, s3, %d" % (sCB, (8 >> lc) - 1), "s_lshl_b32 s%d, s%d, %d" % (sCB, sCB, lc), "s_and_b32 s%d, s10, %d" % (sA, (1 << lc) - 1),
          "s_or_b32 s%d, s%d, s%d" % (sCB, sCB, sA))
        g("s_lshr_b32 s%d, s3, %d" % (sRB, 3 - lc), "s_lshl_b32 s%d, s%d, %d" % (sRB, sRB, 5 - lc), "s_lshr_b32 s%d, s10, %d" % (sA, lc),
          "s_or_b32 s%d, s%d, s%d" % (sRB, sRB, sA))
        if g.o["rot"]:
            g("s_and_b32 s%d, s10, %d" % (sROT, (1 << lc) - 1), "s_lshl_b32 s%d, s%d, %d" % (sROT, sROT, 3 - lc), "s_add_u32 s%d, s%d, s%d" % (sROT, sROT, sA),
              "s_and_b32 s%d, s%d, 7" % (sROT, sROT))
        else:
            g("s_mov_b32 s%d, 0" % sROT)
        if g.o["codepf"]:
            g("s_getpc_b64 s[56:57]")
            g.label("L_pc")
            g("s_mov_b32 s58, L_code_end-L_pc", "s_mov_b32 s59, 0x20000", "s_lshl3_add_u32 s%d, s10, s11" % sB, "s_lshl_b32 s%d, s%d, 7" % (sB, sB))
            g("buffer_load_dword v255, off, s[56:59], s%d" % sB)
        g("s_and_b32 s%d, s11, 3" % sW)
        g("s_cmp_ge_u32 s11, 4", "s_cbranch_scc1 %s" % gemm)

    def epoch_load(self):
        self("s_load_dword s%d, s[22:23], 0x%x" % (sEP, F_EPOCH))

    def epoch_make(self):
        self("s_mul_i32 s%d, s%d, 0x19660d" % (sEP, sEP), "s_add_u32 s%d, s%d, 0x3c6ef35f" % (sEP, sEP))

    def flag_regs(self, ve, vz):
        self("v_mov_b32 v%d, s%d" % (ve, sEP), "v_mov_b32 v%d, 0" % vz)

    def flag_store(self, soff, ve=vEP, vz=vZ):
        self("s_mov_b64 exec, 1", "buffer_store_dword v%d, v%d, %s, s%d offen sc1" % (ve, vz, sr(S_WS, 4), soff), "s_mov_b64 exec, -1")

    def poll(self, name, voff, soff, vtmp, sleep):
        g = self
        g("s_mov_b32 s3, 0")
        g.label("L_poll_" + name)
        g("buffer_load_dword v%d, v%d, %s, s%d offen sc1" % (vtmp, voff, sr(S_WS, 4), soff), "s_add_u32 s3, s3, 1", "s_waitcnt vmcnt(0)")
        g("v_cmp_ne_u32 vcc, s%d, v%d" % (sEP, vtmp), "s_cmp_gt_u32 s3, 0x%x" % POLL_LIMIT, "s_cbranch_vccz L_polld_" + name)
        g("s_cbranch_scc1 L_polld_" + name)
        if sleep:
            g("s_sleep %d" % sleep)
        g("s_branch L_poll_" + name)
        g.label("L_polld_" + name)

    def role_ln(self):
        g = self
        X = lambda e, i: 16 + 32 * e + 4 * i
        SUM, SQ = (6, 8), (7, 9)
        RI, NB = (10, 12), (11, 13)
        T = 80
        lc = g.o["lognc"]
        g("v_lshrrev_b32 v2, 3, v0", "v_and_b32 v3, 7, v0")
        g("v_lshlrev_b32 v4, 10, v2", "v_lshl_add_u32 v4, v3, 4, v4")
        g.shladd(sA, sRB, 2, sW)
        g("s_lshl_b32 s%d, s%d, 14" % (sA, sA), "s_lshl_b32 s%d, s%d, 7" % (sB, sROT), "s_add_u32 s%d, s%d, s%d" % (sA, sA, sB), "v_add_u32 v14, 0x2000, v4")
        for i in range(8):
            g("s_xor_b32 s%d, s%d, 0x%x" % (28 + i, sA, 128 * i))
        g("s_waitcnt lgkmcnt(0)")
        g.srd(S_X, 4, 2048 * 1024)
        g.stamp(1)
        for i in range(8):
            for e in range(2):
                g("buffer_load_dwordx4 %s, v%d, %s, s%d offen" % (vr(X(e, i), 4), (4, 14)[e], sr(S_X, 4), 28 + i))
        def warm_all():
            nm = (S_WG, 12, 512 * 3584, 7168), (S_WU, 14, 512 * 3584, 7168), (S_WD, 16, 1792 * 1024, 7168), (S_WO, 8, 512 * 1024, 2048)
            if g.o["warmA"] < 4:
                g("s_cmp_ge_u32 s%d, %d" % (sW, g.o["warmA"]), "s_cbranch_scc1 L_ln_nw")
            g("s_mov_b32 s36, s12", "s_mov_b32 s37, s13", "s_mov_b32 s38, 0x%x" % (512 * 3584), "s_mov_b32 s39, 0x20000", "s_movk_i32 s%d, 0x1c00" % sB)
            for k in range(1, g.o["warmA"]):
                g("s_cmp_eq_u32 s%d, %d" % (sW, k), "s_cselect_b32 s36, s%d, s36" % nm[k][1], "s_cselect_b32 s37, s%d, s37" % (nm[k][1] + 1),
                  "s_cselect_b32 s38, 0x%x, s38" % nm[k][2], "s_cselect_b32 s%d, 0x%x, s%d" % (sB, nm[k][3], sB))
            g("s_mul_i32 s%d, s%d, s2" % (sE, sB), "s_sub_u32 s%d, s%d, 128" % (sB, sB), "v_lshlrev_b32 v15, 7, v0", "v_min_u32 v15, s%d, v15" % sB)
            g("buffer_load_dword v13, v15, s[36:39], s%d offen" % sE)
            g.label("L_ln_nw")
        g.stamp(1, "ln")
        if g.o["barP"]:
            g("s_barrier")
        g.epoch_load()
        g.srd(S_WS, 22, WS_SIZE)
        g("s_and_b32 s%d, s10, 3" % sA)
        g.shladd(sHEAD, 3, 2, sA)
        g("s_lshr_b32 s%d, s10, 2" % sQB)
        g("v_xor_b32 v5, v2, v3", "v_lshlrev_b32 v5, 4, v5", "v_lshl_add_u32 v5, v3, 9, v5")
        g("s_lshr_b32 s%d, s%d, 1" % (sC, sW), "s_lshl_b32 s%d, s%d, 15" % (sC, sC),
          "s_and_b32 s%d, s%d, 1" % (sD, sW), "s_lshl_b32 s%d, s%d, 8" % (sD, sD), "s_add_u32 s%d, s%d, s%d" % (sC, sC, sD))
        g("v_add_u32 v5, s%d, v5" % sC)
        g("s_mov_b32 s%d, 0x3f803f80" % sC, "s_mov_b32 s%d, 0xffff0000" % sD)
        for r in (6, 7, 8, 9):
            g("v_mov_b32 v%d, 0" % r)
        for i in range(8):
            for e in range(2):
                g("s_waitcnt vmcnt(%d)" % (15 - 2 * i - e + 0))
                if e == 0 and i in (0, 4):
                    g.stamp(2 + i // 4, "ln")
                for k in range(4):
                    x = X(e, i) + k
                    g("v_dot2c_f32_bf16 v%d, s%d, v%d" % (SUM[e], sC, x), "v_dot2c_f32_bf16 v%d, v%d, v%d" % (SQ[e], x, x))
        g.stamp(2)
        g.stamp(4, "ln")
        g("s_nop 0")
        for dpp in ("quad_perm:[1,0,3,2]", "quad_perm:[2,3,0,1]", "row_half_mirror"):
            for r in (6, 7, 8, 9):
                g("v_add_f32_dpp v%d, v%d, v%d %s row_mask:0xf bank_mask:0xf" % (r, r, r, dpp))
        inv = "0x%x" % f2u(1.0 / 512)
        eps = "0x%x" % f2u(1e-5)
        for e in range(2):
            g("v_mul_f32 v%d, %s, v%d" % (SUM[e], inv, SUM[e]), "v_mul_f32 v%d, %s, v%d" % (SQ[e], inv, SQ[e]))
        for e in range(2):
            g("v_fma_f32 v%d, -v%d, v%d, v%d" % (SQ[e], SUM[e], SUM[e], SQ[e]))
        for e in range(2):
            g("v_max_f32 v%d, 0, v%d" % (SQ[e], SQ[e]))
        for e in range(2):
            g("v_cvt_pk_bf16_f32 v%d, v%d, v%d" % (SQ[e], SUM[e], SQ[e]))
        for e in range(2):
            g("v_lshlrev_b32 v%d, 16, v%d" % (SUM[e], SQ[e]), "v_and_b32 v%d, s%d, v%d" % (SQ[e], sD, SQ[e]))
        for e in range(2):
            g("v_add_f32 v%d, %s, v%d" % (SQ[e], eps, SQ[e]))
        g("v_cvt_pk_bf16_f32 v7, v7, v9", "v_and_b32 v9, s%d, v7" % sD, "v_lshlrev_b32 v7, 16, v7")
        g("v_sqrt_f32 v7, v7", "v_sqrt_f32 v9, v9", "s_nop 0")
        g("v_cvt_pk_bf16_f32 v7, v7, v9", "v_and_b32 v9, s%d, v7" % sD, "v_lshlrev_b32 v7, 16, v7")
        g("v_rcp_f32 v%d, v7" % RI[0], "v_rcp_f32 v%d, v9" % RI[1], "s_nop 0")
        for e in range(2):
            g("v_mul_f32 v%d, v%d, v%d" % (NB[e], SUM[e], RI[e]))
        g.stamp(5, "ln")

        def chunk(i, pk):
            for e in range(2):
                x = X(e, i)
                for k in range(4):
                    g("v_lshlrev_b32 v%d, 16, v%d" % (T + 2 * k, x + k), "v_and_b32 v%d, s%d, v%d" % (T + 2 * k + 1, sD, x + k))
                for k in range(4):
                    t = T + 2 * k
                    if pk:
                        g("v_pk_fma_f32 %s, %s, %s, %s op_sel:[0,0,1] op_sel_hi:[1,0,1] neg_lo:[0,0,1] neg_hi:[0,0,1]" % (vr(t, 2), vr(t, 2), vr(RI[e], 2), vr(RI[e], 2)))
                    else:
                        g("v_fma_f32 v%d, v%d, v%d, -v%d" % (t, t, RI[e], NB[e]), "v_fma_f32 v%d, v%d, v%d, -v%d" % (t + 1, t + 1, RI[e], NB[e]))
                for k in range(4):
                    g("v_cvt_pk_bf16_f32 v%d, v%d, v%d" % (x + k, T + 2 * k, T + 2 * k + 1))
                g("ds_write_b128 v5, %s offset:%d" % (vr(x, 4), i * 4096 + e * 128))
        sched = g.o["lnsched"]
        done = 0
        for i in range(8):
            for _ in range(sched[i]):
                chunk(done, g.o["lnpk"] == 2 or (g.o["lnpk"] == 1 and i == 0))
                done += 1
                if done % 2 == 0:
                    g.stamp(5 + done // 2, "ln")
            assert done > i
            if i == 7:
                g.shladd(sA, sW, 2, "0x%x" % L_FLAG)
                g("v_mov_b32 v14, s%d" % sA, "v_mov_b32 v15, 0", "ds_write_b32 v14, v15")
            if sched[i] or i == 7:
                g("s_waitcnt lgkmcnt(0)")
            if i == 0:
                g.stamp(3)
            g.stamp(i + 1, "qkv")
            g("s_barrier")
            if i == 0:
                g.epoch_make()
            if g.o["warmA"] and i == g.o["warmAt"]:
                warm_all()
            if g.o["warm_gu"] and i == g.o["warm_gu"]:
                rows = 4 << lc
                g.srd(S_WG, 12, 512 * 3584)
                g.srd(S_WU, 14, 512 * 3584)
                g("s_lshr_b32 s%d, s10, %d" % (sA, lc))
                g.shladd(sA, sA, 2, sW)
                g("s_mul_i32 s%d, s%d, 0x%x" % (sA, sA, rows * 3584), "s_lshl_b32 s%d, s%d, 9" % (sB, sCB), "s_add_u32 s%d, s%d, s%d" % (sE, sA, sB))
                g("v_lshrrev_b32 v14, 2, v0", "v_and_b32 v14, %d, v14" % (min(rows, 16) - 1), "v_mul_u32_u24 v14, 0xe00, v14", "v_and_b32 v15, 3, v0",
                  "v_lshl_add_u32 v14, v15, 7, v14")
                g("s_cmp_eq_u32 s%d, 7" % sCB, "s_cbranch_scc1 L_ln_nowarm")
                for rep in range(max(1, rows // 16)):
                    if rep:
                        g("s_add_u32 s%d, s%d, 0x%x" % (sE, sE, 16 * 3584))
                    g("buffer_load_dword v12, v14, %s, s%d offen" % (sr(S_WG, 4), sE), "buffer_load_dword v13, v14, %s, s%d offen" % (sr(S_WU, 4), sE))
                g.label("L_ln_nowarm")
        assert done == 8

    def role_attn(self):
        g = self
        O = lambda i: 128 + 16 * i
        Q = lambda i: 16 + 4 * i
        S = (32, 48)
        P = 64
        KB = lambda b: (72 + 12 * b) if b < 4 else (192 + 12 * (b - 4))
        VB = lambda b, t: KB(b) + 4 + 4 * t
        cc = g.cc
        fs = g.fs
        g("v_lshlrev_b32 v4, 4, v0")
        g("v_lshrrev_b32 v1, 5, v0", "v_and_b32 v2, 15, v0", "v_lshlrev_b32 v2, 4, v2", "v_lshl_add_u32 v5, v1, 8, v2")
        g("s_and_b32 s%d, s%d, 1" % (sA, sW), "s_lshr_b32 s%d, s%d, 1" % (sB, sW))
        g.shladd(sC, sQB, 1, sA)
        g("s_lshl_b32 s%d, s%d, 2" % (sC, sC), "s_lshl_b32 s%d, s%d, 6" % (sD, sHEAD))
        g("s_lshl_b32 s%d, s%d, 5" % (sA, sB), "s_add_u32 s%d, s%d, s%d" % (sA, sA, sD), "s_lshl_b32 s%d, s%d, 11" % (sA, sA),
          "s_add_u32 s%d, s%d, 0x%x" % (sA, sA, WS_KV))
        g("s_add_u32 s%d, s22, s%d" % (S_KV, sA), "s_addc_u32 s%d, s23, 0" % (S_KV + 1), "s_mov_b32 s%d, 0x10000" % (S_KV + 2),
          "s_mov_b32 s%d, 0x20000" % (S_KV + 3))
        g.shladd(sE, sB, 1, sC)
        g("s_xor_b32 s%d, s%d, 2" % (sF, sE), "s_add_u32 s%d, s%d, 0x%x" % (sD, sD, WS_Q >> 10))
        g("s_add_u32 s%d, s%d, s%d" % (aQ0, sE, sD), "s_lshl_b32 s%d, s%d, 10" % (aQ0, aQ0))
        g("s_add_u32 s%d, s%d, s%d" % (aQ1, sF, sD), "s_lshl_b32 s%d, s%d, 10" % (aQ1, aQ1))
        g.shladd(aO0, sE, 5, sHEAD)
        g.shladd(aO0, aO0, 10, "0x%x" % WS_O)
        g("s_add_u32 s%d, s%d, 0x8000" % (aO1, aO0))
        g.shladd(aF3, sE, 4, sHEAD)
        g.shladd(aF3, aF3, fs, "0x%x" % F3)
        if g.o["f1wg"]:
            g("s_lshr_b32 s%d, s%d, 2" % (aP1, sHEAD))
            g.shladd(aP1, aP1, 5 + fs, "0x%x" % F1)
            g("v_and_b32 v6, 31, v0", "v_lshlrev_b32 v6, %d, v6" % fs)
        else:
            g("s_lshr_b32 s%d, s%d, 1" % (aP1, sHEAD))
            g.shladd(aP1, aP1, 6 + fs, "0x%x" % F1)
            g("v_lshlrev_b32 v6, %d, v0" % fs)
        g("s_mov_b32 s%d, 0xffff" % sMASK, "s_mov_b32 s%d, 0xffff" % (sMASK + 1))
        g("v_and_b32 v2, 27, v0", "v_mov_b32 v3, 0x3f803f80", "v_cmp_eq_u32 vcc, 16, v2", "s_mov_b32 s%d, %d" % (sCNT, g.o.get("x_attn_it", 32 // g.o["kvbuf"])), "s_mov_b32 s%d, 0" % sD,
          "v_cndmask_b32 v2, 0, v3, vcc")
        g("s_xor_b32 s%d, s%d, 2" % (sA, sW), "s_mul_i32 s%d, s%d, 0x1200" % (sB, sA), "s_add_u32 s%d, s%d, 0x%x" % (sB, sB, L_ATT))
        g("s_mul_i32 s%d, s%d, 0x1200" % (sC, sW), "s_add_u32 s%d, s%d, 0x%x" % (sC, sC, L_ATT))
        g("v_add_u32 v120, s%d, v4" % sB, "v_add_u32 v121, s%d, v4" % sC)
        g("v_lshlrev_b32 v8, 2, v0", "v_add_u32 v122, s%d, v8" % sB, "v_add_u32 v123, s%d, v8" % sC)
        g.shladd(sA, sA, 2, "0x%x" % L_FLAG)
        g("v_mov_b32 v124, s%d" % sA, "s_xor_b32 s%d, s%d, 8" % (sA, sA), "v_mov_b32 v125, s%d" % sA)
        g.flag_regs(126, 127)
        g("s_barrier")
        for b in range(g.o["kvbuf"]):
            for k in range(8):
                g("v_mov_b32 v%d, v2" % (VB(b, 0) + k))
        for k in range(64):
            g("v_mov_b32 v%d, 0" % (O(0) + k))
        if g.o["f1wg"]:
            g("s_barrier")
        g("s_setprio %d" % g.o.get("aprio", 2))
        g.stamp(4)
        g.stamp(1, "f1")
        if g.o["presleep"]:
            g("s_sleep %d" % g.o["presleep"])
        g.poll("qkv", 6, aP1, 7, g.o["sleep1"])
        g.stamp(5)
        g.stamp(3, "f1")
        if g.o.get("diag") == "f1":
            g("s_waitcnt lgkmcnt(0)", "s_mul_i32 s3, s3, 100", "s_add_u32 s82, s78, s3")
        NB = g.o["kvbuf"]
        NS = 4 * NB

        def qload(i):
            return "buffer_load_dwordx4 %s, v4, %s, s%d offen offset:%d%s" % (vr(Q(i), 4), sr(S_WS, 4), aQ0 + (i >> 1), (i & 1) * 1024, g.lc)

        def loads(b0):
            L = []
            for t in range(2):
                L.append("buffer_load_dwordx4 %s, v4, %s, s%d offen offset:%d%s" % (vr(KB(b0 + t), 4), sr(S_KV, 4), sD, t * 2048, g.lc))
            L.append("s_mov_b64 exec, %s" % sr(sMASK, 2))
            for t in range(2):
                for hh in range(2):
                    L.append("buffer_load_dwordx4 %s, v5, %s, s%d offen offset:%d%s" % (vr(VB(b0 + t, hh), 4), sr(S_KV, 4), sD, t * 2048 + 1024 + hh * 512, g.lc))
            L.append("s_mov_b64 exec, -1")
            if g.o["kvrot"]:
                L.append("s_add_u32 s12, s12, 0x1000\ns_xor_b32 s%d, s12, s13" % sD)
            else:
                L.append("s_add_u32 s%d, s%d, 0x1000" % (sD, sD))
            return L
        if g.o["kvrot"]:
            g("s_mov_b32 s12, 0", "s_lshl_b32 s13, s%d, 13" % sQB, "s_mov_b32 s%d, s13" % sD)
        L0 = loads(0)
        g(qload(0), L0[0], qload(1), qload(2), qload(3), *L0[1:])
        ahead = NB // 2 - 2
        npre = g.o["kvpre"]
        for p in range(1, NB // 2 - 1):
            if p == npre and g.o["gu_wait"]:
                g("s_barrier")
            g(*loads(2 * p))
        if npre >= NB // 2 - 1 and g.o["gu_wait"]:
            g("s_barrier")
        g("s_mov_b64 vcc, -1")
        g("s_waitcnt vmcnt(%d)" % (8 + 6 * ahead))
        g.mfma(S[0], KB(0), Q(0), 0)
        g("s_nop 11")
        g.stamp(6)
        g.stamp(9, "att")
        g.stamp(4, "f1")
        order = g.o["order"].split()

        def step(n, skip_pv=False, only=None):
            pn, nn = (n - 1) % NS, (n + 1) % NS
            X = loads((n // 4 - 2) % NB) if n % 8 == 0 else None
            if g.o.get("x_nokv"):
                X = None
            s0 = S[n & 1]
            for t in (order if only is None else only):
                if t == "A":
                    if not skip_pv:
                        g.mfma(O(pn & 3), VB(pn >> 2, 0), P)
                elif t == "B":
                    if not skip_pv:
                        g.mfma(O(pn & 3), VB(pn >> 2, 1), P + 4)
                elif t == "S":
                    if n % 8 == 7:
                        g("s_waitcnt vmcnt(%d)" % ((3 if g.o.get("x_halfkv") else 6) * ahead))
                    g.mfma(S[nn & 1], KB(nn >> 2), Q(nn & 3), 0)
                elif t == "|":
                    if n == 0 and only is None:
                        g.label("L_at_entry")
                elif t[0] == "x":
                    if X and g.o.get("x_halfkv"):
                        g(*{"x0": X[0:1], "x1": [], "x2": X[2:5] + X[7:8], "x3": X[8:9]}[t])
                    elif X and g.o["kvskip"] and n > 0 and NS - n <= 8 * (ahead + 1):
                        if t == "x2":
                            left = (NS - n) // 8 - 2
                            g("s_cbranch_vccz L_kvs_%d" % n)
                            g(*X)
                            g.label("L_kvr_%d" % n)
                            g.cold.append(("L_kvs_%d" % n, "s_waitcnt vmcnt(%d)" % (6 * max(left, 0)), "L_kvr_%d" % n))
                    elif X:
                        g(*{"x0": X[0:1], "x1": X[1:2], "x2": X[2:8], "x3": X[8:9]}[t])
                    if n == NS - 1 and t == "x0":
                        g("s_sub_u32 s%d, s%d, 1" % (sCNT, sCNT))
                        if g.o["kvskip"]:
                            g("s_cmp_eq_u32 s%d, 1" % sCNT, "s_cselect_b64 vcc, 0, -1")
                elif t[0] == "e":
                    k = int(t[1:])
                    g("v_exp_f32 v%d, v%d" % (s0 + k, s0 + k))
                elif t[0] == "c":
                    k = int(t[1:])
                    g("v_cvt_pk_bf16_f32 v%d, v%d, v%d" % (P + k, s0 + 2 * k, s0 + 2 * k + 1))
        step(0, skip_pv=True, only=order[:order.index("|")])
        g("s_waitcnt vmcnt(%d)" % (6 * ahead), "s_branch L_at_entry")
        g(".p2align 6")
        g.label("L_at_loop")
        for n in range(NS):
            step(n)
            if g.o.get("diag") == "att" and n % 16 == 15:
                g("s_waitcnt lgkmcnt(0)")
                for k in range(1, 9):
                    g("s_mov_b32 s%d, s%d" % (78 + 2 * k, 80 + 2 * k))
                g.stamp(9, "att")
        g("s_cmp_lg_u32 s%d, 0" % sCNT, "s_cbranch_scc1 L_at_loop")
        g.mfma(O(3), VB(NB - 1, 0), P)
        g.mfma(O(3), VB(NB - 1, 1), P + 4)
        g("s_waitcnt vmcnt(0)")
        g.stamp(7)
        g("ds_write_b128 v120, %s" % vr(O(2), 4), "ds_write_b128 v120, %s offset:1024" % vr(O(2) + 4, 4), "ds_write_b32 v122, v%d offset:2048" % (O(2) + 8))
        g("v_mov_b32 v12, 1", "s_mov_b32 s3, 0", "s_nop 5")
        g("ds_write_b128 v120, %s offset:2304" % vr(O(3), 4), "ds_write_b128 v120, %s offset:3328" % vr(O(3) + 4, 4),
          "ds_write_b32 v122, v%d offset:4352" % (O(3) + 8))
        g("s_waitcnt lgkmcnt(0)", "ds_write_b32 v124, v12")
        g.label("L_pair")
        g("ds_read_b32 v12, v125", "s_add_u32 s3, s3, 1", "s_waitcnt lgkmcnt(0)", "v_cmp_ne_u32 vcc, 1, v12", "s_cmp_gt_u32 s3, 0x%x" % (POLL_LIMIT * 8),
          "s_cbranch_vccz L_paird", "s_cbranch_scc0 L_pair")
        g.label("L_paird")
        g.stamp(8)
        T = 32
        g("ds_read_b128 %s, v121" % vr(T, 4), "ds_read_b128 %s, v121 offset:1024" % vr(T + 4, 4), "ds_read_b32 v%d, v123 offset:2048" % (T + 8))
        g("ds_read_b128 %s, v121 offset:2304" % vr(T + 12, 4), "ds_read_b128 %s, v121 offset:3328" % vr(T + 16, 4), "ds_read_b32 v%d, v123 offset:4352" % (T + 20))
        g("s_waitcnt lgkmcnt(3)")
        for k in (8, 0, 1, 2, 3, 4, 5, 6, 7):
            g("v_add_f32 v%d, v%d, v%d" % (O(0) + k, O(0) + k, T + k))
        g("s_waitcnt lgkmcnt(0)")
        for k in (8, 0, 1, 2, 3, 4, 5, 6, 7):
            g("v_add_f32 v%d, v%d, v%d" % (O(1) + k, O(1) + k, T + 12 + k))
        g("v_subrev_u32 v10, 0x21800000, v%d" % (O(0) + 8), "v_subrev_u32 v11, 0x21800000, v%d" % (O(1) + 8), "v_max_u32 v10, v10, v11")
        g("v_cmp_lt_u32 vcc, 0x3c000000, v10", "s_nop 1", "s_and_b64 vcc, exec, vcc", "s_cbranch_vccnz L_at_slow")
        g.label("L_at_norm")
        g("v_rcp_f32 v10, v%d" % (O(0) + 8), "v_rcp_f32 v11, v%d" % (O(1) + 8), "s_nop 0")
        for i in range(2):
            for k in range(8):
                g("v_mul_f32 v%d, v%d, v%d" % (O(i) + k, O(i) + k, 10 + i))
            for k in range(4):
                g("v_cvt_pk_bf16_f32 v%d, v%d, v%d" % (T + 4 * i + k, O(i) + 2 * k, O(i) + 2 * k + 1))
            g("buffer_store_dwordx4 %s, v4, %s, s%d offen%s" % (vr(T + 4 * i, 4), sr(S_WS, 4), aO0 + i, cc))
        g.stamp(9)
        g("s_waitcnt vmcnt(0)")
        g.stamp(10)
        g.flag_store(aF3, 126, 127)

    def role_attn_slow(self):
        g = self
        O = lambda i: 128 + 16 * i
        Q = lambda i: 16 + 4 * i
        S0, P, KB0, V0, V1 = 32, 64, 72, 76, 80
        cc = g.cc
        g.label("L_at_slow")
        g("s_lshl_b32 s%d, s%d, 17" % (sC, sHEAD), "s_add_u32 s%d, s%d, 0x%x" % (sC, sC, WS_KV))
        g("s_add_u32 s%d, s22, s%d" % (S_KV, sC), "s_addc_u32 s%d, s23, 0" % (S_KV + 1), "s_mov_b32 s%d, 0x20000" % (S_KV + 2),
          "s_mov_b32 s%d, 0x20000" % (S_KV + 3))
        g("s_mov_b32 s%d, 0" % sCNT)
        g.label("L_sl_tile")
        g("v_mov_b32 v12, 0xff800000", "s_mov_b32 s%d, 0" % sD)
        g.label("L_sl_max")
        g("buffer_load_dwordx4 %s, v4, %s, s%d offen%s" % (vr(KB0, 4), sr(S_KV, 4), sD, cc), "s_waitcnt vmcnt(0)")
        g.mfma(S0, KB0, Q(0), 0)
        g("s_nop 11")
        for k in range(8):
            g("v_max3_f32 v12, v12, v%d, v%d" % (S0 + 2 * k, S0 + 2 * k + 1))
        g("s_add_u32 s%d, s%d, 0x800" % (sD, sD), "s_cmp_lt_u32 s%d, 0x20000" % sD, "s_cbranch_scc1 L_sl_max")
        g("v_mov_b32 v13, v12", "s_nop 1", "v_permlane32_swap_b32 v12, v13", "s_nop 1", "v_max_f32 v12, v12, v13")
        for k in range(16):
            g("v_mov_b32 v%d, 0" % (O(0) + k))
        g("s_mov_b32 s%d, 0" % sD)
        g.label("L_sl_acc")
        g("buffer_load_dwordx4 %s, v4, %s, s%d offen%s" % (vr(KB0, 4), sr(S_KV, 4), sD, cc))
        g("s_mov_b64 exec, %s" % sr(sMASK, 2))
        g("buffer_load_dwordx4 %s, v5, %s, s%d offen offset:1024%s" % (vr(V0, 4), sr(S_KV, 4), sD, cc))
        g("buffer_load_dwordx4 %s, v5, %s, s%d offen offset:1536%s" % (vr(V1, 4), sr(S_KV, 4), sD, cc))
        g("s_mov_b64 exec, -1", "s_waitcnt vmcnt(0)")
        g.mfma(S0, KB0, Q(0), 0)
        g("s_nop 11")
        for k in range(16):
            g("v_sub_f32 v%d, v%d, v12" % (S0 + k, S0 + k))
        for k in range(16):
            g("v_exp_f32 v%d, v%d" % (S0 + k, S0 + k))
        g("s_nop 0")
        for k in range(8):
            g("v_cvt_pk_bf16_f32 v%d, v%d, v%d" % (P + k, S0 + 2 * k, S0 + 2 * k + 1))
        g("s_nop 1")
        g.mfma(O(0), V0, P)
        g.mfma(O(0), V1, P + 4)
        g("s_add_u32 s%d, s%d, 0x800" % (sD, sD), "s_cmp_lt_u32 s%d, 0x20000" % sD, "s_cbranch_scc1 L_sl_acc")
        g("s_nop 11")
        g("s_cmp_eq_u32 s%d, 1" % sCNT, "s_cbranch_scc1 L_sl_done")
        for k in range(9):
            g("v_mov_b32 v%d, v%d" % (O(2) + k, O(0) + k))
        for k in range(4):
            g("v_mov_b32 v%d, v%d" % (Q(0) + k, Q(1) + k))
        g("s_mov_b32 s%d, 1" % sCNT, "s_branch L_sl_tile")
        g.label("L_sl_done")
        for k in range(9):
            g("v_mov_b32 v%d, v%d" % (O(1) + k, O(0) + k), "v_mov_b32 v%d, v%d" % (O(0) + k, O(2) + k))
        g("s_branch L_at_norm")

    def role_qkv(self):
        g = self
        AQ, AK, AV = 16, 32, 48
        WB = (128, 144, 160)
        XB = (140, 156, 172)
        vXr = 4
        vT = (8, 9)
        vD = 96
        lc = g.o["lognc"]
        fs = g.fs
        g("v_lshrrev_b32 v2, 3, v0", "v_lshrrev_b32 v1, 2, v0", "v_and_b32 v1, 4, v1", "v_xor_b32 v3, v0, v1", "v_and_b32 v12, 7, v3")
        g("s_lshl_b32 s%d, s%d, 4" % (sA, sW), "v_add_u32 v3, s%d, v2" % sA, "v_mul_u32_u24 v3, 0xc00, v3")
        g("s_lshl_b32 s%d, s%d, 7" % (sA, sCB), "v_lshl_add_u32 v3, v12, 4, v3", "v_add_u32 v%d, s%d, v3" % (vD, sA))
        for seg in range(3):
            for e in range(2):
                if seg or e:
                    g("v_add_u32 v%d, 0x%x, v%d" % (vD + 2 * seg + e, seg * 1024 + e * (8 * 3072 - 1024), vD))
        g("s_mul_i32 s%d, s%d, 0x1800" % (sC, sW), "s_add_u32 s%d, s%d, 0x%x" % (sC, sC, L_W))

        def dma(st, seg):
            L = []
            if seg == 0:
                L += ["s_xor_b32 s%d, s%d, %d" % (sCNT, sROT, st), "s_mul_i32 s%d, s%d, 0x%x" % (sCNT, sCNT, 64 * 3072)]
            L.append("s_add_u32 m0, s%d, 0x%x" % (sC, (st & 3) * 24576 + seg * 2048))
            L.append("s_nop 0")
            L.append("buffer_load_dwordx4 v%d, %s, s%d offen lds" % (vD + 2 * seg, sr(S_WQ, 4), sCNT))
            L.append("buffer_load_dwordx4 v%d, %s, s%d offen offset:1024 lds" % (vD + 2 * seg + 1, sr(S_WQ, 4), sCNT))
            return L
        g("s_waitcnt lgkmcnt(0)")
        g.srd(S_WQ, 6, 512 * 3072)
        g.stamp(1)
        g.epoch_load()
        g.srd(S_X, 4, 2048 * 1024)
        g.srd(S_WG, 12, 512 * 3584)
        g.srd(S_WU, 14, 512 * 3584)
        g.srd(S_WD, 16, 1792 * 1024)
        g.srd(S_WO, 8, 512 * 1024)
        g.srd(S_OUT, 18, 2048 * 1024)
        g.srd(S_WS, 22, WS_SIZE)
        def first_dma():
            g.stamp(1, "ln")
            if g.o["barP"]:
                g("s_barrier")
            for st in range(2):
                for seg in range(3):
                    g(*dma(st, seg))
            g.stamp(2, "ln")
        if g.o["dma_first"]:
            first_dma()
        g("s_lshr_b32 s%d, s10, 3" % sA)
        g.shladd(sRB2, 3, 2, sA)
        g("s_and_b32 s%d, s10, 7" % sCB2)
        g("s_add_u32 s%d, s%d, s%d" % (gROT2, sA, sCB2), "s_and_b32 s%d, s%d, %d" % (gROT2, gROT2, 3 if g.o["rot"] else 0))
        g("v_lshrrev_b32 v1, 5, v0", "v_lshlrev_b32 v10, 4, v0")
        g("s_and_b32 s%d, s%d, 1" % (sA, sW), "s_lshl_b32 s%d, s%d, 15" % (gTT, sA))
        g("v_xor_b32 v3, v0, v1")
        for q in range(4):
            g("v_xor_b32 v15, %d, v3" % (2 * q), "v_lshlrev_b32 v15, 4, v15", "v_add_u32 v15, 0x%x, v15" % (q * 1024),
              "v_add_u32 v%d, s%d, v15" % (vXr + q, gTT))
        g("v_bfe_u32 v104, v0, 2, 2", "v_bfe_u32 v105, v0, 3, 1", "v_bfe_u32 v106, v0, 4, 1", "v_and_b32 v107, 3, v0", "v_lshlrev_b32 v107, 3, v107")
        g("v_lshl_add_u32 v108, v1, 3, v104", "v_lshl_add_u32 v108, v108, 7, v107")
        g("v_lshl_add_u32 v107, v106, 5, v107")
        g("s_lshr_b32 s%d, s%d, 1" % (sB, sW), "v_xor_b32 v3, s%d, v105" % sB, "v_lshl_add_u32 v3, v3, 6, v108", "v_lshl_add_u32 v3, v106, 5, v3")
        g("v_add_u32 v%d, 0x%x, v3" % (vT[0], L_W), "v_add_u32 v%d, 0x%x, v3" % (vT[1], L_W + 49152))
        g.shladd(sD, sRB, 1, sA)
        g("s_and_b32 s%d, s%d, 2" % (sE, sW))
        g.shladd(sE, sCB, 2, sE)
        g.shladd(sF, sE, 6, sD)
        g.shladd(gQ0, sF, 10, "0x%x" % WS_Q)
        g("s_add_u32 s%d, s%d, 0x10000" % (gQ1, gQ0))
        g.shladd(gK0, sF, 11, "0x%x" % WS_KV)
        g("s_add_u32 s%d, s%d, 0x20000" % (gK1, gK0))
        if g.o["f1wg"]:
            g.shladd(gF1, sCB, 5, sRB)
        else:
            g.shladd(gF1, sE, 5, sD)
        g.shladd(gF1, gF1, fs, "0x%x" % F1)
        g("v_lshlrev_b32 v3, 17, v106", "v_lshl_add_u32 v3, v1, 8, v3", "v_and_b32 v15, 15, v0", "v_lshl_add_u32 v11, v15, 4, v3")
        g.shladd(gRING, sW, 14, "0x%x" % L_RING)
        g.shladd(sD, sCB, 2, sW)
        g("s_lshl_b32 s%d, s%d, 7" % (sE, sD), "v_mul_u32_u24 v3, 0xe00, v2", "v_add_u32 v3, s%d, v3" % sE)
        g("v_lshlrev_b32 v15, 1, v106", "v_xor_b32 v15, v15, v0", "v_and_b32 v15, 7, v15")
        g("v_lshl_add_u32 v116, v15, 4, v3", "v_xor_b32 v15, 4, v15", "v_lshl_add_u32 v118, v15, 4, v3")
        g("v_add_u32 v117, 0x%x, v116" % (8 * 3584 - 1024), "v_add_u32 v119, 0x%x, v118" % (8 * 3584 - 1024))
        g("v_lshl_add_u32 v3, v106, 11, v108", "v_add_u32 v3, s%d, v3" % gRING, "v_lshl_add_u32 v109, v106, 1, v105")
        for j in range(4):
            g("v_xor_b32 v15, %d, v109" % j, "v_lshl_add_u32 v%d, v15, 5, v3" % (112 + j))
        g("s_mul_i32 s%d, s%d, 224" % (sE, sRB))
        g.shladd(gH0, sD, 2, sE)
        g.shladd(gH0, gH0, 10, "0x%x" % WS_H)
        g("s_add_u32 s%d, s%d, 0x%x" % (gH1, gH0, 112 * 1024))
        g.shladd(gF2, sRB, 5, sD)
        g.shladd(gF2, gF2, fs, "0x%x" % F2)
        g("s_mul_i32 s%d, s%d, 0x%x" % (sD, sB, 112 * 1024), "v_add_u32 v120, s%d, v10" % sD, "s_xor_b32 s%d, s%d, 0x%x" % (sD, sD, 112 * 1024),
          "v_add_u32 v121, s%d, v10" % sD)
        g("s_mul_i32 s%d, s%d, 0x%x" % (gHL0, sRB2, 224 * 1024), "s_mul_i32 s%d, s%d, 0x%x" % (sD, sW, 28 * 1024),
          "s_add_u32 s%d, s%d, s%d" % (gHL0, gHL0, sD), "s_add_u32 s%d, s%d, 0x%x" % (gHL0, gHL0, WS_H))
        g("s_mul_i32 s%d, s%d, 0x%x" % (gWD0, sW, 28 * 16384))
        g("v_lshl_add_u32 v3, v1, 2, v104", "v_lshl_add_u32 v3, v3, 7, v107", "v_add_u32 v3, s%d, v3" % gRING, "v_xor_b32 v15, s%d, v105" % sA)
        g("v_lshl_add_u32 v122, v15, 6, v3", "v_xor_b32 v15, 1, v15", "v_lshl_add_u32 v123, v15, 6, v3")
        g("v_lshlrev_b32 v3, 10, v2", "v_lshl_add_u32 v3, v12, 4, v3", "s_lshl_b32 s%d, s%d, 7" % (sD, sCB2), "v_add_u32 v124, s%d, v3" % sD,
          "v_add_u32 v125, 0x1c00, v124")
        g("v_and_b32 v3, 31, v0", "v_lshlrev_b32 v3, 10, v3", "v_lshl_add_u32 v126, v1, 3, v3", "v_lshl_add_u32 v127, v1, 4, v3")
        g.shladd(sD, sRB2, 1, sB)
        g.shladd(sE, sCB2, 1, sA)
        g("s_lshl_b32 s%d, s%d, 15" % (sD, sD), "s_lshl_b32 s%d, s%d, 6" % (sE, sE), "s_add_u32 s%d, s%d, s%d" % (sOUT, sD, sE))
        g("s_mul_i32 s%d, s%d, 7" % (sD, sW))
        g.shladd(gP2, sRB2, 5, sD)
        g.shladd(gP2, gP2, fs, "0x%x" % F2)
        g.shladd(gP3, sRB2, 2, sW)
        g.shladd(gP3, gP3, 3 + fs, "0x%x" % F3)
        g("s_mov_b32 s%d, 0x%x" % (sF, f2u(0.25 * math.log2(math.e))))
        if not g.o["dma_first"]:
            first_dma()
        g("s_setprio 1")

        def reads(n):
            if n >= 32:
                return []
            st, ks = n >> 2, n & 3
            b = n % 3
            slot = st & 3
            L = ["ds_read_b128 %s, v%d offset:%d" % (vr(XB[b], 4), vXr + ks, st * 4096)]
            for seg in range(3):
                for p in range(2):
                    L.append("ds_read_b64_tr_b16 %s, v%d offset:%d" % (vr(WB[b] + 4 * seg + 2 * p, 2), vT[slot >> 1],
                                                                      (slot & 1) * 24576 + ks * 6144 + seg * 2048 + p * 512))
            return L

        def mm(n):
            b = n % 3
            c = 0 if n == 0 else None
            return [(AK, WB[b] + 4, XB[b], c), (AV, XB[b], WB[b] + 8, c), (AQ, WB[b], XB[b], c)]
        g("s_waitcnt vmcnt(6) lgkmcnt(0)")
        g.epoch_make()
        g.flag_regs(vEP, vZ)
        g.stamp(3, "ln")
        g.stamp(2)
        g("s_barrier")
        g.stamp(3)
        g(*reads(0))
        g(*reads(1))
        refill = {}
        for st, n0 in ((2, 0), (3, 3), (4, 6), (5, 10), (6, 14), (7, 18)):
            for seg in range(3):
                refill[n0 + seg] = (st, seg)
        for n in range(32):
            st, ks = n >> 2, n & 3
            M = mm(n)
            R = reads(n + 2)
            D = dma(*refill[n]) if n in refill and not g.o.get("x_nodmaq") else []
            if ks == 2 and st < 7:
                vm = {0: 4, 6: 0}.get(st, 6)
                g("s_waitcnt vmcnt(%d) lgkmcnt(7)" % vm)
                if st in (0, 3, 4):
                    g.stamp({0: 2, 3: 5, 4: 8}[st], "qkv")
                g("s_barrier")
                if st in (0, 3, 4):
                    g.stamp({0: 3, 3: 6, 4: 9}[st], "qkv")
            elif n == 31:
                g("s_waitcnt lgkmcnt(0)", "s_barrier")
            else:
                g("s_waitcnt lgkmcnt(7)")
            g.mfma(*M[0])
            g(*R[:4])
            g.mfma(*M[1])
            g(*R[4:])
            g(*D[:-1])
            g.mfma(*M[2])
            g(*D[-1:])
        g.stamp(4)
        g.stamp(10, "qkv")
        g.stamp(1, "f1")
        P = 64
        for q in range(4):
            g("v_subrev_u32 v%d, s%d, v%d" % (vXr + q, gTT, vXr + q))
        g("s_mul_i32 s%d, s%d, 0x%x" % (sD, sROT, 64 * 3584), "s_nop 4")
        for k in range(8):
            g("v_cvt_pk_bf16_f32 v%d, v%d, v%d" % (P + 8 + k, AK + 2 * k, AK + 2 * k + 1))
            if k == 3:
                g("buffer_store_dwordx4 %s, v10, %s, s%d offen%s" % (vr(P + 8, 4), sr(S_WS, 4), gK0, g.cc))
        g("buffer_store_dwordx4 %s, v10, %s, s%d offen%s" % (vr(P + 12, 4), sr(S_WS, 4), gK1, g.cc))
        for k in range(8):
            g("v_cvt_pk_bf16_f32 v%d, v%d, v%d" % (P + 16 + k, AV + 2 * k, AV + 2 * k + 1))
            if k == 3:
                g("buffer_store_dwordx4 %s, v11, %s, s%d offen offset:1024%s" % (vr(P + 16, 4), sr(S_WS, 4), gK0, g.cc))
        g("buffer_store_dwordx4 %s, v11, %s, s%d offen offset:1536%s" % (vr(P + 20, 4), sr(S_WS, 4), gK0, g.cc))
        for k in range(8):
            g("v_mul_f32 v%d, s%d, v%d" % (AQ + 2 * k, sF, AQ + 2 * k), "v_mul_f32 v%d, s%d, v%d" % (AQ + 2 * k + 1, sF, AQ + 2 * k + 1))
            g("v_cvt_pk_bf16_f32 v%d, v%d, v%d" % (P + k, AQ + 2 * k, AQ + 2 * k + 1))
            if k == 3:
                g("buffer_store_dwordx4 %s, v10, %s, s%d offen%s" % (vr(P, 4), sr(S_WS, 4), gQ0, g.cc))
        g("buffer_store_dwordx4 %s, v10, %s, s%d offen%s" % (vr(P + 4, 4), sr(S_WS, 4), gQ1, g.cc))
        g.stamp(2, "f1")

    def f1_signal(self, tag):
        g = self
        g.stamp(4, "f1")
        if g.o["f1wg"]:
            g("s_barrier", "s_cmp_lg_u32 s%d, 0" % sW, "s_cbranch_scc1 L_f1_%s" % tag)
            g.flag_store(gF1)
            g.label("L_f1_%s" % tag)
        else:
            g.flag_store(gF1)
        g.stamp(5)
        g.stamp(5, "f1")
        if g.o.get("diag") == "f1":
            g("s_waitcnt vmcnt(0)")
            g.stamp(6, "f1")

    def role_gu(self, done):
        g = self
        ACC = lambda tt, j: 128 + 16 * (4 * tt + j)
        AB = (16, 32)
        BB = (48, 56)
        vXr, vTg, vG = 4, 112, 116
        lc = g.o["lognc"]
        sOFF = 4
        fine = g.o["fine"] and lc < 2
        g("s_waitcnt vmcnt(0)")
        g.f1_signal("a")
        if fine:
            g("s_lshr_b32 s%d, s10, %d" % (sA, lc + 3))
            if lc == 1:
                g("s_lshl_b32 s%d, s%d, 1" % (sA, sA))
            g("s_mul_i32 s%d, s%d, 0x420" % (sB, sA))
            for u in range(4):
                g("v_xor_b32 v%d, s%d, v%d" % (vXr + u, sB, vXr + u), "s_xor_b32 s%d, s%d, %d" % (sOFF + u, sA, u), "s_mul_i32 s%d, s%d, 0x%x" % (sOFF + u, sOFF + u, 16 * 3584))
        else:
            for u in range(4):
                g("s_mov_b32 s%d, 0x%x" % (sOFF + u, u * 16 * 3584))
        if g.o["gu_wait"]:
            g("s_barrier")
        g("s_cmp_lg_u32 s%d, 7" % sCB, "s_cbranch_scc1 L_gu_go")
        if g.o["mallwarm"]:
            g.shladd(sA, sRB, 2, sW)
            g("v_lshlrev_b32 v2, 7, v0", "s_mul_i32 s%d, s%d, 0x3800" % (sB, sA), "s_add_u32 s%d, s%d, 0x1800" % (sE, sB), "s_lshl_b32 s%d, s%d, 12" % (sA, sA),
              "v_and_b32 v3, 0xf80, v2", "s_sleep %d" % g.o["mallwarm"])
            g("buffer_load_dword v12, v2, %s, s%d offen" % (sr(S_WD, 4), sB), "s_waitcnt vmcnt(0)", "buffer_load_dword v12, v2, %s, s%d offen" % (sr(S_WD, 4), sE),
              "s_waitcnt vmcnt(0)", "buffer_load_dword v12, v3, %s, s%d offen" % (sr(S_WO, 4), sA), "s_waitcnt vmcnt(0)")
        g("s_branch %s" % done)
        g.label("L_gu_go")

        def dma(slot):
            L = []
            for gg in range(2):
                L.append(["s_add_u32 m0, s%d, 0x%x" % (gRING, slot * 4096 + gg * 2048),
                          "s_add_u32 s%d, s%d, s%d" % (sE, sD, sOFF + slot) if gg == 0 else "s_nop 0",
                          "buffer_load_dwordx4 v%d, %s, s%d offen lds" % (vG + 2 * gg, sr(S_WG + 4 * gg, 4), sE),
                          "buffer_load_dwordx4 v%d, %s, s%d offen offset:1024 lds" % (vG + 2 * gg + 1, sr(S_WG + 4 * gg, 4), sE)])
            return L
        nfirst = (1 << lc) if fine else 4
        for s in range(4):
            if s == nfirst:
                g("s_waitcnt vmcnt(0)")
            elif s:
                g("s_waitcnt vmcnt(%d)" % g.o["thr_gu0"])
            for x in dma(s):
                g(*x)

        def reads(u):
            b = u & 1
            L = []
            L.append("ds_read_b128 %s, v%d offset:%d" % (vr(BB[b], 4), vXr + u, 0))
            for p in range(2):
                L.append("ds_read_b64_tr_b16 %s, v%d offset:%d" % (vr(AB[b] + 2 * p, 2), vTg, u * 4096 + p * 512))
            L.append("ds_read_b128 %s, v%d offset:%d" % (vr(BB[b] + 4, 4), vXr + u, 32768))
            for j in range(1, 4):
                for p in range(2):
                    L.append("ds_read_b64_tr_b16 %s, v%d offset:%d" % (vr(AB[b] + 4 * j + 2 * p, 2), vTg + j, u * 4096 + p * 512))
            return L
        kb = g.o["gboost"]
        th = g.o["thr_gu"]

        def step(u, first=False):
            b = u & 1
            c = 0 if first else None
            M = [(ACC(tt, j), AB[b] + 4 * j, BB[b] + 4 * tt, c) for j in range(4) for tt in range(2)]
            R = reads((u + 1) & 3)
            D = dma(u)

            def mf(i):
                if kb and i == 8 - kb:
                    g("s_setprio 3")
                g.mfma(*M[i])
                if kb and i == 7:
                    g("s_setprio 0")
            g("s_waitcnt lgkmcnt(0)")
            mf(0)
            if u == 0:
                g("s_xor_b32 s%d, s%d, s%d" % (sD, sCNT, sROT), "s_mul_i32 s%d, s%d, 0x%x" % (sD, sD, 64 * 3584))
            if u == 3:
                g("s_setprio 3")
                for q in range(4):
                    g("v_add_u32 v%d, 0x1000, v%d" % (vXr + q, vXr + q))
                g("s_setprio 0")
            g("s_waitcnt vmcnt(%d)" % th)
            g(*D[0])
            g(*R[0:3])
            mf(1)
            g(*R[3:6])
            mf(2)
            g(*R[6:8])
            mf(3)
            g(*R[8:10])
            mf(4)
            g("s_waitcnt vmcnt(%d)" % th)
            g(*D[1])
            mf(5)
            mf(6)
            mf(7)
        g("s_waitcnt vmcnt(12)")
        g.stamp(6)
        g.stamp(6, "att")
        g(*reads(0))
        g("s_mov_b32 s%d, 1" % sCNT, "s_setprio 0")
        step(0, first=True)
        g("s_branch L_gu_1")
        g.label("L_gu_0")
        step(0)
        g.label("L_gu_1")
        step(1)
        step(2)
        step(3)
        g("s_add_u32 s%d, s%d, 1" % (sCNT, sCNT), "s_cmp_lg_u32 s%d, 9" % sCNT, "s_cbranch_scc1 L_gu_0")
        g("s_waitcnt vmcnt(0) lgkmcnt(0)", "s_setprio 3")
        g.stamp(7)
        g.stamp(7, "att")
        g.stamp(1, "f2")
        g.down_first(g.o["dn_pre"])
        g("s_nop 5")
        order = [(tt, j) for j in range(4) for tt in range(2)]
        for n, (tt, j) in enumerate(order):
            a = ACC(tt, j)
            P = 16 + 4 * n
            for k in range(8):
                g("v_max_f32 v%d, 0, v%d" % (a + k, a + k))
            for k in range(8):
                g("v_mul_f32 v%d, v%d, v%d" % (a + k, a + k, a + 8 + k))
            for k in range(4):
                g("v_cvt_pk_bf16_f32 v%d, v%d, v%d" % (P + k, a + 2 * k, a + 2 * k + 1))
            if n > g.o["thr_st"]:
                g("s_waitcnt vmcnt(%d)" % g.o["thr_st"])
            g("buffer_store_dwordx4 %s, v10, %s, s%d offen offset:%d%s" % (vr(P, 4), sr(S_WS, 4), gH0 + tt, j * 1024, g.cc))
        g.stamp(2, "f2")
        g("s_waitcnt vmcnt(0)")
        g.stamp(3, "f2")
        g.flag_store(gF2)
        g("s_branch L_down2")
        g.label(done)
        g.down_first(g.o["dn_pre"])
        g.label("L_down2")

    def wdma(self, slot, srd, soff, inc):
        return ["s_add_u32 m0, s%d, 0x%x" % (gRING, slot * 2048), "s_nop 0",
                "buffer_load_dwordx4 v124, %s, s%d offen lds" % (sr(srd, 4), soff),
                "buffer_load_dwordx4 v125, %s, s%d offen offset:1024 lds" % (sr(srd, 4), soff),
                "s_add_u32 s%d, s%d, 0x%x" % (soff, soff, inc)]

    def round_base(self, r):
        R = 7
        return ["s_xor_b32 s%d, s%d, %d" % (sA, gROT2, r), "s_mul_i32 s%d, s%d, 0x%x" % (gWD, sA, R * 16384), "s_add_u32 s%d, s%d, s%d" % (gWD, gWD, gWD0),
                "s_mul_i32 s%d, s%d, 0x%x" % (gHL, sA, R * 1024), "s_add_u32 s%d, s%d, s%d" % (gHL, gHL, gHL0)]

    def down_first(self, n):
        g = self
        g("s_setprio 3")
        g(*g.round_base(0))
        for s in range(n):
            g(*g.wdma(s, S_WD, gWD, 16384))

    def role_down(self):
        g = self
        ACC = lambda ln, lt: 128 + 16 * (ln + 2 * lt)
        HB = lambda slot, lt: 32 + 8 * slot + 4 * lt
        AB = (16, 24)
        vH = (120, 121)
        vT = (122, 123)
        cc = g.cc
        fs = g.fs
        R = 7

        wdma = g.wdma
        round_base = g.round_base

        def hload(slot):
            if g.o.get("x_noh"):
                return ["buffer_load_dword v2, off, %s, 0" % sr(S_OUT, 4), "buffer_load_dword v2, off, %s, 0" % sr(S_OUT, 4), "s_nop 0"]
            return ["buffer_load_dwordx4 %s, v120, %s, s%d offen%s" % (vr(HB(slot, 0), 4), sr(S_WS, 4), gHL, g.lc),
                    "buffer_load_dwordx4 %s, v121, %s, s%d offen%s" % (vr(HB(slot, 1), 4), sr(S_WS, 4), gHL, g.lc),
                    "s_add_u32 s%d, s%d, 0x400" % (gHL, gHL)]
        for s in range(g.o["dn_pre"], R):
            g("s_waitcnt vmcnt(%d)" % g.o["thr_d0"])
            g(*wdma(s, S_WD, gWD, 16384))
        for i in range(4):
            g("buffer_load_dwordx2 %s, v126, %s, s%d offen offset:%d" % (vr(96 + 2 * i, 2), sr(S_X, 4), sOUT, 16 * i))
        g.stamp(4, "f2")
        g("v_min_u32 v2, 6, v0", "v_lshlrev_b32 v2, %d, v2" % fs)
        if not g.o.get("x_nof2"):
            g.poll("h", 2, gP2, 3, g.o["sleep2"])
        else:
            g("s_waitcnt vmcnt(0)")
        g.stamp(8)
        g.stamp(8, "att")
        g.stamp(5, "f2")
        for s in range(R):
            if s:
                g("s_waitcnt vmcnt(%d)" % g.o["thr_h0"])
            g(*hload(s))
        g("s_mov_b32 s%d, 0xffff0000" % sA)
        for k in range(8):
            g("v_lshlrev_b32 v%d, 16, v%d" % (ACC(0, 0) + 2 * k, 96 + k), "v_and_b32 v%d, s%d, v%d" % (ACC(0, 0) + 2 * k + 1, sA, 96 + k))

        def treads(slot, b):
            return ["ds_read_b64_tr_b16 %s, v%d offset:%d" % (vr(AB[b] + 4 * ln + 2 * p, 2), vT[ln], slot * 2048 + p * 1024)
                    for ln in range(2) for p in range(2)]

        def mms(hslot, b, first=False):
            return [(ACC(ln, lt), AB[b] + 4 * ln, HB(hslot, lt), (0 if first and (ln or lt) else None)) for ln in range(2) for lt in range(2)]
        g(*treads(0, 0))
        g("s_setprio %d" % g.o["dprio"])
        g.stamp(6, "f2")

        def step(u, par, vmwait, refill, first=False, nxt=None, rnd=0):
            M = mms(u, par, first)
            g("s_waitcnt vmcnt(%d) lgkmcnt(0)" % vmwait)
            Rd = treads(nxt, par ^ 1) if nxt is not None else []
            g.mfma(*M[0])
            g(*Rd)
            g.mfma(*M[1])
            thr = g.o["thr_d"][rnd]
            if thr is not None and refill:
                g("s_waitcnt vmcnt(%d)" % thr)
            g(*refill[:4])
            g.mfma(*M[2])
            g.mfma(*M[3])
            if thr is not None and len(refill) > 5:
                g("s_waitcnt vmcnt(%d)" % thr)
            g(*refill[4:])
        g(*round_base(1))
        for s in range(R):
            need = 2 * (R - 1 - s) + 4 * s
            if s == R - 1:
                need = min(need, 4 * (R - 2) + 2)
            step(s, s & 1, need, wdma(s, S_WD, gWD, 16384) + hload(s), first=(s == 0), nxt=(s + 1) % R)
        for it in range(2):
            g(*round_base(it + 2))
            for s in range(R):
                gs = R * (it + 1) + s
                step(s, gs & 1, 4 * (R - 2) + 2, wdma(s, S_WD, gWD, 16384) + hload(s), nxt=(s + 1) % R, rnd=it + 1)
        g("s_lshl_b32 s%d, s%d, 17" % (sF, sW))
        for s in range(R):
            gs = 3 * R + s
            if s < R - 1:
                step(s, gs & 1, 2 + 4 * (R - 2 - s) + 2 * s, wdma(s, S_WO, sF, 16384), nxt=s + 1, rnd=3)
            else:
                step(s, gs & 1, 2 * s, wdma(s, S_WO, sF, 16384), rnd=3)
        g.stamp(9)
        g.stamp(9, "att")
        g("s_setprio 3")
        g(*wdma(7, S_WO, sF, 16384))
        g("s_lshl_b32 s%d, s%d, 16" % (sE, sRB2), "s_lshl_b32 s%d, s%d, 13" % (sB, sW), "s_add_u32 s%d, s%d, s%d" % (sE, sE, sB),
          "s_add_u32 s%d, s%d, 0x%x" % (sE, sE, WS_O), "s_add_u32 s%d, s%d, 0x1000" % (sB, sE))
        g("s_lshr_b32 s%d, s%d, 1" % (sA, sW), "s_lshl_b32 s%d, s%d, 15" % (sA, sA), "v_add_u32 v120, s%d, v10" % sA,
          "s_xor_b32 s%d, s%d, 0x8000" % (sA, sA), "v_add_u32 v121, s%d, v10" % sA)
        g("v_add_u32 v4, s%d, v10" % gRING)
        for k in range(1, 4):
            g("s_xor_b32 s%d, s%d, %d" % (sA, sW, k))
            g.shladd(sA, sA, 14, "0x%x" % L_RING)
            g("v_add_u32 v%d, s%d, v10" % (4 + k, sA))
        g("v_and_b32 v2, 7, v0", "v_lshlrev_b32 v2, %d, v2" % fs, "s_waitcnt vmcnt(0)")
        g(*treads(0, 0))
        g.poll("o", 2, gP3, 3, g.o["sleep3"])
        g.stamp(10)
        for s in range(8):
            for lt in range(2):
                g("buffer_load_dwordx4 %s, v%d, %s, s%d offen offset:%d%s" % (vr(HB(s, lt), 4), vH[lt], sr(S_WS, 4), sE if s < 4 else sB, (s & 3) * 1024, g.lc))
        for s in range(8):
            step(s, s & 1, 14 - 2 * s, [], nxt=(s + 1 if s < 7 else None))
        g("s_nop 9")
        for k in (2, 1, 3):
            a = ACC(k & 1, k >> 1)
            for i in range(4):
                g("ds_write_b128 v4, %s offset:%d" % (vr(a + 4 * i, 4), (k - 1) * 4096 + i * 1024))
        g("s_waitcnt lgkmcnt(0)", "s_barrier")
        for k in range(1, 4):
            for i in range(4):
                g("ds_read_b128 %s, v%d offset:%d" % (vr(32 + 16 * (k - 1) + 4 * i, 4), 4 + k, (k - 1) * 4096 + i * 1024))
        a = ACC(0, 0)
        for k in range(1, 4):
            g("s_waitcnt lgkmcnt(%d)" % (4 * (3 - k)))
            for i in range(16):
                g("v_add_f32 v%d, v%d, v%d" % (a + i, a + i, 32 + 16 * (k - 1) + i))
        for k in range(8):
            g("v_cvt_pk_bf16_f32 v%d, v%d, v%d" % (16 + k, a + 2 * k, a + 2 * k + 1))
        g("s_lshl2_add_u32 s3, s2, s%d" % sW)
        g("v_permlane32_swap_b32 v16, v18", "v_permlane32_swap_b32 v17, v19", "v_permlane32_swap_b32 v20, v22", "v_permlane32_swap_b32 v21, v23")
        g("buffer_store_dwordx4 v[16:19], v127, %s, s%d offen" % (sr(S_OUT, 4), sOUT), "buffer_store_dwordx4 v[20:23], v127, %s, s%d offen offset:32" % (sr(S_OUT, 4), sOUT))
        g("s_cmp_lg_u32 s3, 0", "s_cbranch_scc1 L_dn_end", "s_mov_b32 s%d, 0x%x" % (sA, F_EPOCH))
        g.flag_store(sA)
        g.label("L_dn_end")


def probe_kernel(g, a, b, mult):
    kernel_head(g, "kp_kernel")
    g("s_cmp_ge_u32 s2, 1", "s_cbranch_scc1 L_kp_end")
    g("s_load_dwordx2 s[22:23], s[0:1], 72", "s_memrealtime s[30:31]", "s_waitcnt lgkmcnt(0)")
    g.srd(S_WS, 22, WS_SIZE)
    g("v_lshlrev_b32 v1, 9, v0")
    for n, (w, sl, op) in enumerate((a, b)):
        for q in range(4):
            g("s_mov_b32 s3, 0x%x" % (WS_STAMP + w * 64 + sl * 4 + q * 32768))
            g("buffer_load_dword v%d, v1, %s, s3 offen" % (4 + q, sr(S_WS, 4)))
        g("s_waitcnt vmcnt(0)")
        if op == "min":
            for q in range(4):
                g("v_subrev_u32 v%d, 1, v%d" % (4 + q, 4 + q))
        g("v_%s_u32 v4, v4, v5" % op, "v_%s_u32 v6, v6, v7" % op, "v_%s_u32 v4, v4, v6" % op, "s_nop 1")
        g("v_readlane_b32 s%d, v4, 0" % (40 + n))
        for l in range(1, 64):
            g("v_readlane_b32 s35, v4, %d" % l, "s_nop 0", "s_%s_u32 s%d, s%d, s35" % (op, 40 + n, 40 + n))
    g("s_sub_u32 s42, s41, s40", "s_mul_i32 s42, s42, %d" % mult, "s_min_u32 s42, s42, 100000")
    g.label("L_kp_spin")
    g("s_memrealtime s[32:33]", "s_waitcnt lgkmcnt(0)", "s_sub_u32 s34, s32, s30", "s_cmp_lt_u32 s34, s42", "s_cbranch_scc1 L_kp_spin")
    g.label("L_kp_end")
    g("s_endpgm")


HEADER = """; Kernarg layout (80 bytes, pointers only):
"""


def kd(name, vgpr=256, sgpr=102):
    return """.amdhsa_kernel %s
  .amdhsa_next_free_vgpr %d
  .amdhsa_next_free_sgpr %d
  .amdhsa_accum_offset %d
  .amdhsa_group_segment_fixed_size 0
  .amdhsa_kernarg_size 80
  .amdhsa_user_sgpr_count 2
  .amdhsa_user_sgpr_kernarg_segment_ptr 1
  .amdhsa_system_sgpr_workgroup_id_x 1
.end_amdhsa_kernel
""" % (name, vgpr, sgpr, (vgpr + 3) // 4 * 4)


def kernel_head(g, name):
    g(".globl %s" % name, ".p2align 8", ".type %s,@function" % name)
    g.label(name)


DEFAULT = dict(lognc=2, stamps=0, logfs=7, f1wg=1, rot=1, lnsched=(8, 0, 0, 0, 0, 0, 0, 0), lnpk=1, gu_wait=1, warm_gu=0, barP=1, dma_first=1,
               codepf=1, kvbuf=8, kvrot=0, kvpre=3, kvskip=1, fine=1, mallwarm=0, warmA=0, warmAt=6, dn_pre=0, thr_gu=4, thr_gu0=4, thr_st=4, thr_d0=4, thr_h0=4,
               thr_d=(4, 4, 4, 4), gboost=0, dprio=0, presleep=0, sleep1=1, sleep2=4, sleep3=2,
               order="A e0 e1 e2 B e3 e4 e5 | S c0 c1 e6 x0 e7 e8 x1 c2 c3 x2 e9 e10 e11 c4 x3 e12 e13 c5 e14 e15 c6 c7")


def build(opts, probe=None):
    o = dict(DEFAULT)
    o.update(opts)
    K = NAME + "_kernel"
    out = HEADER
    if probe:
        out += "; @launch kernel=%s grid=(256,1,1) block=(512,1,1) lds=163840\n; @launch kernel=kp_kernel grid=(256,1,1) block=(64,1,1) lds=0\n" % K
    else:
        out += "; @launch grid=(256,1,1) block=(512,1,1) lds=163840\n"
    out += '.amdgcn_target "amdgcn-amd-amdhsa--gfx950"\n.text\n'
    g = G(o)
    kernel_head(g, K)
    g.prologue("L_end", "L_gemm")
    g.role_ln()
    g.role_attn()
    g.stamp_dump()
    g.label("L_end")
    g("s_endpgm")
    for lab, ins, back in g.cold:
        g.label(lab)
        g(ins, "s_branch " + back)
    g(".p2align 6")
    g.label("L_gemm")
    g.role_qkv()
    g.role_gu("L_down")
    g.role_down()
    g.stamp_dump()
    g("s_endpgm")
    g.label("L_code_end")
    g.role_attn_slow()
    names = [K]
    if probe:
        probe_kernel(g, *probe)
        names.append("kp_kernel")
    body = "\n".join(("" if l.endswith(":") or l.startswith(".") else "  ") + l for l in g.L)
    out += body + "\n" + '.section .rodata,"a"\n'
    for n in names:
        out += ".p2align 6\n" + kd(n)
    return out, names


if __name__ == "__main__":
    dst = sys.argv[1]
    opts = eval("dict(%s)" % sys.argv[2]) if len(sys.argv) > 2 else {}
    probe = opts.pop("probe", None)
    asm, names = build(opts, probe)
    errs = check.check(asm, names)
    for e in errs[:6]:
        print(e)
    print("%s: %d checker problems, %d lines" % (dst, len(errs), asm.count("\n")))
    open(dst, "w").write(asm)
```

```python
import re, sys

TRANS = ("v_exp_", "v_log_", "v_rcp_", "v_rsq_", "v_sqrt_", "v_sin_", "v_cos_")


def regs(tok):
    tok = tok.strip()
    tok = tok.lstrip("-")
    m = re.fullmatch(r"abs\((.*)\)", tok) or re.fullmatch(r"\|(.*)\|", tok)
    if m:
        tok = m.group(1)
    m = re.fullmatch(r"([vsa])(\d+)", tok)
    if m:
        return {(m.group(1), int(m.group(2)))}
    m = re.fullmatch(r"([vsa])\[(\d+):(\d+)\]", tok)
    if m:
        return {(m.group(1), i) for i in range(int(m.group(2)), int(m.group(3)) + 1)}
    if tok in ("vcc", "vcc_lo", "vcc_hi"):
        return {("x", "vcc")}
    if tok in ("exec", "exec_lo", "exec_hi"):
        return {("x", "exec")}
    if tok == "m0":
        return {("x", "m0")}
    return set()


class I:
    def __init__(self, text, idx):
        self.text = text
        self.idx = idx
        p = text.split(None, 1)
        self.op = p[0]
        rest = p[1] if len(p) > 1 else ""
        self.ops = [o.strip() for o in rest.split(",")] if rest else []
        self.mods = ""
        if self.ops:
            q = self.ops[-1].split(None, 1)
            if len(q) > 1 and not self.op.startswith("s_waitcnt"):
                self.ops[-1] = q[0]
                self.mods = q[1]
        if "offset0" in rest:
            m = re.match(r"(.*?)\s+(offset0.*)$", rest)
            self.ops = [o.strip() for o in m.group(1).split(",")]
            self.mods = m.group(2)
        if "quad_perm" in rest or "op_sel" in rest or "neg_" in rest:
            m = re.match(r"(.*?)\s+((?:quad_perm|op_sel|neg_|row_).*)$", rest)
            self.ops = [o.strip() for o in m.group(1).split(",")]
            self.mods = m.group(2)
        op = self.op
        self.mfma = op.startswith("v_mfma") or op.startswith("v_smfmac")
        self.valu = op.startswith("v_") and not self.mfma
        self.trans = op.startswith(TRANS)
        self.dot = op.startswith("v_dot")
        self.ds = op.startswith("ds_")
        self.vmem = op.startswith("buffer_") or op.startswith("global_")
        self.smem = op.startswith("s_load") or op.startswith("s_memtime") or op.startswith("s_memrealtime")
        self.salu = op.startswith("s_") and not self.smem
        self.dpp = "quad_perm" in self.mods or "row_" in self.mods
        self.lds_dma = self.vmem and re.search(r"\blds\b", self.mods) is not None
        self.w, self.r = set(), set()
        self.srcA = self.srcB = self.srcC = self.addr = self.data = set()
        R = [regs(o) for o in self.ops]
        if self.mfma:
            self.w = R[0]
            self.srcA, self.srcB, self.srcC = R[1], R[2], R[3]
            self.r = R[1] | R[2] | R[3]
            self.passes = 8 if "32x32" in op else 4
        elif self.valu:
            if op == "v_nop":
                pass
            elif op.startswith("v_permlane") and "swap" in op:
                self.w = R[0] | R[1]
                self.r = R[0] | R[1]
            elif op.startswith(("v_add_co", "v_addc_co", "v_sub_co", "v_subb_co")):
                self.w = R[0] | R[1]
                self.r = set().union(*R[2:])
            else:
                self.w = R[0]
                self.r = set().union(*R[1:]) if len(R) > 1 else set()
                if op.startswith(("v_fmac", "v_dot2c", "v_writelane")) or self.dpp:
                    self.r |= R[0]
                if op.startswith("v_cndmask") and len(R) == 3:
                    self.r |= {("x", "vcc")}
        elif self.ds:
            if op.startswith("ds_read") or op.startswith("ds_bpermute") or "rtn" in op:
                self.w = R[0]
                self.r = set().union(*R[1:])
            else:
                self.r = set().union(*R)
        elif self.vmem:
            if op.startswith("buffer_inv") or op.startswith("buffer_wbl2"):
                pass
            elif self.lds_dma:
                self.r = set().union(*R) | {("x", "m0")}
            elif "load" in op:
                self.w = R[0]
                self.r = set().union(*R[1:])
            elif "store" in op:
                self.r = set().union(*R)
                self.data = R[0] if op.startswith("buffer_") else R[1]
                self.wide = op.endswith("x4") or op.endswith("x3")
            else:
                self.r = set().union(*R)
                if "sc0" in self.mods:
                    self.w = R[0]
        elif self.smem:
            self.w = R[0]
            self.r = set().union(*R[1:]) if len(R) > 1 else set()
        elif self.salu:
            if op.startswith(("s_cmp", "s_bitcmp")):
                self.r = set().union(*R)
            elif op.startswith(("s_waitcnt", "s_nop", "s_barrier", "s_endpgm", "s_branch", "s_cbranch", "s_setprio", "s_sleep")):
                if "vcc" in op:
                    self.r = {("x", "vcc")}
                if "exec" in op:
                    self.r = {("x", "exec")}
            elif "saveexec" in op:
                self.w = R[0] | {("x", "exec")}
                self.r = R[1] | {("x", "exec")}
            else:
                self.w = R[0] if R else set()
                self.r = set().union(*R[1:]) if len(R) > 1 else set()
                if op.startswith(("s_addk", "s_mulk", "s_cmov")):
                    self.r |= R[0]

    def states(self):
        if self.op == "s_nop":
            return int(self.ops[0], 0) + 1
        return 1


def parse(asm):
    ins, labels = [], {}
    in_text = True
    for raw in asm.splitlines():
        s = raw.split(";")[0].strip()
        if not s:
            continue
        if s.startswith(".section") or s.startswith(".amdhsa_kernel"):
            in_text = False
        if s == ".text":
            in_text = True
        if s.startswith(".") or not in_text:
            continue
        m = re.fullmatch(r"([\w.$]+):", s)
        if m:
            labels[m.group(1)] = len(ins)
            continue
        ins.append(I(s, len(ins)))
    return ins, labels


def cfg(ins, labels):
    succ = [[] for _ in ins]
    for i, x in enumerate(ins):
        if x.op == "s_endpgm":
            continue
        if x.op == "s_branch":
            succ[i].append(labels[x.ops[0]])
            continue
        if x.op.startswith("s_cbranch"):
            succ[i].append(labels[x.ops[0]])
        if i + 1 < len(ins):
            succ[i].append(i + 1)
    pred = [[] for _ in ins]
    for i, s in enumerate(succ):
        for j in s:
            pred[j].append(i)
    return succ, pred


def need(p, c):
    n = 0
    vw = {r for r in p.w if r[0] in "va"}
    sw = {r for r in p.w if r[0] == "s" or r == ("x", "vcc")}
    if p.valu:
        if c.mfma and vw & c.r:
            n = max(n, 2)
        if c.valu and vw & c.r:
            if p.trans and not c.trans:
                n = max(n, 1)
            if c.op.startswith("v_permlane") or c.dpp:
                n = max(n, 2)
            if c.op.startswith(("v_readfirstlane", "v_readlane")):
                n = max(n, 1)
        if p.dot and vw & (c.r | c.w):
            if c.op == p.op:
                others = set().union(*[regs(o) for o in c.ops[1:3]])
                if vw & others:
                    n = max(n, 3)
            else:
                n = max(n, 3)
        if sw:
            if c.vmem and sw & c.r:
                n = max(n, 5)
            if c.valu and sw & c.r:
                n = max(n, 4 if c.op.startswith(("v_readlane", "v_writelane")) else 2)
            if c.salu and sw & c.r:
                n = max(n, 1)
        if p.trans and (c.vmem or c.ds) and vw & c.r:
            n = max(n, 1)
    if p.mfma:
        big = 12 if p.passes == 8 else 8
        if c.mfma:
            if p.w & (c.srcA | c.srcB):
                n = max(n, big)
            if p.w & c.srcC:
                if not (p.w == c.srcC and p.passes == c.passes):
                    n = max(n, big - 2)
        elif (c.valu or c.vmem or c.ds) and p.w & (c.r | c.w):
            n = max(n, big)
        if c.valu and p.srcC & c.w:
            n = max(n, 7 if p.passes == 8 else 3)
    if p.vmem and "store" in p.op and getattr(p, "wide", False):
        if p.data & c.w:
            n = max(n, 2 if c.valu else 1)
    if p.salu and ("x", "m0") in p.w and c.lds_dma:
        n = max(n, 1)
    return n


def check_hazards(ins, labels):
    succ, pred = cfg(ins, labels)
    errs = []
    for c in ins:
        stack = [(q, 0) for q in pred[c.idx]]
        seen = {}
        while stack:
            j, d = stack.pop()
            if seen.get(j, 99) <= d:
                continue
            seen[j] = d
            p = ins[j]
            k = need(p, c)
            if k > d:
                errs.append("hazard: need %d have %d: [%d] %s  ->  [%d] %s" % (k, d, j, p.text, c.idx, c.text))
            d2 = d + p.states()
            if d2 < 13:
                for q in pred[j]:
                    stack.append((q, d2))
    return errs


def check_waits(ins, labels, entries):
    succ, pred = cfg(ins, labels)
    errs = set()
    seen = set()
    stack = [(labels[e], (), (), None) for e in entries]
    steps = 0
    while stack:
        pc, vm, lg, vz = stack.pop()
        while True:
            key = (pc, vm, lg, vz)
            if key in seen:
                break
            seen.add(key)
            steps += 1
            if steps > 3000000:
                errs.add("wait checker: state explosion")
                return sorted(errs)
            x = ins[pc]
            if x.op == "s_waitcnt":
                t = x.text
                m = re.search(r"vmcnt\((\d+)\)", t)
                if m:
                    n = int(m.group(1))
                    vm = vm[len(vm) - n:] if n < len(vm) and n > 0 else (() if n == 0 else vm)
                m = re.search(r"lgkmcnt\((\d+)\)", t)
                if m:
                    n = int(m.group(1))
                    if n > 0 and any(e[0] == "smem" for e in lg):
                        ds = [e for e in lg if e[0] == "ds"]
                        keep = set(id(e) for e in ds[max(0, len(ds) - n):])
                        lg = tuple(e for e in lg if e[0] == "smem" or id(e) in keep)
                    else:
                        lg = lg[len(lg) - n:] if n < len(lg) and n > 0 else (() if n == 0 else lg)
            else:
                touched = x.r | x.w
                for q in (vm, lg):
                    for e in q:
                        ov = e[1] & touched
                        if ov:
                            if not (ov & x.r) and ((q is vm and x.vmem) or (q is lg and x.ds and e[0] == "ds")):
                                continue
                            errs.add("wait: [%d] %s touches %s still in flight from [%d] %s" % (pc, x.text, sorted(ov)[:2], e[2], ins[e[2]].text))
                if x.vmem:
                    vm = (vm + (("vm", frozenset(x.w), pc),))
                    if len(vm) > 63:
                        errs.add("vmcnt overflow at [%d] %s" % (pc, x.text))
                        vm = vm[-63:]
                elif x.ds:
                    lg = (lg + (("ds", frozenset(x.w), pc),))
                    if len(lg) > 40:
                        lg = lg[-40:]
                elif x.smem:
                    lg = (lg + (("smem", frozenset(x.w), pc),))
            if ("x", "vcc") in x.w:
                vz = None
            s = succ[pc]
            if not s:
                break
            if x.op in ("s_cbranch_vccz", "s_cbranch_vccnz"):
                tz = x.op.endswith("vccz")
                if vz is None:
                    stack.append((s[0], vm, lg, tz))
                    vz = not tz
                    pc = s[1]
                else:
                    pc = s[0] if vz == tz else s[1]
                continue
            for j in s[:-1]:
                stack.append((j, vm, lg, vz))
            pc = s[-1]
    return sorted(errs)


def check(asm, entries):
    ins, labels = parse(asm)
    e = check_hazards(ins, labels)
    e += check_waits(ins, labels, entries)
    return e


if __name__ == "__main__":
    asm = open(sys.argv[1]).read()
    errs = check(asm, sys.argv[2:])
    for e in errs:
        print(e)
    print("%d problems" % len(errs))
```

```python
import sys, os, math, struct
sys.path.insert(0, os.path.dirname(os.path.abspath(__file__)))
import check

NAME = "parallel_sum__softmax_full_mha__glu_gated_reglu__prompt"

F_EPOCH = 0
F1 = 0x40000
F2 = 0x60000
F3 = 0x80000
WS_STAMP = 0x10000
WS_Q = 1 << 20
WS_KV = 3 << 20
WS_O = 7 << 20
WS_H = 9 << 20
WS_SIZE = 17 << 20

L_W = 65536
L_FLAG = 65536
L_RING = 65536 + 256
L_WO2 = L_RING + 65536

S_X, S_WQ, S_WG, S_WU, S_WD, S_WO, S_OUT, S_WS, S_KV = 24, 28, 32, 36, 40, 44, 48, 52, 56
sW = 60
sRB, sCB, sHEAD, sQB, sRB2, sCB2, sCNT = 61, 62, 63, 64, 65, 66, 67
sA, sB, sC, sD, sE, sF = 68, 69, 70, 71, 72, 73
sOUT, sEP = 74, 75
sMASK = 76
gQ0, gQ1, gK0, gK1, gF1, gH0, gH1, gRING, gF2, gP2, gP3, gHL, gWD, gTT = 4, 5, 6, 7, 8, 12, 13, 14, 15, 16, 17, 18, 19, 20
gHL0, gWD0, gHL1, gWD1, gROT2 = 56, 57, 58, 59, 9
sROT = 21
vEP, vZ = 110, 111
aQ0, aQ1, aO0, aO1, aF3, aP1 = 4, 5, 6, 7, 8, 9
POLL_LIMIT = 0x40000


def f2u(x):
    return struct.unpack("<I", struct.pack("<f", x))[0]


def vr(b, n=1):
    return "v%d" % b if n == 1 else "v[%d:%d]" % (b, b + n - 1)


def sr(b, n=1):
    return "s%d" % b if n == 1 else "s[%d:%d]" % (b, b + n - 1)


class G:
    def __init__(self, opts):
        self.L = []
        self.cold = []
        self.o = opts
        self.cc = " sc1"
        self.lc = opts.get("ldmod", " sc1")
        self.fs = opts["logfs"]

    def __call__(self, *lines):
        for l in lines:
            self.L.extend(l.split("\n"))

    def s(self, fmt, *a):
        self(fmt % a)

    def label(self, n):
        self.L.append(n + ":")

    def mfma(self, d, a, b, c=None):
        cs = "0" if c == 0 else vr(d, 16)
        self("v_mfma_f32_32x32x16_bf16 %s, %s, %s, %s" % (vr(d, 16), vr(a, 4), vr(b, 4), cs))

    def srd(self, s, ptr, nbytes):
        self("s_mov_b32 s%d, s%d" % (s, ptr), "s_mov_b32 s%d, s%d" % (s + 1, ptr + 1),
             "s_mov_b32 s%d, 0x%x" % (s + 2, nbytes), "s_mov_b32 s%d, 0x20000" % (s + 3))

    def shladd(self, d, a, k, b):
        if isinstance(b, str):
            self("s_lshl_b32 s%d, s%d, %d" % (d, a, k), "s_add_u32 s%d, s%d, %s" % (d, d, b))
        elif d != b and 1 <= k <= 4:
            self("s_lshl%d_add_u32 s%d, s%d, s%d" % (k, d, a, b))
        elif 1 <= k <= 4:
            self("s_lshl%d_add_u32 s%d, s%d, s%d" % (k, d, a, b))
        else:
            assert d != b
            self("s_lshl_b32 s%d, s%d, %d" % (d, a, k), "s_add_u32 s%d, s%d, s%d" % (d, d, b))

    def stamp(self, slot, grp="main"):
        if self.o.get("stamps") and (slot in (0, 11) or grp == self.o.get("diag", "main")):
            self("%s s[%d:%d]" % ("s_memtime" if self.o.get("stamps") == 2 else "s_memrealtime", 78 + 2 * slot, 79 + 2 * slot))

    def stamp_init(self):
        if self.o.get("stamps"):
            for k in range(1, 12):
                self("s_mov_b32 s%d, 0" % (78 + 2 * k))

    def stamp_dump(self):
        if not self.o.get("stamps"):
            return
        g = self
        g("s_waitcnt vmcnt(0)")
        g.stamp(11)
        g("s_lshl_b32 s3, s2, 3", "s_add_u32 s3, s3, s11", "s_lshl_b32 s3, s3, 6",
          "s_add_u32 s3, s3, 0x%x" % WS_STAMP, "s_waitcnt lgkmcnt(0)", "v_mov_b32 v1, 0", "s_mov_b64 exec, 1")
        for k in range(12):
            g("v_mov_b32 v2, s%d" % (78 + 2 * k), "buffer_store_dword v2, v1, %s, s3 offen offset:%d" % (sr(S_WS, 4), 4 * k))

    def prologue(self, end, gemm):
        g = self
        g.stamp(0)
        g("s_cmp_ge_u32 s2, 0x100", "s_cbranch_scc1 %s" % end)
        g("s_load_dwordx4 s[4:7], s[0:1], 0", "s_load_dwordx2 s[22:23], s[0:1], 72", "s_load_dwordx2 s[8:9], s[0:1], 16",
          "s_load_dwordx8 s[12:19], s[0:1], 32")
        g.stamp_init()
        g("v_lshrrev_b32 v1, 6, v0", "v_and_b32 v0, 63, v0")
        g("s_and_b32 s3, s2, 7", "s_lshr_b32 s10, s2, 3")
        g("v_readfirstlane_b32 s11, v1")
        lc = g.o["lognc"]
        g("s_and_b32 s%d, s3, %d" % (sCB, (8 >> lc) - 1), "s_lshl_b32 s%d, s%d, %d" % (sCB, sCB, lc), "s_and_b32 s%d, s10, %d" % (sA, (1 << lc) - 1),
          "s_or_b32 s%d, s%d, s%d" % (sCB, sCB, sA))
        g("s_lshr_b32 s%d, s3, %d" % (sRB, 3 - lc), "s_lshl_b32 s%d, s%d, %d" % (sRB, sRB, 5 - lc), "s_lshr_b32 s%d, s10, %d" % (sA, lc),
          "s_or_b32 s%d, s%d, s%d" % (sRB, sRB, sA))
        if g.o["rot"]:
            g("s_and_b32 s%d, s10, %d" % (sROT, (1 << lc) - 1), "s_lshl_b32 s%d, s%d, %d" % (sROT, sROT, 3 - lc), "s_add_u32 s%d, s%d, s%d" % (sROT, sROT, sA),
              "s_and_b32 s%d, s%d, 7" % (sROT, sROT))
        else:
            g("s_mov_b32 s%d, 0" % sROT)
        if g.o["codepf"]:
            g("s_getpc_b64 s[56:57]")
            g.label("L_pc")
            g("s_mov_b32 s58, L_code_end-L_pc", "s_mov_b32 s59, 0x20000", "s_lshl3_add_u32 s%d, s10, s11" % sB, "s_lshl_b32 s%d, s%d, 7" % (sB, sB))
            g("buffer_load_dword v255, off, s[56:59], s%d" % sB)
        g("s_and_b32 s%d, s11, 3" % sW)
        g("s_cmp_ge_u32 s11, 4", "s_cbranch_scc1 %s" % gemm)

    def epoch_load(self):
        self("s_load_dword s%d, s[22:23], 0x%x" % (sEP, F_EPOCH))

    def epoch_make(self):
        self("s_mul_i32 s%d, s%d, 0x19660d" % (sEP, sEP), "s_add_u32 s%d, s%d, 0x3c6ef35f" % (sEP, sEP))

    def flag_regs(self, ve, vz):
        self("v_mov_b32 v%d, s%d" % (ve, sEP), "v_mov_b32 v%d, 0" % vz)

    def flag_store(self, soff, ve=vEP, vz=vZ):
        self("s_mov_b64 exec, 1", "buffer_store_dword v%d, v%d, %s, s%d offen sc1" % (ve, vz, sr(S_WS, 4), soff), "s_mov_b64 exec, -1")

    def poll(self, name, voff, soff, vtmp, sleep, lanes):
        g = self
        g("s_mov_b32 s3, 0", "s_mov_b32 exec_lo, 0x%x" % lanes, "s_mov_b32 exec_hi, 0")
        g.label("L_poll_" + name)
        g("buffer_load_dword v%d, v%d, %s, s%d offen sc1" % (vtmp, voff, sr(S_WS, 4), soff), "s_add_u32 s3, s3, 1", "s_waitcnt vmcnt(0)")
        g("v_cmp_ne_u32 vcc, s%d, v%d" % (sEP, vtmp), "s_cmp_gt_u32 s3, 0x%x" % POLL_LIMIT, "s_cbranch_vccz L_polld_" + name)
        g("s_cbranch_scc1 L_polld_" + name)
        if sleep:
            g("s_sleep %d" % sleep)
        g("s_branch L_poll_" + name)
        g.label("L_polld_" + name)
        g("s_mov_b64 exec, -1")

    def role_ln(self):
        g = self
        X = lambda e, i: 16 + 32 * e + 4 * i
        SUM, SQ = (6, 8), (7, 9)
        RI, NB = (10, 12), (11, 13)
        T = 80
        lc = g.o["lognc"]
        g("v_lshrrev_b32 v2, 3, v0", "v_and_b32 v3, 7, v0")
        g("v_lshlrev_b32 v4, 10, v2", "v_lshl_add_u32 v4, v3, 4, v4")
        g.shladd(sA, sRB, 2, sW)
        g("s_lshl_b32 s%d, s%d, 14" % (sA, sA), "s_lshl_b32 s%d, s%d, 7" % (sB, sROT), "s_add_u32 s%d, s%d, s%d" % (sA, sA, sB), "v_add_u32 v14, 0x2000, v4")
        for i in range(8):
            g("s_xor_b32 s%d, s%d, 0x%x" % (28 + i, sA, 128 * i))
        g("s_waitcnt lgkmcnt(0)")
        g.srd(S_X, 4, 2048 * 1024)
        g.stamp(1)
        for i in range(8):
            for e in range(2):
                g("buffer_load_dwordx4 %s, v%d, %s, s%d offen" % (vr(X(e, i), 4), (4, 14)[e], sr(S_X, 4), 28 + i))
        def warm_all():
            nm = (S_WG, 12, 512 * 3584, 7168), (S_WU, 14, 512 * 3584, 7168), (S_WD, 16, 1792 * 1024, 7168), (S_WO, 8, 512 * 1024, 2048)
            if g.o["warmA"] < 4:
                g("s_cmp_ge_u32 s%d, %d" % (sW, g.o["warmA"]), "s_cbranch_scc1 L_ln_nw")
            g("s_mov_b32 s36, s12", "s_mov_b32 s37, s13", "s_mov_b32 s38, 0x%x" % (512 * 3584), "s_mov_b32 s39, 0x20000", "s_movk_i32 s%d, 0x1c00" % sB)
            for k in range(1, g.o["warmA"]):
                g("s_cmp_eq_u32 s%d, %d" % (sW, k), "s_cselect_b32 s36, s%d, s36" % nm[k][1], "s_cselect_b32 s37, s%d, s37" % (nm[k][1] + 1),
                  "s_cselect_b32 s38, 0x%x, s38" % nm[k][2], "s_cselect_b32 s%d, 0x%x, s%d" % (sB, nm[k][3], sB))
            g("s_mul_i32 s%d, s%d, s2" % (sE, sB), "s_sub_u32 s%d, s%d, 128" % (sB, sB), "v_lshlrev_b32 v15, 7, v0", "v_min_u32 v15, s%d, v15" % sB)
            g("buffer_load_dword v13, v15, s[36:39], s%d offen" % sE)
            g.label("L_ln_nw")
        if g.o["tlbw"]:
            g.shladd(sA, 10, 2, sW)
            g("s_lshl_b32 s%d, s%d, 16" % (sB, sA), "s_add_u32 s36, s22, s%d" % sB, "s_addc_u32 s37, s23, 0")
            g("s_and_b32 s%d, s%d, 0x1f0000" % (sC, sB), "s_lshr_b32 s%d, s%d, 5" % (sA, sA), "s_min_u32 s%d, s%d, 0x%x" % (sE, sC, 27 << 16))
            g("s_mov_b32 s38, s12", "s_mov_b32 s39, s13")
            for k, p in ((1, 14), (2, 16), (3, 18)):
                g("s_cmp_eq_u32 s%d, %d" % (sA, k), "s_cselect_b32 s38, s%d, s38" % p, "s_cselect_b32 s39, s%d, s39" % (p + 1))
            g("s_cselect_b32 s%d, s%d, s%d" % (sE, sC, sE), "s_add_u32 s38, s38, s%d" % sE, "s_addc_u32 s39, s39, 0")
            g("s_min_u32 s%d, s%d, 0x%x" % (sE, sC, 23 << 16), "s_add_u32 s40, s6, s%d" % sE, "s_addc_u32 s41, s7, 0")
            g("s_and_b32 s%d, s%d, 0x70000" % (sE, sC), "s_add_u32 s42, s8, s%d" % sE, "s_addc_u32 s43, s9, 0")
            g("s_add_u32 s44, s36, 0x800000", "s_addc_u32 s45, s37, 0", "s_add_u32 s46, s22, s%d" % sC, "s_addc_u32 s47, s23, 0")
            g("s_add_u32 s46, s46, 0xf00000", "s_addc_u32 s47, s47, 0")
            for k, b in enumerate((40, 36, 38, 44, 42, 46)):
                g("s_load_dword s%d, s[%d:%d], 0" % (28 + k, b, b + 1))
        g.stamp(1, "ln")
        if g.o["barP"]:
            g("s_barrier")
        g.epoch_load()
        g.srd(S_WS, 22, WS_SIZE)
        g("s_and_b32 s%d, s10, 3" % sA)
        g.shladd(sHEAD, 3, 2, sA)
        g("s_lshr_b32 s%d, s10, 2" % sQB)
        g("v_xor_b32 v5, v2, v3", "v_lshlrev_b32 v5, 4, v5", "v_lshl_add_u32 v5, v3, 9, v5")
        g("s_lshr_b32 s%d, s%d, 1" % (sC, sW), "s_lshl_b32 s%d, s%d, 15" % (sC, sC),
          "s_and_b32 s%d, s%d, 1" % (sD, sW), "s_lshl_b32 s%d, s%d, 8" % (sD, sD), "s_add_u32 s%d, s%d, s%d" % (sC, sC, sD))
        g("v_add_u32 v5, s%d, v5" % sC)
        g("s_mov_b32 s%d, 0x3f803f80" % sC, "s_mov_b32 s%d, 0xffff0000" % sD)
        for r in (6, 7, 8, 9):
            g("v_mov_b32 v%d, 0" % r)
        for i in range(8):
            for e in range(2):
                g("s_waitcnt vmcnt(%d)" % (15 - 2 * i - e + 0))
                if e == 0 and i in (0, 4):
                    g.stamp(2 + i // 4, "ln")
                for k in range(4):
                    x = X(e, i) + k
                    g("v_dot2c_f32_bf16 v%d, s%d, v%d" % (SUM[e], sC, x), "v_dot2c_f32_bf16 v%d, v%d, v%d" % (SQ[e], x, x))
        g.stamp(2)
        g.stamp(4, "ln")
        g("s_nop 0")
        for dpp in ("quad_perm:[1,0,3,2]", "quad_perm:[2,3,0,1]", "row_half_mirror"):
            for r in (6, 7, 8, 9):
                g("v_add_f32_dpp v%d, v%d, v%d %s row_mask:0xf bank_mask:0xf" % (r, r, r, dpp))
        inv = "0x%x" % f2u(1.0 / 512)
        eps = "0x%x" % f2u(1e-5)
        for e in range(2):
            g("v_mul_f32 v%d, %s, v%d" % (SUM[e], inv, SUM[e]), "v_mul_f32 v%d, %s, v%d" % (SQ[e], inv, SQ[e]))
        for e in range(2):
            g("v_fma_f32 v%d, -v%d, v%d, v%d" % (SQ[e], SUM[e], SUM[e], SQ[e]))
        for e in range(2):
            g("v_max_f32 v%d, 0, v%d" % (SQ[e], SQ[e]))
        for e in range(2):
            g("v_cvt_pk_bf16_f32 v%d, v%d, v%d" % (SQ[e], SUM[e], SQ[e]))
        for e in range(2):
            g("v_lshlrev_b32 v%d, 16, v%d" % (SUM[e], SQ[e]), "v_and_b32 v%d, s%d, v%d" % (SQ[e], sD, SQ[e]))
        for e in range(2):
            g("v_add_f32 v%d, %s, v%d" % (SQ[e], eps, SQ[e]))
        g("v_cvt_pk_bf16_f32 v7, v7, v9", "v_and_b32 v9, s%d, v7" % sD, "v_lshlrev_b32 v7, 16, v7")
        g("v_sqrt_f32 v7, v7", "v_sqrt_f32 v9, v9", "s_nop 0")
        g("v_cvt_pk_bf16_f32 v7, v7, v9", "v_and_b32 v9, s%d, v7" % sD, "v_lshlrev_b32 v7, 16, v7")
        g("v_rcp_f32 v%d, v7" % RI[0], "v_rcp_f32 v%d, v9" % RI[1], "s_nop 0")
        for e in range(2):
            g("v_mul_f32 v%d, v%d, v%d" % (NB[e], SUM[e], RI[e]))
        g.stamp(5, "ln")

        def chunk(i, pk):
            for e in range(2):
                x = X(e, i)
                for k in range(4):
                    g("v_lshlrev_b32 v%d, 16, v%d" % (T + 2 * k, x + k), "v_and_b32 v%d, s%d, v%d" % (T + 2 * k + 1, sD, x + k))
                for k in range(4):
                    t = T + 2 * k
                    if pk:
                        g("v_pk_fma_f32 %s, %s, %s, %s op_sel:[0,0,1] op_sel_hi:[1,0,1] neg_lo:[0,0,1] neg_hi:[0,0,1]" % (vr(t, 2), vr(t, 2), vr(RI[e], 2), vr(RI[e], 2)))
                    else:
                        g("v_fma_f32 v%d, v%d, v%d, -v%d" % (t, t, RI[e], NB[e]), "v_fma_f32 v%d, v%d, v%d, -v%d" % (t + 1, t + 1, RI[e], NB[e]))
                for k in range(4):
                    g("v_cvt_pk_bf16_f32 v%d, v%d, v%d" % (x + k, T + 2 * k, T + 2 * k + 1))
                g("ds_write_b128 v5, %s offset:%d" % (vr(x, 4), i * 4096 + e * 128))
        sched = g.o["lnsched"]
        done = 0
        for i in range(8):
            for _ in range(sched[i]):
                chunk(done, g.o["lnpk"] == 2 or (g.o["lnpk"] == 1 and i == 0))
                done += 1
                if done % 2 == 0:
                    g.stamp(5 + done // 2, "ln")
            assert done > i
            if i == 7:
                g.shladd(sA, sW, 2, "0x%x" % L_FLAG)
                g("v_mov_b32 v14, s%d" % sA, "v_mov_b32 v15, 0", "ds_write_b32 v14, v15", "ds_write_b32 v14, v15 offset:16")
            if sched[i] or i == 7:
                g("s_waitcnt lgkmcnt(0)")
            if i == 0:
                g.stamp(3)
            g.stamp(i + 1, "qkv")
            g("s_barrier")
            if i == 0:
                g.epoch_make()
            if g.o["xtrip"] == 99 and i == 6:
                g("s_lshr_b32 s%d, s10, 3" % sA)
                g.shladd(sA, 3, 2, sA)
                g.shladd(sA, sA, 2, sW)
                g("s_lshl_b32 s%d, s%d, 14" % (sA, sA), "s_and_b32 s%d, s10, 7" % sB, "s_lshl_b32 s%d, s%d, 7" % (sB, sB), "s_add_u32 s%d, s%d, s%d" % (sA, sA, sB))
                g.shladd(sB, sW, 11, "0x%x" % L_RING)
                g("s_mov_b32 m0, s%d" % sB, "s_add_u32 s%d, s%d, 0x1c00" % (sB, sA))
                g("buffer_load_dwordx4 v4, %s, s%d offen lds" % (sr(S_X, 4), sA), "buffer_load_dwordx4 v4, %s, s%d offen offset:1024 lds" % (sr(S_X, 4), sB))
            if g.o["warmA"] and i == g.o["warmAt"]:
                warm_all()
            if g.o["warm_gu"] and i == g.o["warm_gu"]:
                rows = 4 << lc
                g.srd(S_WG, 12, 512 * 3584)
                g.srd(S_WU, 14, 512 * 3584)
                g("s_lshr_b32 s%d, s10, %d" % (sA, lc))
                g.shladd(sA, sA, 2, sW)
                g("s_mul_i32 s%d, s%d, 0x%x" % (sA, sA, rows * 3584), "s_lshl_b32 s%d, s%d, 9" % (sB, sCB), "s_add_u32 s%d, s%d, s%d" % (sE, sA, sB))
                g("v_lshrrev_b32 v14, 2, v0", "v_and_b32 v14, %d, v14" % (min(rows, 16) - 1), "v_mul_u32_u24 v14, 0xe00, v14", "v_and_b32 v15, 3, v0",
                  "v_lshl_add_u32 v14, v15, 7, v14")
                g("s_cmp_eq_u32 s%d, 7" % sCB, "s_cbranch_scc1 L_ln_nowarm")
                for rep in range(max(1, rows // 16)):
                    if rep:
                        g("s_add_u32 s%d, s%d, 0x%x" % (sE, sE, 16 * 3584))
                    g("buffer_load_dword v12, v14, %s, s%d offen" % (sr(S_WG, 4), sE), "buffer_load_dword v13, v14, %s, s%d offen" % (sr(S_WU, 4), sE))
                g.label("L_ln_nowarm")
        assert done == 8

    def lds_wait_all(self, name, vaddr, off, t):
        g = self
        g("s_mov_b32 s3, 0")
        g.label("L_lw_" + name)
        g("ds_read_b128 %s, v%d offset:%d" % (vr(t, 4), vaddr, off), "s_add_u32 s3, s3, 1", "s_waitcnt lgkmcnt(0)",
          "v_and_b32 v%d, v%d, v%d" % (t, t, t + 1), "v_and_b32 v%d, v%d, v%d" % (t + 2, t + 2, t + 3), "v_and_b32 v%d, v%d, v%d" % (t, t, t + 2),
          "v_cmp_ne_u32 vcc, 1, v%d" % t, "s_cmp_gt_u32 s3, 0x%x" % (POLL_LIMIT * 8), "s_cbranch_vccz L_lwd_" + name, "s_cbranch_scc0 L_lw_" + name)
        g.label("L_lwd_" + name)

    def role_attn(self):
        g = self
        O = lambda i: 128 + 16 * i
        Q = lambda i: 4 + 4 * i
        S = (36, 52)
        P = 68
        KB = lambda b: 76 + 12 * b
        VB = lambda b, t: KB(b) + 4 + 4 * t
        vL, vV = 2, 3
        aQ = 12
        cc = g.cc
        fs = g.fs
        g("v_lshlrev_b32 v2, 4, v0")
        g("v_lshrrev_b32 v1, 5, v0", "v_and_b32 v3, 15, v0", "v_lshlrev_b32 v3, 4, v3", "v_lshl_add_u32 v3, v1, 8, v3")
        g("s_lshl_b32 s%d, s%d, 6" % (sD, sHEAD))
        g.shladd(sA, sW, 4, sD)
        g.shladd(sA, sA, 11, "0x%x" % WS_KV)
        g("s_add_u32 s%d, s22, s%d" % (S_KV, sA), "s_addc_u32 s%d, s23, 0" % (S_KV + 1), "s_mov_b32 s%d, 0x8000" % (S_KV + 2),
          "s_mov_b32 s%d, 0x20000" % (S_KV + 3))
        g.shladd(sC, sQB, 3, sD)
        for j in range(4):
            g("s_xor_b32 s%d, s%d, %d" % (sA, sW, j))
            g.shladd(sA, sA, 1, sC)
            g.shladd(aQ + j, sA, 10, "0x%x" % WS_Q)
        g.shladd(sE, sQB, 2, sW)
        g("s_lshl_b32 s%d, s%d, 1" % (sE, sE))
        g.shladd(aO0, sE, 5, sHEAD)
        g.shladd(aO0, aO0, 10, "0x%x" % WS_O)
        g("s_add_u32 s%d, s%d, 0x8000" % (aO1, aO0))
        g.shladd(aF3, sE, 4, sHEAD)
        g.shladd(aF3, aF3, fs, "0x%x" % F3)
        g("s_lshr_b32 s%d, s%d, 2" % (aP1, sHEAD))
        g.shladd(aP1, aP1, 5 + fs, "0x%x" % F1)
        g("v_and_b32 v124, 31, v0", "v_lshlrev_b32 v124, %d, v124" % fs)
        g("s_mov_b32 s%d, 0xffff" % sMASK, "s_mov_b32 s%d, 0xffff" % (sMASK + 1))
        g("v_and_b32 v1, 27, v0", "v_mov_b32 v126, 0x3f803f80", "v_cmp_eq_u32 vcc, 16, v1", "s_mov_b32 s%d, %d" % (sCNT, g.o.get("x_attn_it", 4)), "s_mov_b32 s%d, 0" % sD,
          "v_cndmask_b32 v1, 0, v126, vcc")
        g("s_waitcnt vmcnt(0)")
        g("s_barrier")
        for b in range(4):
            for k in range(8):
                g("v_mov_b32 v%d, v1" % (VB(b, 0) + k))
        for k in range(128):
            g("v_mov_b32 v%d, 0" % (O(0) + k))
        g("s_barrier")
        g("s_setprio %d" % g.o.get("aprio", 2))
        g.stamp(4)
        g.stamp(1, "f1")
        g.poll("qkv", 124, aP1, 125, g.o["sleep1"], 0xffffffff)
        g.stamp(5)
        g.stamp(3, "f1")

        def qload(i):
            return "buffer_load_dwordx4 %s, v2, %s, s%d offen offset:%d%s" % (vr(Q(i), 4), sr(S_WS, 4), aQ + (i >> 1), (i & 1) * 1024, g.lc)

        def loads(b):
            return ["buffer_load_dwordx4 %s, v2, %s, s%d offen%s" % (vr(KB(b), 4), sr(S_KV, 4), sD, g.lc),
                    "s_mov_b64 exec, %s" % sr(sMASK, 2),
                    "buffer_load_dwordx4 %s, v3, %s, s%d offen offset:1024%s" % (vr(VB(b, 0), 4), sr(S_KV, 4), sD, g.lc),
                    "buffer_load_dwordx4 %s, v3, %s, s%d offen offset:1536%s" % (vr(VB(b, 1), 4), sr(S_KV, 4), sD, g.lc),
                    "s_mov_b64 exec, -1",
                    "s_add_u32 s%d, s%d, 0x800" % (sD, sD)]
        L0 = loads(0)
        g(qload(0), L0[0], qload(1), *L0[1:])
        for i in range(2, 8):
            g(qload(i))
        npre = g.o["kvpre"]
        for p in range(1, 3):
            if p == npre and g.o["gu_wait"]:
                g("s_barrier")
            g(*loads(p))
        if npre >= 3 and g.o["gu_wait"]:
            g("s_barrier")
        g("s_mov_b64 vcc, -1")
        g("s_waitcnt vmcnt(15)")
        g.mfma(S[0], KB(0), Q(0), 0)
        g("s_nop 11")
        g.stamp(6)
        g.stamp(9, "att")
        g.stamp(4, "f1")
        order = g.o["order"].split()

        def step(n, skip_pv=False, only=None):
            pn, nn = (n - 1) % 32, (n + 1) % 32
            X = loads((n // 8 - 1) % 4) if n % 8 == 0 else None
            s0 = S[n & 1]
            for t in (order if only is None else only):
                if t == "A":
                    if not skip_pv:
                        g.mfma(O(pn & 7), VB(pn >> 3, 0), P)
                elif t == "B":
                    if not skip_pv:
                        g.mfma(O(pn & 7), VB(pn >> 3, 1), P + 4)
                elif t == "S":
                    if n % 8 == 7:
                        g("s_waitcnt vmcnt(6)")
                    g.mfma(S[nn & 1], KB(nn >> 3), Q(nn & 7), 0)
                elif t == "|":
                    if n == 0 and only is None:
                        g.label("L_at_entry")
                elif t[0] == "x":
                    if X and n > 0:
                        if t == "x2":
                            g("s_cbranch_vccz L_kvs_%d" % n)
                            g(*X)
                            g.label("L_kvr_%d" % n)
                            g.cold.append(("L_kvs_%d" % n, "s_waitcnt vmcnt(%d)" % (3 if n == 8 else 0), "L_kvr_%d" % n))
                    elif X:
                        g(*{"x0": X[0:1], "x1": [], "x2": X[1:5], "x3": X[5:6]}[t])
                    if n == 31 and t == "x0":
                        g("s_sub_u32 s%d, s%d, 1" % (sCNT, sCNT), "s_cmp_eq_u32 s%d, 1" % sCNT, "s_cselect_b64 vcc, 0, -1")
                elif t[0] == "e":
                    k = int(t[1:])
                    g("v_exp_f32 v%d, v%d" % (s0 + k, s0 + k))
                elif t[0] == "c":
                    k = int(t[1:])
                    g("v_cvt_pk_bf16_f32 v%d, v%d, v%d" % (P + k, s0 + 2 * k, s0 + 2 * k + 1))
        step(0, skip_pv=True, only=order[:order.index("|")])
        g("s_waitcnt vmcnt(6)", "s_branch L_at_entry")
        g(".p2align 6")
        g.label("L_at_loop")
        for n in range(32):
            step(n)
            if g.o.get("diag") == "att" and n % 16 == 15:
                g("s_waitcnt lgkmcnt(0)")
                for k in range(1, 9):
                    g("s_mov_b32 s%d, s%d" % (78 + 2 * k, 80 + 2 * k))
                g.stamp(9, "att")
        g("s_cmp_lg_u32 s%d, 0" % sCNT, "s_cbranch_scc1 L_at_loop")
        g.mfma(O(7), VB(3, 0), P)
        g.mfma(O(7), VB(3, 1), P + 4)
        g.stamp(7)
        g("v_mov_b32 v124, 0x%x" % L_FLAG, "s_mul_i32 s%d, s%d, 0x3600" % (sA, sW), "v_lshlrev_b32 v1, 2, v0", "v_add_u32 v126, s%d, v2" % sA,
          "v_add_u32 v1, 0x800, v1", "v_add_u32 v127, s%d, v1" % sA)
        g.lds_wait_all("xn", 124, 16, 36)
        for j in range(1, 4):
            o = (j - 1) * 4608
            for t in range(2):
                g("ds_write_b128 v126, %s offset:%d" % (vr(O(2 * j + t), 4), o + t * 2304), "ds_write_b128 v126, %s offset:%d" % (vr(O(2 * j + t) + 4, 4), o + t * 2304 + 1024))
            g("ds_write2st64_b32 v127, v%d, v%d offset0:%d offset1:%d" % (O(2 * j) + 8, O(2 * j + 1) + 8, o // 256, (o + 2304) // 256))
        g.shladd(sA, sW, 2, "0x%x" % L_FLAG)
        g("v_mov_b32 v125, s%d" % sA, "v_mov_b32 v40, 1")
        for j in range(1, 4):
            g("s_xor_b32 s%d, s%d, %d" % (sA, sW, j), "s_mul_i32 s%d, s%d, 0x3600" % (sA, sA), "v_add_u32 v%d, s%d, v2" % (40 + j, sA), "v_add_u32 v%d, s%d, v1" % (43 + j, sA))
        g("s_waitcnt lgkmcnt(0)", "ds_write_b32 v125, v40")
        g.flag_regs(126, 127)
        g.lds_wait_all("pair", 124, 0, 36)
        g.stamp(8)
        T = lambda j, t: O(2 * j + t)
        for j in range(1, 4):
            o = (j - 1) * 4608
            g("ds_read2st64_b32 %s, v%d offset0:%d offset1:%d" % (vr(48 + 2 * j, 2), 43 + j, o // 256, (o + 2304) // 256))
            for t in range(2):
                g("ds_read_b128 %s, v%d offset:%d" % (vr(T(j, t), 4), 40 + j, o + t * 2304), "ds_read_b128 %s, v%d offset:%d" % (vr(T(j, t) + 4, 4), 40 + j, o + t * 2304 + 1024))
        for j in range(1, 4):
            g("s_waitcnt lgkmcnt(%d)" % (5 * (3 - j)))
            for t in range(2):
                g("v_add_f32 v%d, v%d, v%d" % (O(t) + 8, O(t) + 8, 48 + 2 * j + t))
            for t in range(2):
                for k in range(8):
                    g("v_add_f32 v%d, v%d, v%d" % (O(t) + k, O(t) + k, T(j, t) + k))
        g("v_subrev_u32 v40, 0x21800000, v%d" % (O(0) + 8), "v_subrev_u32 v41, 0x21800000, v%d" % (O(1) + 8), "v_max_u32 v40, v40, v41")
        g("v_cmp_lt_u32 vcc, 0x3c000000, v40", "s_nop 1", "s_and_b64 vcc, exec, vcc", "s_cbranch_vccnz L_at_slow")
        g.label("L_at_norm")
        g("v_rcp_f32 v40, v%d" % (O(0) + 8), "v_rcp_f32 v41, v%d" % (O(1) + 8), "s_nop 0")
        for i in range(2):
            for k in range(8):
                g("v_mul_f32 v%d, v%d, v%d" % (O(i) + k, O(i) + k, 40 + i))
            for k in range(4):
                g("v_cvt_pk_bf16_f32 v%d, v%d, v%d" % (44 + 4 * i + k, O(i) + 2 * k, O(i) + 2 * k + 1))
            g("buffer_store_dwordx4 %s, v2, %s, s%d offen%s" % (vr(44 + 4 * i, 4), sr(S_WS, 4), aO0 + i, cc))
        g.stamp(9)
        g("s_waitcnt vmcnt(0)")
        g.stamp(10)
        g.flag_store(aF3, 126, 127)

    def role_attn_slow(self):
        g = self
        O = lambda i: 128 + 16 * i
        Q = lambda i: 4 + 4 * i
        S0, P, KB0, V0, V1 = 36, 68, 76, 80, 84
        cc = g.cc
        g.label("L_at_slow")
        g("s_lshl_b32 s%d, s%d, 17" % (sC, sHEAD), "s_add_u32 s%d, s%d, 0x%x" % (sC, sC, WS_KV))
        g("s_add_u32 s%d, s22, s%d" % (S_KV, sC), "s_addc_u32 s%d, s23, 0" % (S_KV + 1), "s_mov_b32 s%d, 0x20000" % (S_KV + 2),
          "s_mov_b32 s%d, 0x20000" % (S_KV + 3))
        g("s_mov_b32 s%d, 0" % sCNT)
        g.label("L_sl_tile")
        g("v_mov_b32 v124, 0xff800000", "s_mov_b32 s%d, 0" % sD)
        g.label("L_sl_max")
        g("buffer_load_dwordx4 %s, v2, %s, s%d offen%s" % (vr(KB0, 4), sr(S_KV, 4), sD, cc), "s_waitcnt vmcnt(0)")
        g.mfma(S0, KB0, Q(0), 0)
        g("s_nop 11")
        for k in range(8):
            g("v_max3_f32 v124, v124, v%d, v%d" % (S0 + 2 * k, S0 + 2 * k + 1))
        g("s_add_u32 s%d, s%d, 0x800" % (sD, sD), "s_cmp_lt_u32 s%d, 0x20000" % sD, "s_cbranch_scc1 L_sl_max")
        g("v_mov_b32 v125, v124", "s_nop 1", "v_permlane32_swap_b32 v124, v125", "s_nop 1", "v_max_f32 v124, v124, v125")
        for k in range(16):
            g("v_mov_b32 v%d, 0" % (O(0) + k))
        g("s_mov_b32 s%d, 0" % sD)
        g.label("L_sl_acc")
        g("buffer_load_dwordx4 %s, v2, %s, s%d offen%s" % (vr(KB0, 4), sr(S_KV, 4), sD, cc))
        g("s_mov_b64 exec, %s" % sr(sMASK, 2))
        g("buffer_load_dwordx4 %s, v3, %s, s%d offen offset:1024%s" % (vr(V0, 4), sr(S_KV, 4), sD, cc))
        g("buffer_load_dwordx4 %s, v3, %s, s%d offen offset:1536%s" % (vr(V1, 4), sr(S_KV, 4), sD, cc))
        g("s_mov_b64 exec, -1", "s_waitcnt vmcnt(0)")
        g.mfma(S0, KB0, Q(0), 0)
        g("s_nop 11")
        for k in range(16):
            g("v_sub_f32 v%d, v%d, v124" % (S0 + k, S0 + k))
        for k in range(16):
            g("v_exp_f32 v%d, v%d" % (S0 + k, S0 + k))
        g("s_nop 0")
        for k in range(8):
            g("v_cvt_pk_bf16_f32 v%d, v%d, v%d" % (P + k, S0 + 2 * k, S0 + 2 * k + 1))
        g("s_nop 1")
        g.mfma(O(0), V0, P)
        g.mfma(O(0), V1, P + 4)
        g("s_add_u32 s%d, s%d, 0x800" % (sD, sD), "s_cmp_lt_u32 s%d, 0x20000" % sD, "s_cbranch_scc1 L_sl_acc")
        g("s_nop 11")
        g("s_cmp_eq_u32 s%d, 1" % sCNT, "s_cbranch_scc1 L_sl_done")
        for k in range(9):
            g("v_mov_b32 v%d, v%d" % (O(2) + k, O(0) + k))
        for k in range(4):
            g("v_mov_b32 v%d, v%d" % (Q(0) + k, Q(1) + k))
        g("s_mov_b32 s%d, 1" % sCNT, "s_branch L_sl_tile")
        g.label("L_sl_done")
        for k in range(9):
            g("v_mov_b32 v%d, v%d" % (O(1) + k, O(0) + k), "v_mov_b32 v%d, v%d" % (O(0) + k, O(2) + k))
        g("s_branch L_at_norm")

    def role_qkv(self):
        g = self
        AQ, AK, AV = 16, 32, 48
        WB = (128, 144, 160)
        XB = (140, 156, 172)
        vXr = 4
        vT = (8, 9)
        vD = 96
        lc = g.o["lognc"]
        fs = g.fs
        g("v_lshrrev_b32 v2, 3, v0", "v_lshrrev_b32 v1, 2, v0", "v_and_b32 v1, 4, v1", "v_xor_b32 v3, v0, v1", "v_and_b32 v12, 7, v3")
        g("s_lshl_b32 s%d, s%d, 4" % (sA, sW), "v_add_u32 v3, s%d, v2" % sA, "v_mul_u32_u24 v3, 0xc00, v3")
        g("s_lshl_b32 s%d, s%d, 7" % (sA, sCB), "v_lshl_add_u32 v3, v12, 4, v3", "v_add_u32 v%d, s%d, v3" % (vD, sA))
        for seg in range(3):
            for e in range(2):
                if seg or e:
                    g("v_add_u32 v%d, 0x%x, v%d" % (vD + 2 * seg + e, seg * 1024 + e * (8 * 3072 - 1024), vD))
        g("s_mul_i32 s%d, s%d, 0x1800" % (sC, sW), "s_add_u32 s%d, s%d, 0x%x" % (sC, sC, L_W))

        def dma(st, seg):
            L = []
            if seg == 0:
                L += ["s_xor_b32 s%d, s%d, %d" % (sCNT, sROT, st), "s_mul_i32 s%d, s%d, 0x%x" % (sCNT, sCNT, 64 * 3072)]
            L.append("s_add_u32 m0, s%d, 0x%x" % (sC, (st & 3) * 24576 + seg * 2048))
            L.append("s_nop 0")
            L.append("buffer_load_dwordx4 v%d, %s, s%d offen lds" % (vD + 2 * seg, sr(S_WQ, 4), sCNT))
            L.append("buffer_load_dwordx4 v%d, %s, s%d offen offset:1024 lds" % (vD + 2 * seg + 1, sr(S_WQ, 4), sCNT))
            return L
        g("s_waitcnt lgkmcnt(0)")
        g.srd(S_WQ, 6, 512 * 3072)
        g.stamp(1)
        g.epoch_load()
        g.srd(S_X, 4, 2048 * 1024)
        g.srd(S_WG, 12, 512 * 3584)
        g.srd(S_WU, 14, 512 * 3584)
        g.srd(S_WD, 16, 1792 * 1024)
        g.srd(S_WO, 8, 512 * 1024)
        g.srd(S_OUT, 18, 2048 * 1024)
        g.srd(S_WS, 22, WS_SIZE)
        def first_dma():
            g.stamp(1, "ln")
            if g.o["barP"]:
                g("s_barrier")
            for st in range(2):
                for seg in range(3):
                    g(*dma(st, seg))
            g.stamp(2, "ln")
        if g.o["dma_first"]:
            first_dma()
        g("s_lshr_b32 s%d, s10, 3" % sA)
        g.shladd(sRB2, 3, 2, sA)
        g("s_and_b32 s%d, s10, 7" % sCB2)
        g("s_add_u32 s%d, s%d, s%d" % (gROT2, sA, sCB2), "s_and_b32 s%d, s%d, %d" % (gROT2, gROT2, 3 if g.o["rot"] else 0))
        g("v_lshrrev_b32 v1, 5, v0", "v_lshlrev_b32 v10, 4, v0")
        g("s_and_b32 s%d, s%d, 1" % (sA, sW), "s_lshl_b32 s%d, s%d, 15" % (gTT, sA))
        g("v_xor_b32 v3, v0, v1")
        for q in range(4):
            g("v_xor_b32 v15, %d, v3" % (2 * q), "v_lshlrev_b32 v15, 4, v15", "v_add_u32 v15, 0x%x, v15" % (q * 1024),
              "v_add_u32 v%d, s%d, v15" % (vXr + q, gTT))
        g("v_bfe_u32 v104, v0, 2, 2", "v_bfe_u32 v105, v0, 3, 1", "v_bfe_u32 v106, v0, 4, 1", "v_and_b32 v107, 3, v0", "v_lshlrev_b32 v107, 3, v107")
        g("v_lshl_add_u32 v108, v1, 3, v104", "v_lshl_add_u32 v108, v108, 7, v107")
        g("v_lshl_add_u32 v107, v106, 5, v107")
        g("s_lshr_b32 s%d, s%d, 1" % (sB, sW), "v_xor_b32 v3, s%d, v105" % sB, "v_lshl_add_u32 v3, v3, 6, v108", "v_lshl_add_u32 v3, v106, 5, v3")
        g("v_add_u32 v%d, 0x%x, v3" % (vT[0], L_W), "v_add_u32 v%d, 0x%x, v3" % (vT[1], L_W + 49152))
        g.shladd(sD, sRB, 1, sA)
        g("s_and_b32 s%d, s%d, 2" % (sE, sW))
        g.shladd(sE, sCB, 2, sE)
        g.shladd(sF, sE, 6, sD)
        g.shladd(gQ0, sF, 10, "0x%x" % WS_Q)
        g("s_add_u32 s%d, s%d, 0x10000" % (gQ1, gQ0))
        g.shladd(gK0, sF, 11, "0x%x" % WS_KV)
        g("s_add_u32 s%d, s%d, 0x20000" % (gK1, gK0))
        if g.o["f1wg"]:
            g.shladd(gF1, sCB, 5, sRB)
        else:
            g.shladd(gF1, sE, 5, sD)
        g.shladd(gF1, gF1, fs, "0x%x" % F1)
        g("v_lshlrev_b32 v3, 17, v106", "v_lshl_add_u32 v3, v1, 8, v3", "v_and_b32 v15, 15, v0", "v_lshl_add_u32 v11, v15, 4, v3")
        g.shladd(gRING, sW, 14, "0x%x" % L_RING)
        g.shladd(sD, sCB, 2, sW)
        g("s_lshl_b32 s%d, s%d, 7" % (sE, sD), "v_mul_u32_u24 v3, 0xe00, v2", "v_add_u32 v3, s%d, v3" % sE)
        g("v_lshlrev_b32 v15, 1, v106", "v_xor_b32 v15, v15, v0", "v_and_b32 v15, 7, v15")
        g("v_lshl_add_u32 v116, v15, 4, v3", "v_xor_b32 v15, 4, v15", "v_lshl_add_u32 v118, v15, 4, v3")
        g("v_add_u32 v117, 0x%x, v116" % (8 * 3584 - 1024), "v_add_u32 v119, 0x%x, v118" % (8 * 3584 - 1024))
        g("v_lshl_add_u32 v3, v106, 11, v108", "v_add_u32 v3, s%d, v3" % gRING, "v_lshl_add_u32 v109, v106, 1, v105")
        for j in range(4):
            g("v_xor_b32 v15, %d, v109" % j, "v_lshl_add_u32 v%d, v15, 5, v3" % (112 + j))
        g("s_mul_i32 s%d, s%d, 224" % (sE, sRB))
        g.shladd(gH0, sD, 2, sE)
        g.shladd(gH0, gH0, 10, "0x%x" % WS_H)
        g("s_add_u32 s%d, s%d, 0x%x" % (gH1, gH0, 112 * 1024))
        g.shladd(gF2, sRB, 5, sD)
        g.shladd(gF2, gF2, fs, "0x%x" % F2)
        g("s_mul_i32 s%d, s%d, 0x%x" % (sD, sB, 112 * 1024), "v_add_u32 v120, s%d, v10" % sD, "s_xor_b32 s%d, s%d, 0x%x" % (sD, sD, 112 * 1024),
          "v_add_u32 v121, s%d, v10" % sD)
        g("s_mul_i32 s%d, s%d, 0x%x" % (gHL0, sRB2, 224 * 1024), "s_mul_i32 s%d, s%d, 0x%x" % (sD, sW, 28 * 1024),
          "s_add_u32 s%d, s%d, s%d" % (gHL0, gHL0, sD), "s_add_u32 s%d, s%d, 0x%x" % (gHL0, gHL0, WS_H))
        g("s_mul_i32 s%d, s%d, 0x%x" % (gWD0, sW, 28 * 16384))
        g("s_add_u32 s%d, s%d, 0x%x" % (gWD1, gWD0, 28 * 16384), "s_add_u32 s%d, s%d, 0x%x" % (gHL1, gHL0, 28 * 1024))
        g("s_mul_i32 s%d, s%d, 0x%x" % (gWD, gROT2, 7 * 16384), "s_add_u32 s%d, s%d, s%d" % (gWD, gWD, gWD0),
          "s_mul_i32 s%d, s%d, 0x%x" % (gHL, gROT2, 7 * 1024), "s_add_u32 s%d, s%d, s%d" % (gHL, gHL, gHL0))
        g("v_lshl_add_u32 v3, v1, 2, v104", "v_lshl_add_u32 v3, v3, 7, v107", "v_add_u32 v3, s%d, v3" % gRING, "v_xor_b32 v15, s%d, v105" % sA)
        g("v_lshl_add_u32 v122, v15, 6, v3", "v_xor_b32 v15, 1, v15", "v_lshl_add_u32 v123, v15, 6, v3")
        g("v_lshlrev_b32 v3, 10, v2", "v_lshl_add_u32 v3, v12, 4, v3", "s_lshl_b32 s%d, s%d, 7" % (sD, sCB2), "v_add_u32 v124, s%d, v3" % sD,
          "v_add_u32 v125, 0x1c00, v124")
        g("v_and_b32 v3, 31, v0", "v_lshlrev_b32 v3, 10, v3", "v_lshl_add_u32 v126, v1, 3, v3", "v_lshl_add_u32 v127, v1, 4, v3")
        if g.o["xtrip"] == 99:
            g.shladd(sD, sB, 6, sA)
            g.shladd(sD, sD, 6, "0x%x" % L_RING)
            g("v_lshrrev_b32 v3, 3, v3", "v_lshl_add_u32 v3, v1, 3, v3", "v_add_u32 v126, s%d, v3" % sD)
        g.shladd(sD, sRB2, 1, sB)
        g.shladd(sE, sCB2, 1, sA)
        g("s_lshl_b32 s%d, s%d, 15" % (sD, sD), "s_lshl_b32 s%d, s%d, 6" % (sE, sE), "s_add_u32 s%d, s%d, s%d" % (sOUT, sD, sE))
        g("s_mul_i32 s%d, s%d, 7" % (sD, sW))
        g.shladd(gP2, sRB2, 5, sD)
        g.shladd(gP2, gP2, fs, "0x%x" % F2)
        g.shladd(gP3, sRB2, 2, sW)
        g.shladd(gP3, gP3, 3 + fs, "0x%x" % F3)
        g("s_mov_b32 s%d, 0x%x" % (sF, f2u(0.25 * math.log2(math.e))))
        if not g.o["dma_first"]:
            first_dma()
        g("s_setprio 1")

        def reads(n):
            if n >= 32:
                return []
            st, ks = n >> 2, n & 3
            b = n % 3
            slot = st & 3
            L = ["ds_read_b128 %s, v%d offset:%d" % (vr(XB[b], 4), vXr + ks, st * 4096)]
            for seg in range(3):
                for p in range(2):
                    L.append("ds_read_b64_tr_b16 %s, v%d offset:%d" % (vr(WB[b] + 4 * seg + 2 * p, 2), vT[slot >> 1],
                                                                      (slot & 1) * 24576 + ks * 6144 + seg * 2048 + p * 512))
            return L

        def mm(n):
            b = n % 3
            c = 0 if n == 0 else None
            return [(AK, WB[b] + 4, XB[b], c), (AV, XB[b], WB[b] + 8, c), (AQ, WB[b], XB[b], c)]
        g("s_waitcnt vmcnt(6) lgkmcnt(0)")
        g.epoch_make()
        g.flag_regs(vEP, vZ)
        g.stamp(3, "ln")
        g.stamp(2)
        g("s_barrier")
        g.stamp(3)
        g(*reads(0))
        g(*reads(1))
        refill = {}
        for st, n0 in ((2, 0), (3, 3), (4, 6), (5, 10), (6, 14), (7, 18)):
            for seg in range(3):
                refill[n0 + seg] = (st, seg)
        for n in range(32):
            st, ks = n >> 2, n & 3
            M = mm(n)
            R = reads(n + 2)
            D = dma(*refill[n]) if n in refill and not g.o.get("x_nodmaq") else []
            if ks == 2 and st < 7:
                vm = {0: 4, 6: 0}.get(st, 6)
                g("s_waitcnt vmcnt(%d) lgkmcnt(7)" % vm)
                if st in (0, 3, 4):
                    g.stamp({0: 2, 3: 5, 4: 8}[st], "qkv")
                g("s_barrier")
                if st in (0, 3, 4):
                    g.stamp({0: 3, 3: 6, 4: 9}[st], "qkv")
            elif n == 31:
                g("s_waitcnt lgkmcnt(0)", "s_barrier")
            else:
                g("s_waitcnt lgkmcnt(7)")
            g.mfma(*M[0])
            g(*R[:4])
            g.mfma(*M[1])
            g(*R[4:])
            g(*D[:-1])
            g.mfma(*M[2])
            g(*D[-1:])
        g.stamp(4)
        g.stamp(10, "qkv")
        g.stamp(1, "f1")
        P = 64
        for q in range(4):
            g("v_subrev_u32 v%d, s%d, v%d" % (vXr + q, gTT, vXr + q))
        g("s_mul_i32 s%d, s%d, 0x%x" % (sD, sROT, 64 * 3584), "s_nop 4")
        for k in range(8):
            g("v_cvt_pk_bf16_f32 v%d, v%d, v%d" % (P + 8 + k, AK + 2 * k, AK + 2 * k + 1))
            if k == 3:
                g("buffer_store_dwordx4 %s, v10, %s, s%d offen%s" % (vr(P + 8, 4), sr(S_WS, 4), gK0, g.cc))
        g("buffer_store_dwordx4 %s, v10, %s, s%d offen%s" % (vr(P + 12, 4), sr(S_WS, 4), gK1, g.cc))
        for k in range(8):
            g("v_cvt_pk_bf16_f32 v%d, v%d, v%d" % (P + 16 + k, AV + 2 * k, AV + 2 * k + 1))
            if k == 3:
                g("buffer_store_dwordx4 %s, v11, %s, s%d offen offset:1024%s" % (vr(P + 16, 4), sr(S_WS, 4), gK0, g.cc))
        g("buffer_store_dwordx4 %s, v11, %s, s%d offen offset:1536%s" % (vr(P + 20, 4), sr(S_WS, 4), gK0, g.cc))
        for k in range(8):
            g("v_mul_f32 v%d, s%d, v%d" % (AQ + 2 * k, sF, AQ + 2 * k), "v_mul_f32 v%d, s%d, v%d" % (AQ + 2 * k + 1, sF, AQ + 2 * k + 1))
            g("v_cvt_pk_bf16_f32 v%d, v%d, v%d" % (P + k, AQ + 2 * k, AQ + 2 * k + 1))
            if k == 3:
                g("buffer_store_dwordx4 %s, v10, %s, s%d offen%s" % (vr(P, 4), sr(S_WS, 4), gQ0, g.cc))
        g("buffer_store_dwordx4 %s, v10, %s, s%d offen%s" % (vr(P + 4, 4), sr(S_WS, 4), gQ1, g.cc))
        g.stamp(2, "f1")

    def f1_signal(self, tag):
        g = self
        g.stamp(4, "f1")
        if g.o["f1wg"]:
            g("s_barrier", "s_cmp_lg_u32 s%d, 0" % sW, "s_cbranch_scc1 L_f1_%s" % tag)
            g.flag_store(gF1)
            g.label("L_f1_%s" % tag)
        else:
            g.flag_store(gF1)
        g.stamp(5)
        g.stamp(5, "f1")
        if g.o.get("diag") == "f1":
            g("s_waitcnt vmcnt(0)")
            g.stamp(6, "f1")

    def role_gu(self, done):
        g = self
        ACC = lambda tt, j: 128 + 16 * (4 * tt + j)
        AB = (16, 32)
        BB = (48, 56)
        vXr, vTg, vG = 4, 112, 116
        lc = g.o["lognc"]
        sOFF = 4
        fine = g.o["fine"] and lc < 2
        if g.o["xtrip"] == 99:
            for i in range(4):
                g("ds_read_b64 %s, v126 offset:%d" % (vr(96 + 2 * i, 2), 16 * i))
        g("s_waitcnt vmcnt(0) lgkmcnt(0)")
        g.f1_signal("a")
        if fine:
            g("s_lshr_b32 s%d, s10, %d" % (sA, lc + 3))
            if lc == 1:
                g("s_lshl_b32 s%d, s%d, 1" % (sA, sA))
            g("s_mul_i32 s%d, s%d, 0x420" % (sB, sA))
            for u in range(4):
                g("v_xor_b32 v%d, s%d, v%d" % (vXr + u, sB, vXr + u), "s_xor_b32 s%d, s%d, %d" % (sOFF + u, sA, u), "s_mul_i32 s%d, s%d, 0x%x" % (sOFF + u, sOFF + u, 16 * 3584))
        else:
            for u in range(4):
                g("s_mov_b32 s%d, 0x%x" % (sOFF + u, u * 16 * 3584))
        if g.o["gu_wait"]:
            g("s_barrier")
        g("s_cmp_lg_u32 s%d, 7" % sCB, "s_cbranch_scc1 L_gu_go")
        if g.o["mallwarm"]:
            g.shladd(sA, sRB, 2, sW)
            g("v_lshlrev_b32 v2, 7, v0", "s_mul_i32 s%d, s%d, 0x3800" % (sB, sA), "s_add_u32 s%d, s%d, 0x1800" % (sE, sB), "s_lshl_b32 s%d, s%d, 12" % (sA, sA),
              "v_and_b32 v3, 0xf80, v2", "s_sleep %d" % g.o["mallwarm"])
            g("buffer_load_dword v12, v2, %s, s%d offen" % (sr(S_WD, 4), sB), "s_waitcnt vmcnt(0)", "buffer_load_dword v12, v2, %s, s%d offen" % (sr(S_WD, 4), sE),
              "s_waitcnt vmcnt(0)", "buffer_load_dword v12, v3, %s, s%d offen" % (sr(S_WO, 4), sA), "s_waitcnt vmcnt(0)")
        g("s_branch %s" % done)
        g.label("L_gu_go")

        def dma(slot):
            L = []
            for gg in range(2):
                L.append(["s_add_u32 m0, s%d, 0x%x" % (gRING, slot * 4096 + gg * 2048),
                          "s_add_u32 s%d, s%d, s%d" % (sE, sD, sOFF + slot) if gg == 0 else "s_nop 0",
                          "buffer_load_dwordx4 v%d, %s, s%d offen lds" % (vG + 2 * gg, sr(S_WG + 4 * gg, 4), sE),
                          "buffer_load_dwordx4 v%d, %s, s%d offen offset:1024 lds" % (vG + 2 * gg + 1, sr(S_WG + 4 * gg, 4), sE)])
            return L
        nfirst = (1 << lc) if fine else 4
        for s in range(4):
            if s == nfirst:
                g("s_waitcnt vmcnt(0)")
            elif s:
                g("s_waitcnt vmcnt(%d)" % g.o["thr_gu0"])
            for x in dma(s):
                g(*x)

        def reads(u):
            b = u & 1
            L = []
            L.append("ds_read_b128 %s, v%d offset:%d" % (vr(BB[b], 4), vXr + u, 0))
            for p in range(2):
                L.append("ds_read_b64_tr_b16 %s, v%d offset:%d" % (vr(AB[b] + 2 * p, 2), vTg, u * 4096 + p * 512))
            L.append("ds_read_b128 %s, v%d offset:%d" % (vr(BB[b] + 4, 4), vXr + u, 32768))
            for j in range(1, 4):
                for p in range(2):
                    L.append("ds_read_b64_tr_b16 %s, v%d offset:%d" % (vr(AB[b] + 4 * j + 2 * p, 2), vTg + j, u * 4096 + p * 512))
            return L
        kb = g.o["gboost"]
        th = g.o["thr_gu"]

        def step(u, first=False):
            b = u & 1
            c = 0 if first else None
            M = [(ACC(tt, j), AB[b] + 4 * j, BB[b] + 4 * tt, c) for j in range(4) for tt in range(2)]
            R = reads((u + 1) & 3)
            D = dma(u)

            def mf(i):
                if kb and i == 8 - kb:
                    g("s_setprio 3")
                g.mfma(*M[i])
                if kb and i == 7:
                    g("s_setprio 0")
            g("s_waitcnt lgkmcnt(0)")
            mf(0)
            if u == 0:
                g("s_xor_b32 s%d, s%d, s%d" % (sD, sCNT, sROT), "s_mul_i32 s%d, s%d, 0x%x" % (sD, sD, 64 * 3584))
            if u == 3:
                g("s_setprio 3")
                for q in range(4):
                    g("v_add_u32 v%d, 0x1000, v%d" % (vXr + q, vXr + q))
                g("s_setprio 0")
            g("s_waitcnt vmcnt(%d)" % th)
            g(*D[0])
            g(*R[0:3])
            mf(1)
            g(*R[3:6])
            mf(2)
            g(*R[6:8])
            mf(3)
            g(*R[8:10])
            mf(4)
            g("s_waitcnt vmcnt(%d)" % th)
            g(*D[1])
            mf(5)
            mf(6)
            mf(7)
        if g.o["xtrip"] == 0:
            g.xres_load()
            g("s_waitcnt vmcnt(16)")
        else:
            g("s_waitcnt vmcnt(12)")
        g.stamp(6)
        g.stamp(6, "att")
        g(*reads(0))
        g("s_mov_b32 s%d, 1" % sCNT, "s_setprio 0")
        step(0, first=True)
        g("s_branch L_gu_1")
        g.label("L_gu_0")
        step(0)
        g.label("L_gu_1")
        step(1)
        step(2)
        step(3)
        if 0 < g.o["xtrip"] < 99:
            g("s_cmp_lg_u32 s%d, %d" % (sCNT, g.o["xtrip"]), "s_cbranch_scc1 L_gu_nx")
            g.xres_load()
            g.label("L_gu_nx")
        g("s_add_u32 s%d, s%d, 1" % (sCNT, sCNT), "s_cmp_lg_u32 s%d, 9" % sCNT, "s_cbranch_scc1 L_gu_0")
        g("s_waitcnt vmcnt(0) lgkmcnt(0)", "s_setprio 3")
        g.stamp(7)
        g.stamp(7, "att")
        g.stamp(1, "f2")
        g.down_first(g.o["dn_pre"])
        g("s_nop 5")
        order = [(tt, j) for j in range(4) for tt in range(2)]
        for n, (tt, j) in enumerate(order):
            a = ACC(tt, j)
            P = 16 + 4 * n
            for k in range(8):
                g("v_max_f32 v%d, 0, v%d" % (a + k, a + k))
            for k in range(8):
                g("v_mul_f32 v%d, v%d, v%d" % (a + k, a + k, a + 8 + k))
            for k in range(4):
                g("v_cvt_pk_bf16_f32 v%d, v%d, v%d" % (P + k, a + 2 * k, a + 2 * k + 1))
            if n > g.o["thr_st"]:
                g("s_waitcnt vmcnt(%d)" % g.o["thr_st"])
            g("buffer_store_dwordx4 %s, v10, %s, s%d offen offset:%d%s" % (vr(P, 4), sr(S_WS, 4), gH0 + tt, j * 1024, g.cc))
        g.stamp(2, "f2")
        g("s_waitcnt vmcnt(0)")
        g.stamp(3, "f2")
        g.flag_store(gF2)
        if g.o["xtrip"] < 0:
            g.xres_load()
        g("s_branch L_down2")
        g.label(done)
        if g.o["xtrip"] != 99:
            g.xres_load()
        g.down_first(g.o["dn_pre"])
        g.label("L_down2")

    def xres_load(self):
        for i in range(4):
            self("buffer_load_dwordx2 %s, v126, %s, s%d offen offset:%d" % (vr(96 + 2 * i, 2), sr(S_X, 4), sOUT, 16 * i))

    def wdma(self, slot):
        return ["s_add_u32 m0, s%d, 0x%x" % (gRING, slot * 2048), "s_nop 0",
                "buffer_load_dwordx4 v124, %s, s%d offen lds" % (sr(S_WD, 4), gWD),
                "buffer_load_dwordx4 v125, %s, s%d offen offset:1024 lds" % (sr(S_WD, 4), gWD),
                "s_add_u32 s%d, s%d, 0x4000" % (gWD, gWD), "s_cmp_eq_u32 s%d, s%d" % (gWD, gWD1), "s_cselect_b32 s%d, s%d, s%d" % (gWD, gWD0, gWD)]

    def down_first(self, n):
        g = self
        g("s_setprio 3")
        g.shladd(sA, sW, 2, "0x%x" % L_FLAG)
        g("v_mov_b32 v2, s%d" % sA, "v_mov_b32 v3, 1", "ds_write_b32 v2, v3 offset:16")
        for s in range(n):
            g(*g.wdma(s))

    def role_down(self):
        g = self
        ACC = lambda ln, lt: 128 + 16 * (ln + 2 * lt)
        HB = lambda slot, lt: 32 + 8 * slot + 4 * lt
        AB = (16, 24)
        vT, vT2 = (122, 123), (14, 15)
        fs = g.fs

        def hload(slot):
            return ["buffer_load_dwordx4 %s, v120, %s, s%d offen%s" % (vr(HB(slot, 0), 4), sr(S_WS, 4), gHL, g.lc),
                    "buffer_load_dwordx4 %s, v121, %s, s%d offen%s" % (vr(HB(slot, 1), 4), sr(S_WS, 4), gHL, g.lc),
                    "s_add_u32 s%d, s%d, 0x400" % (gHL, gHL), "s_cmp_eq_u32 s%d, s%d" % (gHL, gHL1), "s_cselect_b32 s%d, s%d, s%d" % (gHL, gHL0, gHL)]

        R = g.o["dring"]
        if R == 4:
            npre = 7
            wo_at = lambda t: ((gRING, 8192 + 2048 * t, vT) if t < 4 else (sE, 2048 * (t - 4), vT2)) if t < 7 else (gRING, 0, vT)
        else:
            npre = 4
            wo_at = lambda t: (gRING, 14336, vT) if t == 0 else ((sE, 2048 * (t - 1), vT2) if t < 4 else (gRING, 2048 * (t - 4), vT))

        def wo_dma(t):
            base, off, _ = wo_at(t)
            return ["s_add_u32 m0, s%d, 0x%x" % (base, off), "s_nop 0",
                    "buffer_load_dwordx4 v124, %s, s%d offen lds" % (sr(S_WO, 4), sF),
                    "buffer_load_dwordx4 v125, %s, s%d offen offset:1024 lds" % (sr(S_WO, 4), sF), "s_add_u32 s%d, s%d, 0x4000" % (sF, sF)]
        for s in range(g.o["dn_pre"], R):
            g("s_waitcnt vmcnt(%d)" % g.o["thr_d0"])
            g(*g.wdma(s))
        g("s_lshl_b32 s%d, s%d, 17" % (sF, sW), "s_mul_i32 s%d, s%d, 0x1800" % (sE, sW), "s_add_u32 s%d, s%d, 0x%x" % (sE, sE, L_WO2))
        for t in range(npre):
            g("s_waitcnt vmcnt(%d)" % g.o["thr_d0"])
            g(*wo_dma(t))
        g("s_sub_u32 s%d, s%d, s%d" % (sA, sE, gRING), "v_add_u32 v14, s%d, v122" % sA, "v_add_u32 v15, s%d, v123" % sA)
        g("s_lshl_b32 s%d, s%d, 16" % (sC, sRB2), "s_lshl_b32 s%d, s%d, 13" % (sB, sW), "s_add_u32 s%d, s%d, s%d" % (sC, sC, sB),
          "s_add_u32 s%d, s%d, 0x%x" % (sC, sC, WS_O), "s_add_u32 s%d, s%d, 0x1000" % (sB, sC))
        g("s_lshr_b32 s%d, s%d, 1" % (sA, sW), "s_lshl_b32 s%d, s%d, 15" % (sA, sA), "v_add_u32 v12, s%d, v10" % sA,
          "s_xor_b32 s%d, s%d, 0x8000" % (sA, sA), "v_add_u32 v13, s%d, v10" % sA)
        g("v_add_u32 v4, s%d, v10" % gRING)
        for k in range(1, 4):
            g("s_xor_b32 s%d, s%d, %d" % (sA, sW, k))
            g.shladd(sA, sA, 14, "0x%x" % L_RING)
            g("v_add_u32 v%d, s%d, v10" % (4 + k, sA))
        g("v_lshlrev_b32 v8, %d, v0" % fs)
        g.stamp(4, "f2")
        g("s_waitcnt vmcnt(%d)" % min(2 * npre, g.o["thr_d0"] + 2), "s_mov_b32 s%d, 0xffff0000" % sA)
        for k in range(8):
            g("v_lshlrev_b32 v%d, 16, v%d" % (ACC(0, 0) + 2 * k, 96 + k), "v_and_b32 v%d, s%d, v%d" % (ACC(0, 0) + 2 * k + 1, sA, 96 + k))
        g.poll("h", 8, gP2, 3, g.o["sleep2"], 0x7f)
        g.stamp(8)
        g.stamp(8, "att")
        g.stamp(5, "f2")
        for s in range(R):
            if s > 3:
                g("s_waitcnt vmcnt(%d)" % g.o["thr_h0"])
            g(*hload(s))

        def treads(vt, off, b):
            return ["ds_read_b64_tr_b16 %s, v%d offset:%d" % (vr(AB[b] + 4 * ln + 2 * p, 2), vt[ln], off + p * 1024) for ln in range(2) for p in range(2)]

        def wo_reads(t, b):
            return treads(wo_at(t)[2], wo_at(t)[1], b)
        g(*treads(vT, 0, 0))
        g("s_mov_b32 s%d, 6" % sCNT, "s_setprio %d" % g.o["dprio"])
        g.stamp(6, "f2")

        def step(hs, par, vmwait, Rd, Wr=(), Hr=(), first=False, thr=None):
            M = [(ACC(ln, lt), AB[par] + 4 * ln, HB(hs, lt), (0 if first and (ln or lt) else None)) for ln in range(2) for lt in range(2)]
            g("s_waitcnt vmcnt(%d) lgkmcnt(0)" % vmwait)
            g.mfma(*M[0])
            g(*Rd)
            g.mfma(*M[1])
            if Wr and thr is not None:
                g("s_waitcnt vmcnt(%d)" % thr)
            g(*Wr)
            g.mfma(*M[2])
            g.mfma(*M[3])
            if Hr and thr is not None:
                g("s_waitcnt vmcnt(%d)" % thr)
            g(*Hr)
        TH = g.o["thr_d"]
        if R == 4:
            def lstep(u, vm=10, first=False):
                step(u, u & 1, vm, treads(vT, ((u + 1) & 3) * 2048, (u + 1) & 1), g.wdma(u), hload(u), first, TH[1])
            lstep(0, 4, True)
            g("s_branch L_dn_1")
            g.label("L_dn_0")
            lstep(0)
            g.label("L_dn_1")
            lstep(1)
            lstep(2)
            lstep(3)
            g("s_sub_u32 s%d, s%d, 1" % (sCNT, sCNT), "s_cmp_lg_u32 s%d, 0" % sCNT, "s_cbranch_scc1 L_dn_0")
            step(0, 0, 10, treads(vT, 2048, 1), wo_dma(7))
            step(1, 1, 8, treads(vT, 4096, 0))
            step(2, 0, 4, treads(vT, 6144, 1))
            step(3, 1, 2, wo_reads(0, 0))
        else:
            for gs in range(28):
                s, rnd = gs % 7, gs // 7
                Rd = treads(vT, ((s + 1) % 7) * 2048, (gs + 1) & 1) if gs < 27 else wo_reads(0, 0)
                if rnd == 0:
                    vm = min(2 * (6 - s) + 4 * s, 22)
                elif rnd < 3:
                    vm = 22
                else:
                    vm = (2 + 4 * (5 - s) if s < 6 else 0) + 2 * min(s, 4)
                if s == 0:
                    g.stamp(7 + rnd, "f2")
                if rnd < 3:
                    step(s, gs & 1, vm, Rd, g.wdma(s), hload(s), gs == 0, TH[rnd])
                else:
                    step(s, gs & 1, vm, Rd, wo_dma(4 + s) if s < 4 else ())
        g.stamp(9)
        g.stamp(9, "att")
        g("s_setprio 3")
        g.poll("o", 8, gP3, 3, g.o["sleep3"], 0xff)
        g.stamp(10)
        for s in range(8):
            for lt in range(2):
                g("buffer_load_dwordx4 %s, v%d, %s, s%d offen offset:%d%s" % (vr(HB(s, lt), 4), 12 + lt, sr(S_WS, 4), sC if s < 4 else sB, (s & 3) * 1024, g.lc))
        for s in range(8):
            step(s, s & 1, 14 - 2 * s, wo_reads(s + 1, (s + 1) & 1) if s < 7 else [])
        g.stamp(1, "fin")
        g("s_nop 9")
        for k in (2, 1, 3):
            a = ACC(k & 1, k >> 1)
            for i in range(4):
                g("ds_write_b128 v4, %s offset:%d" % (vr(a + 4 * i, 4), (k - 1) * 4096 + i * 1024))
        g("s_waitcnt lgkmcnt(0)")
        g.stamp(2, "fin")
        g("s_barrier")
        g.stamp(3, "fin")
        for k in range(1, 4):
            for i in range(4):
                g("ds_read_b128 %s, v%d offset:%d" % (vr(32 + 16 * (k - 1) + 4 * i, 4), 4 + k, (k - 1) * 4096 + i * 1024))
        a = ACC(0, 0)
        for k in range(1, 4):
            g("s_waitcnt lgkmcnt(%d)" % (4 * (3 - k)))
            for i in range(16):
                g("v_add_f32 v%d, v%d, v%d" % (a + i, a + i, 32 + 16 * (k - 1) + i))
        for k in range(8):
            g("v_cvt_pk_bf16_f32 v%d, v%d, v%d" % (16 + k, a + 2 * k, a + 2 * k + 1))
        g("s_lshl2_add_u32 s3, s2, s%d" % sW)
        g("v_permlane32_swap_b32 v16, v18", "v_permlane32_swap_b32 v17, v19", "v_permlane32_swap_b32 v20, v22", "v_permlane32_swap_b32 v21, v23")
        g("buffer_store_dwordx4 v[16:19], v127, %s, s%d offen" % (sr(S_OUT, 4), sOUT), "buffer_store_dwordx4 v[20:23], v127, %s, s%d offen offset:32" % (sr(S_OUT, 4), sOUT))
        g.stamp(4, "fin")
        g("s_cmp_lg_u32 s3, 0", "s_cbranch_scc1 L_dn_end", "s_mov_b32 s%d, 0x%x" % (sA, F_EPOCH))
        g.flag_store(sA)
        g.label("L_dn_end")


def probe_kernel(g, a, b, mult):
    kernel_head(g, "kp_kernel")
    g("s_cmp_ge_u32 s2, 1", "s_cbranch_scc1 L_kp_end")
    g("s_load_dwordx2 s[22:23], s[0:1], 72", "s_memrealtime s[30:31]", "s_waitcnt lgkmcnt(0)")
    g.srd(S_WS, 22, WS_SIZE)
    g("v_lshlrev_b32 v1, 9, v0")
    for n, (w, sl, op) in enumerate((a, b)):
        for q in range(4):
            g("s_mov_b32 s3, 0x%x" % (WS_STAMP + w * 64 + sl * 4 + q * 32768))
            g("buffer_load_dword v%d, v1, %s, s3 offen" % (4 + q, sr(S_WS, 4)))
        g("s_waitcnt vmcnt(0)")
        if op == "min":
            for q in range(4):
                g("v_subrev_u32 v%d, 1, v%d" % (4 + q, 4 + q))
        g("v_%s_u32 v4, v4, v5" % op, "v_%s_u32 v6, v6, v7" % op, "v_%s_u32 v4, v4, v6" % op, "s_nop 1")
        g("v_readlane_b32 s%d, v4, 0" % (40 + n))
        for l in range(1, 64):
            g("v_readlane_b32 s35, v4, %d" % l, "s_nop 0", "s_%s_u32 s%d, s%d, s35" % (op, 40 + n, 40 + n))
    g("s_sub_u32 s42, s41, s40", "s_mul_i32 s42, s42, %d" % mult, "s_min_u32 s42, s42, 100000")
    g.label("L_kp_spin")
    g("s_memrealtime s[32:33]", "s_waitcnt lgkmcnt(0)", "s_sub_u32 s34, s32, s30", "s_cmp_lt_u32 s34, s42", "s_cbranch_scc1 L_kp_spin")
    g.label("L_kp_end")
    g("s_endpgm")


HEADER = """; Kernarg layout (80 bytes, pointers only):
"""


def kd(name, vgpr=256, sgpr=102):
    return """.amdhsa_kernel %s
  .amdhsa_next_free_vgpr %d
  .amdhsa_next_free_sgpr %d
  .amdhsa_accum_offset %d
  .amdhsa_group_segment_fixed_size 0
  .amdhsa_kernarg_size 80
  .amdhsa_user_sgpr_count 2
  .amdhsa_user_sgpr_kernarg_segment_ptr 1
  .amdhsa_system_sgpr_workgroup_id_x 1
.end_amdhsa_kernel
""" % (name, vgpr, sgpr, (vgpr + 3) // 4 * 4)


def kernel_head(g, name):
    g(".globl %s" % name, ".p2align 8", ".type %s,@function" % name)
    g.label(name)


DEFAULT = dict(lognc=2, stamps=0, logfs=7, f1wg=1, rot=1, lnsched=(8, 0, 0, 0, 0, 0, 0, 0), lnpk=1, gu_wait=1, warm_gu=0, barP=1, dma_first=1,
               codepf=1, kvbuf=8, kvrot=0, kvpre=2, kvskip=1, fine=1, tlbw=0, mallwarm=64, warmA=0, warmAt=6, dn_pre=3, thr_gu=6, thr_gu0=4, thr_st=8, thr_d0=6, thr_h0=6,
               thr_d=(6, 8, None, None), xtrip=99, dring=7, gboost=0, dprio=0, presleep=0, sleep1=1, sleep2=4, sleep3=2,
               order="A e0 e1 e2 B e3 e4 e5 | S c0 c1 e6 x0 e7 e8 x1 c2 c3 x2 e9 e10 e11 c4 x3 e12 e13 c5 e14 e15 c6 c7")


def build(opts, probe=None):
    o = dict(DEFAULT)
    o.update(opts)
    K = NAME + "_kernel"
    out = HEADER
    if probe:
        out += "; @launch kernel=%s grid=(256,1,1) block=(512,1,1) lds=163840\n; @launch kernel=kp_kernel grid=(256,1,1) block=(64,1,1) lds=0\n" % K
    else:
        out += "; @launch grid=(256,1,1) block=(512,1,1) lds=163840\n"
    out += '.amdgcn_target "amdgcn-amd-amdhsa--gfx950"\n.text\n'
    g = G(o)
    kernel_head(g, K)
    g.prologue("L_end", "L_gemm")
    g.role_ln()
    g.role_attn()
    g.stamp_dump()
    g.label("L_end")
    g("s_endpgm")
    for lab, ins, back in g.cold:
        g.label(lab)
        g(ins, "s_branch " + back)
    g(".p2align 6")
    g.label("L_gemm")
    g.role_qkv()
    g.role_gu("L_down")
    g.role_down()
    g.stamp_dump()
    g("s_endpgm")
    g.label("L_code_end")
    g.role_attn_slow()
    names = [K]
    if probe:
        probe_kernel(g, *probe)
        names.append("kp_kernel")
    body = "\n".join(("" if l.endswith(":") or l.startswith(".") else "  ") + l for l in g.L)
    out += body + "\n" + '.section .rodata,"a"\n'
    for n in names:
        out += ".p2align 6\n" + kd(n)
    return out, names


if __name__ == "__main__":
    dst = sys.argv[1]
    opts = eval("dict(%s)" % sys.argv[2]) if len(sys.argv) > 2 else {}
    probe = opts.pop("probe", None)
    asm, names = build(opts, probe)
    errs = check.check(asm, names)
    for e in errs[:6]:
        print(e)
    print("%s: %d checker problems, %d lines" % (dst, len(errs), asm.count("\n")))
    open(dst, "w").write(asm)
```

```python
import sys, os, math, struct
sys.path.insert(0, os.path.dirname(os.path.abspath(__file__)))
import check

NAME = "parallel_sum__softmax_full_mha__glu_gated_reglu__prompt"

F_EPOCH = 0
F1 = 0x40000
F2 = 0x60000
F3 = 0x80000
WS_STAMP = 0x10000
WS_Q = 1 << 20
WS_KV = 3 << 20
WS_O = 7 << 20
WS_H = 9 << 20
WS_SIZE = 17 << 20

L_W = 65536
L_FLAG = 65536
L_RING = 65536 + 256
L_WO2 = L_RING + 65536

S_X, S_WQ, S_WG, S_WU, S_WD, S_WO, S_OUT, S_WS, S_KV = 24, 28, 32, 36, 40, 44, 48, 52, 56
sW = 60
sRB, sCB, sHEAD, sQB, sRB2, sCB2, sCNT = 61, 62, 63, 64, 65, 66, 67
sA, sB, sC, sD, sE, sF = 68, 69, 70, 71, 72, 73
sOUT, sEP = 74, 75
sMASK = 76
gQ0, gQ1, gK0, gK1, gF1, gH0, gH1, gRING, gF2, gP2, gP3, gHL, gWD, gTT = 4, 5, 6, 7, 8, 12, 13, 14, 15, 16, 17, 18, 19, 20
gHL0, gWD0, gHL1, gWD1, gROT2 = 56, 57, 58, 59, 9
sROT = 21
vEP, vZ = 110, 111
aQ0, aQ1, aO0, aO1, aF3, aP1 = 4, 5, 6, 7, 8, 9
POLL_LIMIT = 0x40000


def f2u(x):
    return struct.unpack("<I", struct.pack("<f", x))[0]


def vr(b, n=1):
    return "v%d" % b if n == 1 else "v[%d:%d]" % (b, b + n - 1)


def sr(b, n=1):
    return "s%d" % b if n == 1 else "s[%d:%d]" % (b, b + n - 1)


class G:
    def __init__(self, opts):
        self.L = []
        self.cold = []
        self.o = opts
        self.cc = " sc1"
        self.lc = opts.get("ldmod", " sc1")
        self.fs = opts["logfs"]

    def __call__(self, *lines):
        for l in lines:
            self.L.extend(l.split("\n"))

    def s(self, fmt, *a):
        self(fmt % a)

    def label(self, n):
        self.L.append(n + ":")

    def mfma(self, d, a, b, c=None):
        cs = "0" if c == 0 else vr(d, 16)
        self("v_mfma_f32_32x32x16_bf16 %s, %s, %s, %s" % (vr(d, 16), vr(a, 4), vr(b, 4), cs))

    def srd(self, s, ptr, nbytes):
        self("s_mov_b32 s%d, s%d" % (s, ptr), "s_mov_b32 s%d, s%d" % (s + 1, ptr + 1),
             "s_mov_b32 s%d, 0x%x" % (s + 2, nbytes), "s_mov_b32 s%d, 0x20000" % (s + 3))

    def shladd(self, d, a, k, b):
        if isinstance(b, str):
            self("s_lshl_b32 s%d, s%d, %d" % (d, a, k), "s_add_u32 s%d, s%d, %s" % (d, d, b))
        elif d != b and 1 <= k <= 4:
            self("s_lshl%d_add_u32 s%d, s%d, s%d" % (k, d, a, b))
        elif 1 <= k <= 4:
            self("s_lshl%d_add_u32 s%d, s%d, s%d" % (k, d, a, b))
        else:
            assert d != b
            self("s_lshl_b32 s%d, s%d, %d" % (d, a, k), "s_add_u32 s%d, s%d, s%d" % (d, d, b))

    def stamp(self, slot, grp="main"):
        if self.o.get("stamps") and (slot in (0, 11) or grp == self.o.get("diag", "main")):
            self("%s s[%d:%d]" % ("s_memtime" if self.o.get("stamps") == 2 else "s_memrealtime", 78 + 2 * slot, 79 + 2 * slot))

    def stamp_init(self):
        if self.o.get("stamps"):
            for k in range(1, 12):
                self("s_mov_b32 s%d, 0" % (78 + 2 * k))

    def stamp_dump(self):
        if not self.o.get("stamps"):
            return
        g = self
        g("s_waitcnt vmcnt(0)")
        g.stamp(11)
        g("s_lshl_b32 s3, s2, 3", "s_add_u32 s3, s3, s11", "s_lshl_b32 s3, s3, 6",
          "s_add_u32 s3, s3, 0x%x" % WS_STAMP, "s_waitcnt lgkmcnt(0)", "v_mov_b32 v1, 0", "s_mov_b64 exec, 1")
        for k in range(12):
            g("v_mov_b32 v2, s%d" % (78 + 2 * k), "buffer_store_dword v2, v1, %s, s3 offen offset:%d" % (sr(S_WS, 4), 4 * k))

    def prologue(self, end, gemm):
        g = self
        g.stamp(0)
        g("s_cmp_ge_u32 s2, 0x100", "s_cbranch_scc1 %s" % end)
        g("s_load_dwordx4 s[4:7], s[0:1], 0", "s_load_dwordx2 s[22:23], s[0:1], 72", "s_load_dwordx2 s[8:9], s[0:1], 16",
          "s_load_dwordx8 s[12:19], s[0:1], 32")
        g.stamp_init()
        g("v_lshrrev_b32 v1, 6, v0", "v_and_b32 v0, 63, v0")
        g("s_and_b32 s3, s2, 7", "s_lshr_b32 s10, s2, 3")
        g("v_readfirstlane_b32 s11, v1")
        lc = g.o["lognc"]
        g("s_and_b32 s%d, s3, %d" % (sCB, (8 >> lc) - 1), "s_lshl_b32 s%d, s%d, %d" % (sCB, sCB, lc), "s_and_b32 s%d, s10, %d" % (sA, (1 << lc) - 1),
          "s_or_b32 s%d, s%d, s%d" % (sCB, sCB, sA))
        g("s_lshr_b32 s%d, s3, %d" % (sRB, 3 - lc), "s_lshl_b32 s%d, s%d, %d" % (sRB, sRB, 5 - lc), "s_lshr_b32 s%d, s10, %d" % (sA, lc),
          "s_or_b32 s%d, s%d, s%d" % (sRB, sRB, sA))
        if g.o["rot"]:
            g("s_and_b32 s%d, s10, %d" % (sROT, (1 << lc) - 1), "s_lshl_b32 s%d, s%d, %d" % (sROT, sROT, 3 - lc), "s_add_u32 s%d, s%d, s%d" % (sROT, sROT, sA),
              "s_and_b32 s%d, s%d, 7" % (sROT, sROT))
        else:
            g("s_mov_b32 s%d, 0" % sROT)
        if g.o["codepf"]:
            g("s_getpc_b64 s[56:57]")
            g.label("L_pc")
            g("s_mov_b32 s58, L_code_end-L_pc", "s_mov_b32 s59, 0x20000", "s_lshl3_add_u32 s%d, s10, s11" % sB, "s_lshl_b32 s%d, s%d, 7" % (sB, sB))
            g("buffer_load_dword v255, off, s[56:59], s%d" % sB)
        g("s_and_b32 s%d, s11, 3" % sW)
        g("s_cmp_ge_u32 s11, 4", "s_cbranch_scc1 %s" % gemm)

    def ws_base(self):
        if self.o["wsbase"]:
            self("s_add_u32 s22, s22, 0x%x" % (self.o["wsbase"] << 20), "s_addc_u32 s23, s23, 0")

    def epoch_load(self):
        self("s_load_dword s%d, s[22:23], 0x%x" % (sEP, F_EPOCH))

    def epoch_make(self):
        self("s_mul_i32 s%d, s%d, 0x19660d" % (sEP, sEP), "s_add_u32 s%d, s%d, 0x3c6ef35f" % (sEP, sEP))

    def flag_regs(self, ve, vz):
        self("v_mov_b32 v%d, s%d" % (ve, sEP), "v_mov_b32 v%d, 0" % vz)

    def flag_store(self, soff, ve=vEP, vz=vZ):
        self("s_mov_b64 exec, 1", "buffer_store_dword v%d, v%d, %s, s%d offen sc1" % (ve, vz, sr(S_WS, 4), soff), "s_mov_b64 exec, -1")

    def poll(self, name, voff, soff, vtmp, sleep, lanes):
        g = self
        g("s_mov_b32 s3, 0", "s_mov_b32 exec_lo, 0x%x" % lanes, "s_mov_b32 exec_hi, 0")
        g.label("L_poll_" + name)
        g("buffer_load_dword v%d, v%d, %s, s%d offen sc1" % (vtmp, voff, sr(S_WS, 4), soff), "s_add_u32 s3, s3, 1", "s_waitcnt vmcnt(0)")
        g("v_cmp_ne_u32 vcc, s%d, v%d" % (sEP, vtmp), "s_cmp_gt_u32 s3, 0x%x" % POLL_LIMIT, "s_cbranch_vccz L_polld_" + name)
        g("s_cbranch_scc1 L_polld_" + name)
        if sleep:
            g("s_sleep %d" % sleep)
        g("s_branch L_poll_" + name)
        g.label("L_polld_" + name)
        g("s_mov_b64 exec, -1")

    def wq_setup(self, sbase):
        g = self
        g("v_lshrrev_b32 v2, 3, v0", "v_lshrrev_b32 v1, 2, v0", "v_and_b32 v1, 4, v1", "v_xor_b32 v15, v0, v1", "v_and_b32 v12, 7, v15")
        g("s_lshl_b32 s%d, s%d, 4" % (sA, sW), "v_add_u32 v15, s%d, v2" % sA, "v_mul_u32_u24 v15, 0xc00, v15")
        g("s_lshl_b32 s%d, s%d, 7" % (sA, sCB), "v_lshl_add_u32 v15, v12, 4, v15", "v_add_u32 v96, s%d, v15" % sA)
        for seg in range(3):
            for e in range(2):
                if seg or e:
                    g("v_add_u32 v%d, 0x%x, v96" % (96 + 2 * seg + e, seg * 1024 + e * (8 * 3072 - 1024)))
        g("s_mul_i32 s%d, s%d, 0x1800" % (sbase, sW), "s_add_u32 s%d, s%d, 0x%x" % (sbase, sbase, L_W))

    def wq_dma(self, sbase, st, seg):
        L = []
        if seg == 0:
            L += ["s_xor_b32 s%d, s%d, %d" % (sCNT, sROT, st), "s_mul_i32 s%d, s%d, 0x%x" % (sCNT, sCNT, 64 * 3072)]
        L.append("s_add_u32 m0, s%d, 0x%x" % (sbase, (st & 3) * 24576 + seg * 2048))
        L.append("s_nop 0")
        L.append("buffer_load_dwordx4 v%d, %s, s%d offen lds" % (96 + 2 * seg, sr(S_WQ, 4), sCNT))
        L.append("buffer_load_dwordx4 v%d, %s, s%d offen offset:1024 lds" % (97 + 2 * seg, sr(S_WQ, 4), sCNT))
        return L

    def role_ln(self):
        g = self
        X = lambda e, i: 16 + 32 * e + 4 * i
        SUM, SQ = (6, 8), (7, 9)
        RI, NB = (10, 12), (11, 13)
        T = 80
        lc = g.o["lognc"]
        g("v_lshrrev_b32 v2, 3, v0", "v_and_b32 v3, 7, v0")
        g("v_lshlrev_b32 v4, 10, v2", "v_lshl_add_u32 v4, v3, 4, v4")
        g.shladd(sA, sRB, 2, sW)
        g("s_lshl_b32 s%d, s%d, 14" % (sA, sA), "s_lshl_b32 s%d, s%d, 7" % (sB, sROT), "s_add_u32 s%d, s%d, s%d" % (sA, sA, sB), "v_add_u32 v14, 0x2000, v4")
        for i in range(8):
            g("s_xor_b32 s%d, s%d, 0x%x" % (28 + i, sA, 128 * i))
        g("s_waitcnt lgkmcnt(0)")
        g.srd(S_X, 4, 2048 * 1024)
        g.ws_base()
        g.stamp(1)
        for i in range(8):
            for e in range(2):
                g("buffer_load_dwordx4 %s, v%d, %s, s%d offen" % (vr(X(e, i), 4), (4, 14)[e], sr(S_X, 4), 28 + i))
        g.stamp(1, "ln")
        if g.o["barP"]:
            g("s_barrier")
        g.epoch_load()
        g.srd(S_WS, 22, WS_SIZE)
        g("s_and_b32 s%d, s10, 3" % sA)
        g.shladd(sHEAD, 3, 2, sA)
        g("s_lshr_b32 s%d, s10, 2" % sQB)
        if g.o["lndma"]:
            g.srd(S_WQ, 6, 512 * 3072)
            g.wq_setup(sF)
        g("v_xor_b32 v5, v2, v3", "v_lshlrev_b32 v5, 4, v5", "v_lshl_add_u32 v5, v3, 9, v5")
        g("s_lshr_b32 s%d, s%d, 1" % (sC, sW), "s_lshl_b32 s%d, s%d, 15" % (sC, sC),
          "s_and_b32 s%d, s%d, 1" % (sD, sW), "s_lshl_b32 s%d, s%d, 8" % (sD, sD), "s_add_u32 s%d, s%d, s%d" % (sC, sC, sD))
        g("v_add_u32 v5, s%d, v5" % sC)
        g("s_mov_b32 s%d, 0x3f803f80" % sC, "s_mov_b32 s%d, 0xffff0000" % sD)
        for r in (6, 7, 8, 9):
            g("v_mov_b32 v%d, 0" % r)
        for i in range(8):
            for e in range(2):
                g("s_waitcnt vmcnt(%d)" % (15 - 2 * i - e + 0))
                if e == 0 and i in (0, 4):
                    g.stamp(2 + i // 4, "ln")
                for k in range(4):
                    x = X(e, i) + k
                    g("v_dot2c_f32_bf16 v%d, s%d, v%d" % (SUM[e], sC, x), "v_dot2c_f32_bf16 v%d, v%d, v%d" % (SQ[e], x, x))
        g.stamp(2)
        g.stamp(4, "ln")
        g("s_nop 0")
        for dpp in ("quad_perm:[1,0,3,2]", "quad_perm:[2,3,0,1]", "row_half_mirror"):
            for r in (6, 7, 8, 9):
                g("v_add_f32_dpp v%d, v%d, v%d %s row_mask:0xf bank_mask:0xf" % (r, r, r, dpp))
        inv = "0x%x" % f2u(1.0 / 512)
        eps = "0x%x" % f2u(1e-5)
        for e in range(2):
            g("v_mul_f32 v%d, %s, v%d" % (SUM[e], inv, SUM[e]), "v_mul_f32 v%d, %s, v%d" % (SQ[e], inv, SQ[e]))
        for e in range(2):
            g("v_fma_f32 v%d, -v%d, v%d, v%d" % (SQ[e], SUM[e], SUM[e], SQ[e]))
        for e in range(2):
            g("v_max_f32 v%d, 0, v%d" % (SQ[e], SQ[e]))
        for e in range(2):
            g("v_cvt_pk_bf16_f32 v%d, v%d, v%d" % (SQ[e], SUM[e], SQ[e]))
        for e in range(2):
            g("v_lshlrev_b32 v%d, 16, v%d" % (SUM[e], SQ[e]), "v_and_b32 v%d, s%d, v%d" % (SQ[e], sD, SQ[e]))
        for e in range(2):
            g("v_add_f32 v%d, %s, v%d" % (SQ[e], eps, SQ[e]))
        g("v_cvt_pk_bf16_f32 v7, v7, v9", "v_and_b32 v9, s%d, v7" % sD, "v_lshlrev_b32 v7, 16, v7")
        g("v_sqrt_f32 v7, v7", "v_sqrt_f32 v9, v9", "s_nop 0")
        g("v_cvt_pk_bf16_f32 v7, v7, v9", "v_and_b32 v9, s%d, v7" % sD, "v_lshlrev_b32 v7, 16, v7")
        g("v_rcp_f32 v%d, v7" % RI[0], "v_rcp_f32 v%d, v9" % RI[1], "s_nop 0")
        for e in range(2):
            g("v_mul_f32 v%d, v%d, v%d" % (NB[e], SUM[e], RI[e]))
        g.stamp(5, "ln")

        def chunk(i, pk):
            for e in range(2):
                x = X(e, i)
                for k in range(4):
                    g("v_lshlrev_b32 v%d, 16, v%d" % (T + 2 * k, x + k), "v_and_b32 v%d, s%d, v%d" % (T + 2 * k + 1, sD, x + k))
                for k in range(4):
                    t = T + 2 * k
                    if pk:
                        g("v_pk_fma_f32 %s, %s, %s, %s op_sel:[0,0,1] op_sel_hi:[1,0,1] neg_lo:[0,0,1] neg_hi:[0,0,1]" % (vr(t, 2), vr(t, 2), vr(RI[e], 2), vr(RI[e], 2)))
                    else:
                        g("v_fma_f32 v%d, v%d, v%d, -v%d" % (t, t, RI[e], NB[e]), "v_fma_f32 v%d, v%d, v%d, -v%d" % (t + 1, t + 1, RI[e], NB[e]))
                for k in range(4):
                    g("v_cvt_pk_bf16_f32 v%d, v%d, v%d" % (x + k, T + 2 * k, T + 2 * k + 1))
                g("ds_write_b128 v5, %s offset:%d" % (vr(x, 4), i * 4096 + e * 128))
        sched = g.o["lnsched"]
        done = 0
        lnd = g.o["lndma"]
        for i in range(8):
            for _ in range(sched[i]):
                chunk(done, g.o["lnpk"] == 2 or (g.o["lnpk"] == 1 and i == 0))
                done += 1
                if done % 2 == 0:
                    g.stamp(5 + done // 2, "ln")
            if lnd and i == 1:
                assert sched[1] == 0
                continue
            assert done > (i if not lnd or i else 1)
            if i == 7:
                g.shladd(sA, sW, 2, "0x%x" % L_FLAG)
                g("v_mov_b32 v14, s%d" % sA, "v_mov_b32 v15, 0", "ds_write_b32 v14, v15", "ds_write_b32 v14, v15 offset:16")
            if sched[i] or i == 7:
                g("s_waitcnt lgkmcnt(0)")
            if lnd and i >= 4:
                g("s_waitcnt vmcnt(%d)" % (6 if i < 7 else (2 if g.o["xtrip"] == 99 else 0)))
            if i == 0:
                g.stamp(3)
            g.stamp(i + 1, "qkv")
            g("s_barrier")
            if i == 0:
                g.epoch_make()
            if lnd and 2 <= i <= 5:
                for seg in range(3):
                    g(*g.wq_dma(sF, i + 2, seg))
            if g.o["xtrip"] == 99 and i == 6:
                g("s_lshr_b32 s%d, s10, 3" % sA)
                g.shladd(sA, 3, 2, sA)
                g.shladd(sA, sA, 2, sW)
                g("s_lshl_b32 s%d, s%d, 14" % (sA, sA), "s_and_b32 s%d, s10, 7" % sB, "s_lshl_b32 s%d, s%d, 7" % (sB, sB), "s_add_u32 s%d, s%d, s%d" % (sA, sA, sB))
                g.shladd(sB, sW, 11, "0x%x" % L_RING)
                g("s_mov_b32 m0, s%d" % sB, "s_add_u32 s%d, s%d, 0x1c00" % (sB, sA))
                g("buffer_load_dwordx4 v4, %s, s%d offen lds" % (sr(S_X, 4), sA), "buffer_load_dwordx4 v4, %s, s%d offen offset:1024 lds" % (sr(S_X, 4), sB))
        assert done == 8

    def lds_wait_all(self, name, vaddr, off, t):
        g = self
        g("s_mov_b32 s3, 0")
        g.label("L_lw_" + name)
        g("ds_read_b128 %s, v%d offset:%d" % (vr(t, 4), vaddr, off), "s_add_u32 s3, s3, 1", "s_waitcnt lgkmcnt(0)",
          "v_and_b32 v%d, v%d, v%d" % (t, t, t + 1), "v_and_b32 v%d, v%d, v%d" % (t + 2, t + 2, t + 3), "v_and_b32 v%d, v%d, v%d" % (t, t, t + 2),
          "v_cmp_ne_u32 vcc, 1, v%d" % t, "s_cmp_gt_u32 s3, 0x%x" % (POLL_LIMIT * 8), "s_cbranch_vccz L_lwd_" + name, "s_cbranch_scc0 L_lw_" + name)
        g.label("L_lwd_" + name)

    def role_attn(self):
        g = self
        O = lambda i: 128 + 16 * i
        Q = lambda i: 4 + 4 * i
        S = (36, 52)
        P = 68
        KB = lambda b: 76 + 12 * b
        VB = lambda b, t: KB(b) + 4 + 4 * t
        vL, vV = 2, 3
        aQ = 12
        cc = g.cc
        fs = g.fs
        g("v_lshlrev_b32 v2, 4, v0")
        g("v_lshrrev_b32 v1, 5, v0", "v_and_b32 v3, 15, v0", "v_lshlrev_b32 v3, 4, v3", "v_lshl_add_u32 v3, v1, 8, v3")
        g("s_lshl_b32 s%d, s%d, 6" % (sD, sHEAD))
        g.shladd(sA, sW, 4, sD)
        g.shladd(sA, sA, 11, "0x%x" % WS_KV)
        g("s_add_u32 s%d, s22, s%d" % (S_KV, sA), "s_addc_u32 s%d, s23, 0" % (S_KV + 1), "s_mov_b32 s%d, 0x8000" % (S_KV + 2),
          "s_mov_b32 s%d, 0x20000" % (S_KV + 3))
        g.shladd(sC, sQB, 3, sD)
        for j in range(4):
            g("s_xor_b32 s%d, s%d, %d" % (sA, sW, j))
            g.shladd(sA, sA, 1, sC)
            g.shladd(aQ + j, sA, 10, "0x%x" % WS_Q)
        g.shladd(sE, sQB, 2, sW)
        g("s_lshl_b32 s%d, s%d, 1" % (sE, sE))
        g.shladd(aO0, sE, 5, sHEAD)
        g.shladd(aO0, aO0, 10, "0x%x" % WS_O)
        g("s_add_u32 s%d, s%d, 0x8000" % (aO1, aO0))
        g.shladd(aF3, sE, 4, sHEAD)
        g.shladd(aF3, aF3, fs, "0x%x" % F3)
        g("s_lshr_b32 s%d, s%d, 2" % (aP1, sHEAD))
        g.shladd(aP1, aP1, 5 + fs, "0x%x" % F1)
        g("v_and_b32 v124, 31, v0", "v_lshlrev_b32 v124, %d, v124" % fs)
        g("s_mov_b32 s%d, 0xffff" % sMASK, "s_mov_b32 s%d, 0xffff" % (sMASK + 1))
        g("v_and_b32 v1, 27, v0", "v_mov_b32 v126, 0x3f803f80", "v_cmp_eq_u32 vcc, 16, v1", "s_mov_b32 s%d, %d" % (sCNT, g.o.get("x_attn_it", 4)), "s_mov_b32 s%d, 0" % sD,
          "v_cndmask_b32 v1, 0, v126, vcc")
        g("s_waitcnt vmcnt(0)")
        g("s_barrier")
        for b in range(4):
            for k in range(8):
                g("v_mov_b32 v%d, v1" % (VB(b, 0) + k))
        for k in range(128):
            g("v_mov_b32 v%d, 0" % (O(0) + k))
        g("s_barrier")
        g("s_setprio %d" % g.o.get("aprio", 2))
        g.stamp(4)
        g.stamp(1, "f1")
        g.poll("qkv", 124, aP1, 125, g.o["sleep1"], 0xffffffff)
        g.stamp(5)
        g.stamp(3, "f1")

        def qload(i):
            return "buffer_load_dwordx4 %s, v2, %s, s%d offen offset:%d%s" % (vr(Q(i), 4), sr(S_WS, 4), aQ + (i >> 1), (i & 1) * 1024, g.lc)

        def loads(b):
            return ["buffer_load_dwordx4 %s, v2, %s, s%d offen%s" % (vr(KB(b), 4), sr(S_KV, 4), sD, g.lc),
                    "s_mov_b64 exec, %s" % sr(sMASK, 2),
                    "buffer_load_dwordx4 %s, v3, %s, s%d offen offset:1024%s" % (vr(VB(b, 0), 4), sr(S_KV, 4), sD, g.lc),
                    "buffer_load_dwordx4 %s, v3, %s, s%d offen offset:1536%s" % (vr(VB(b, 1), 4), sr(S_KV, 4), sD, g.lc),
                    "s_mov_b64 exec, -1",
                    "s_add_u32 s%d, s%d, 0x800" % (sD, sD)]
        L0 = loads(0)
        g(qload(0), L0[0], qload(1), *L0[1:])
        for i in range(2, 8):
            g(qload(i))
        npre = g.o["kvpre"]
        for p in range(1, 3):
            if p == npre and g.o["gu_wait"]:
                g("s_barrier")
            g(*loads(p))
        if npre >= 3 and g.o["gu_wait"]:
            g("s_barrier")
        g("s_mov_b64 vcc, -1")
        g("s_waitcnt vmcnt(15)")
        g.mfma(S[0], KB(0), Q(0), 0)
        g("s_nop 11")
        g.stamp(6)
        g.stamp(9, "att")
        g.stamp(4, "f1")
        order = g.o["order"].split()

        def step(n, skip_pv=False, only=None):
            pn, nn = (n - 1) % 32, (n + 1) % 32
            X = loads((n // 8 - 1) % 4) if n % 8 == 0 else None
            s0 = S[n & 1]
            for t in (order if only is None else only):
                if t == "A":
                    if not skip_pv:
                        g.mfma(O(pn & 7), VB(pn >> 3, 0), P)
                elif t == "B":
                    if not skip_pv:
                        g.mfma(O(pn & 7), VB(pn >> 3, 1), P + 4)
                elif t == "S":
                    if n % 8 == 7:
                        g("s_waitcnt vmcnt(6)")
                    g.mfma(S[nn & 1], KB(nn >> 3), Q(nn & 7), 0)
                elif t == "|":
                    if n == 0 and only is None:
                        g.label("L_at_entry")
                elif t[0] == "x":
                    if X and n > 0:
                        if t == "x2":
                            g("s_cbranch_vccz L_kvs_%d" % n)
                            g(*X)
                            g.label("L_kvr_%d" % n)
                            g.cold.append(("L_kvs_%d" % n, "s_waitcnt vmcnt(%d)" % (3 if n == 8 else 0), "L_kvr_%d" % n))
                    elif X:
                        g(*{"x0": X[0:1], "x1": [], "x2": X[1:5], "x3": X[5:6]}[t])
                    if n == 31 and t == "x0":
                        g("s_sub_u32 s%d, s%d, 1" % (sCNT, sCNT), "s_cmp_eq_u32 s%d, 1" % sCNT, "s_cselect_b64 vcc, 0, -1")
                elif t[0] == "e":
                    k = int(t[1:])
                    g("v_exp_f32 v%d, v%d" % (s0 + k, s0 + k))
                elif t[0] == "c":
                    k = int(t[1:])
                    g("v_cvt_pk_bf16_f32 v%d, v%d, v%d" % (P + k, s0 + 2 * k, s0 + 2 * k + 1))
        step(0, skip_pv=True, only=order[:order.index("|")])
        g("s_waitcnt vmcnt(6)", "s_branch L_at_entry")
        g(".p2align 6")
        g.label("L_at_loop")
        for n in range(32):
            step(n)
            if g.o.get("diag") == "att" and n % 16 == 15:
                g("s_waitcnt lgkmcnt(0)")
                for k in range(1, 9):
                    g("s_mov_b32 s%d, s%d" % (78 + 2 * k, 80 + 2 * k))
                g.stamp(9, "att")
        g("s_cmp_lg_u32 s%d, 0" % sCNT, "s_cbranch_scc1 L_at_loop")
        g.mfma(O(7), VB(3, 0), P)
        g.mfma(O(7), VB(3, 1), P + 4)
        g.stamp(7)
        g("v_mov_b32 v124, 0x%x" % L_FLAG, "s_mul_i32 s%d, s%d, 0x3600" % (sA, sW), "v_lshlrev_b32 v1, 2, v0", "v_add_u32 v126, s%d, v2" % sA,
          "v_add_u32 v1, 0x800, v1", "v_add_u32 v127, s%d, v1" % sA)
        g.lds_wait_all("xn", 124, 16, 36)
        for j in range(1, 4):
            o = (j - 1) * 4608
            for t in range(2):
                g("ds_write_b128 v126, %s offset:%d" % (vr(O(2 * j + t), 4), o + t * 2304), "ds_write_b128 v126, %s offset:%d" % (vr(O(2 * j + t) + 4, 4), o + t * 2304 + 1024))
            g("ds_write2st64_b32 v127, v%d, v%d offset0:%d offset1:%d" % (O(2 * j) + 8, O(2 * j + 1) + 8, o // 256, (o + 2304) // 256))
        g.shladd(sA, sW, 2, "0x%x" % L_FLAG)
        g("v_mov_b32 v125, s%d" % sA, "v_mov_b32 v40, 1")
        for j in range(1, 4):
            g("s_xor_b32 s%d, s%d, %d" % (sA, sW, j), "s_mul_i32 s%d, s%d, 0x3600" % (sA, sA), "v_add_u32 v%d, s%d, v2" % (40 + j, sA), "v_add_u32 v%d, s%d, v1" % (43 + j, sA))
        g("s_waitcnt lgkmcnt(0)", "ds_write_b32 v125, v40")
        g.flag_regs(126, 127)
        g.lds_wait_all("pair", 124, 0, 36)
        g.stamp(8)
        T = lambda j, t: O(2 * j + t)
        for j in range(1, 4):
            o = (j - 1) * 4608
            g("ds_read2st64_b32 %s, v%d offset0:%d offset1:%d" % (vr(48 + 2 * j, 2), 43 + j, o // 256, (o + 2304) // 256))
            for t in range(2):
                g("ds_read_b128 %s, v%d offset:%d" % (vr(T(j, t), 4), 40 + j, o + t * 2304), "ds_read_b128 %s, v%d offset:%d" % (vr(T(j, t) + 4, 4), 40 + j, o + t * 2304 + 1024))
        for j in range(1, 4):
            g("s_waitcnt lgkmcnt(%d)" % (5 * (3 - j)))
            for t in range(2):
                g("v_add_f32 v%d, v%d, v%d" % (O(t) + 8, O(t) + 8, 48 + 2 * j + t))
            for t in range(2):
                for k in range(8):
                    g("v_add_f32 v%d, v%d, v%d" % (O(t) + k, O(t) + k, T(j, t) + k))
        g("v_subrev_u32 v40, 0x21800000, v%d" % (O(0) + 8), "v_subrev_u32 v41, 0x21800000, v%d" % (O(1) + 8), "v_max_u32 v40, v40, v41")
        g("v_cmp_lt_u32 vcc, 0x3c000000, v40", "s_nop 1", "s_and_b64 vcc, exec, vcc", "s_cbranch_vccnz L_at_slow")
        g.label("L_at_norm")
        g("v_rcp_f32 v40, v%d" % (O(0) + 8), "v_rcp_f32 v41, v%d" % (O(1) + 8), "s_nop 0")
        for i in range(2):
            for k in range(8):
                g("v_mul_f32 v%d, v%d, v%d" % (O(i) + k, O(i) + k, 40 + i))
            for k in range(4):
                g("v_cvt_pk_bf16_f32 v%d, v%d, v%d" % (44 + 4 * i + k, O(i) + 2 * k, O(i) + 2 * k + 1))
            g("buffer_store_dwordx4 %s, v2, %s, s%d offen%s" % (vr(44 + 4 * i, 4), sr(S_WS, 4), aO0 + i, cc))
        g.stamp(9)
        g("s_waitcnt vmcnt(0)")
        g.stamp(10)
        g.flag_store(aF3, 126, 127)

    def role_attn_slow(self):
        g = self
        O = lambda i: 128 + 16 * i
        Q = lambda i: 4 + 4 * i
        S0, P, KB0, V0, V1 = 36, 68, 76, 80, 84
        cc = g.cc
        g.label("L_at_slow")
        g("s_lshl_b32 s%d, s%d, 17" % (sC, sHEAD), "s_add_u32 s%d, s%d, 0x%x" % (sC, sC, WS_KV))
        g("s_add_u32 s%d, s22, s%d" % (S_KV, sC), "s_addc_u32 s%d, s23, 0" % (S_KV + 1), "s_mov_b32 s%d, 0x20000" % (S_KV + 2),
          "s_mov_b32 s%d, 0x20000" % (S_KV + 3))
        g("s_mov_b32 s%d, 0" % sCNT)
        g.label("L_sl_tile")
        g("v_mov_b32 v124, 0xff800000", "s_mov_b32 s%d, 0" % sD)
        g.label("L_sl_max")
        g("buffer_load_dwordx4 %s, v2, %s, s%d offen%s" % (vr(KB0, 4), sr(S_KV, 4), sD, cc), "s_waitcnt vmcnt(0)")
        g.mfma(S0, KB0, Q(0), 0)
        g("s_nop 11")
        for k in range(8):
            g("v_max3_f32 v124, v124, v%d, v%d" % (S0 + 2 * k, S0 + 2 * k + 1))
        g("s_add_u32 s%d, s%d, 0x800" % (sD, sD), "s_cmp_lt_u32 s%d, 0x20000" % sD, "s_cbranch_scc1 L_sl_max")
        g("v_mov_b32 v125, v124", "s_nop 1", "v_permlane32_swap_b32 v124, v125", "s_nop 1", "v_max_f32 v124, v124, v125")
        for k in range(16):
            g("v_mov_b32 v%d, 0" % (O(0) + k))
        g("s_mov_b32 s%d, 0" % sD)
        g.label("L_sl_acc")
        g("buffer_load_dwordx4 %s, v2, %s, s%d offen%s" % (vr(KB0, 4), sr(S_KV, 4), sD, cc))
        g("s_mov_b64 exec, %s" % sr(sMASK, 2))
        g("buffer_load_dwordx4 %s, v3, %s, s%d offen offset:1024%s" % (vr(V0, 4), sr(S_KV, 4), sD, cc))
        g("buffer_load_dwordx4 %s, v3, %s, s%d offen offset:1536%s" % (vr(V1, 4), sr(S_KV, 4), sD, cc))
        g("s_mov_b64 exec, -1", "s_waitcnt vmcnt(0)")
        g.mfma(S0, KB0, Q(0), 0)
        g("s_nop 11")
        for k in range(16):
            g("v_sub_f32 v%d, v%d, v124" % (S0 + k, S0 + k))
        for k in range(16):
            g("v_exp_f32 v%d, v%d" % (S0 + k, S0 + k))
        g("s_nop 0")
        for k in range(8):
            g("v_cvt_pk_bf16_f32 v%d, v%d, v%d" % (P + k, S0 + 2 * k, S0 + 2 * k + 1))
        g("s_nop 1")
        g.mfma(O(0), V0, P)
        g.mfma(O(0), V1, P + 4)
        g("s_add_u32 s%d, s%d, 0x800" % (sD, sD), "s_cmp_lt_u32 s%d, 0x20000" % sD, "s_cbranch_scc1 L_sl_acc")
        g("s_nop 11")
        g("s_cmp_eq_u32 s%d, 1" % sCNT, "s_cbranch_scc1 L_sl_done")
        for k in range(9):
            g("v_mov_b32 v%d, v%d" % (O(2) + k, O(0) + k))
        for k in range(4):
            g("v_mov_b32 v%d, v%d" % (Q(0) + k, Q(1) + k))
        g("s_mov_b32 s%d, 1" % sCNT, "s_branch L_sl_tile")
        g.label("L_sl_done")
        for k in range(9):
            g("v_mov_b32 v%d, v%d" % (O(1) + k, O(0) + k), "v_mov_b32 v%d, v%d" % (O(0) + k, O(2) + k))
        g("s_branch L_at_norm")

    def role_qkv(self):
        g = self
        AQ, AK, AV = 16, 32, 48
        WB = (128, 144, 160)
        XB = (140, 156, 172)
        vXr = 4
        vT = (8, 9)
        vD = 96
        lc = g.o["lognc"]
        fs = g.fs
        g.wq_setup(sC)
        dma = lambda st, seg: g.wq_dma(sC, st, seg)
        g("s_waitcnt lgkmcnt(0)")
        g.srd(S_WQ, 6, 512 * 3072)
        g.ws_base()
        g.stamp(1)
        g.epoch_load()
        g.srd(S_X, 4, 2048 * 1024)
        g.srd(S_WG, 12, 512 * 3584)
        g.srd(S_WU, 14, 512 * 3584)
        g.srd(S_WD, 16, 1792 * 1024)
        g.srd(S_WO, 8, 512 * 1024)
        g.srd(S_OUT, 18, 2048 * 1024)
        g.srd(S_WS, 22, WS_SIZE)
        def first_dma():
            g.stamp(1, "ln")
            if g.o["barP"]:
                g("s_barrier")
            for st in range(2):
                for seg in range(3):
                    g(*dma(st, seg))
            g.stamp(2, "ln")
        if g.o["dma_first"]:
            first_dma()
        g("s_lshr_b32 s%d, s10, 3" % sA)
        g.shladd(sRB2, 3, 2, sA)
        g("s_and_b32 s%d, s10, 7" % sCB2)
        g("s_add_u32 s%d, s%d, s%d" % (gROT2, sA, sCB2), "s_and_b32 s%d, s%d, %d" % (gROT2, gROT2, 3 if g.o["rot"] else 0))
        g("v_lshrrev_b32 v1, 5, v0", "v_lshlrev_b32 v10, 4, v0")
        g("s_and_b32 s%d, s%d, 1" % (sA, sW), "s_lshl_b32 s%d, s%d, 15" % (gTT, sA))
        g("v_xor_b32 v3, v0, v1")
        for q in range(4):
            g("v_xor_b32 v15, %d, v3" % (2 * q), "v_lshlrev_b32 v15, 4, v15", "v_add_u32 v15, 0x%x, v15" % (q * 1024),
              "v_add_u32 v%d, s%d, v15" % (vXr + q, gTT))
        g("v_bfe_u32 v104, v0, 2, 2", "v_bfe_u32 v105, v0, 3, 1", "v_bfe_u32 v106, v0, 4, 1", "v_and_b32 v107, 3, v0", "v_lshlrev_b32 v107, 3, v107")
        g("v_lshl_add_u32 v108, v1, 3, v104", "v_lshl_add_u32 v108, v108, 7, v107")
        g("v_lshl_add_u32 v107, v106, 5, v107")
        g("s_lshr_b32 s%d, s%d, 1" % (sB, sW), "v_xor_b32 v3, s%d, v105" % sB, "v_lshl_add_u32 v3, v3, 6, v108", "v_lshl_add_u32 v3, v106, 5, v3")
        g("v_add_u32 v%d, 0x%x, v3" % (vT[0], L_W), "v_add_u32 v%d, 0x%x, v3" % (vT[1], L_W + 49152))
        g.shladd(sD, sRB, 1, sA)
        g("s_and_b32 s%d, s%d, 2" % (sE, sW))
        g.shladd(sE, sCB, 2, sE)
        g.shladd(sF, sE, 6, sD)
        g.shladd(gQ0, sF, 10, "0x%x" % WS_Q)
        g("s_add_u32 s%d, s%d, 0x10000" % (gQ1, gQ0))
        g.shladd(gK0, sF, 11, "0x%x" % WS_KV)
        g("s_add_u32 s%d, s%d, 0x20000" % (gK1, gK0))
        if g.o["f1wg"]:
            g.shladd(gF1, sCB, 5, sRB)
        else:
            g.shladd(gF1, sE, 5, sD)
        g.shladd(gF1, gF1, fs, "0x%x" % F1)
        g("v_lshlrev_b32 v3, 17, v106", "v_lshl_add_u32 v3, v1, 8, v3", "v_and_b32 v15, 15, v0", "v_lshl_add_u32 v11, v15, 4, v3")
        g.shladd(gRING, sW, 14, "0x%x" % L_RING)
        g.shladd(sD, sCB, 2, sW)
        g("s_lshl_b32 s%d, s%d, 7" % (sE, sD), "v_mul_u32_u24 v3, 0xe00, v2", "v_add_u32 v3, s%d, v3" % sE)
        g("v_lshlrev_b32 v15, 1, v106", "v_xor_b32 v15, v15, v0", "v_and_b32 v15, 7, v15")
        g("v_lshl_add_u32 v116, v15, 4, v3", "v_xor_b32 v15, 4, v15", "v_lshl_add_u32 v118, v15, 4, v3")
        g("v_add_u32 v117, 0x%x, v116" % (8 * 3584 - 1024), "v_add_u32 v119, 0x%x, v118" % (8 * 3584 - 1024))
        g("v_lshl_add_u32 v3, v106, 11, v108", "v_add_u32 v3, s%d, v3" % gRING, "v_lshl_add_u32 v109, v106, 1, v105")
        for j in range(4):
            g("v_xor_b32 v15, %d, v109" % j, "v_lshl_add_u32 v%d, v15, 5, v3" % (112 + j))
        g("s_mul_i32 s%d, s%d, 224" % (sE, sRB))
        g.shladd(gH0, sD, 2, sE)
        g.shladd(gH0, gH0, 10, "0x%x" % WS_H)
        g("s_add_u32 s%d, s%d, 0x%x" % (gH1, gH0, 112 * 1024))
        g.shladd(gF2, sRB, 5, sD)
        g.shladd(gF2, gF2, fs, "0x%x" % F2)
        g("s_mul_i32 s%d, s%d, 0x%x" % (sD, sB, 112 * 1024), "v_add_u32 v120, s%d, v10" % sD, "s_xor_b32 s%d, s%d, 0x%x" % (sD, sD, 112 * 1024),
          "v_add_u32 v121, s%d, v10" % sD)
        g("s_mul_i32 s%d, s%d, 0x%x" % (gHL0, sRB2, 224 * 1024), "s_mul_i32 s%d, s%d, 0x%x" % (sD, sW, 28 * 1024),
          "s_add_u32 s%d, s%d, s%d" % (gHL0, gHL0, sD), "s_add_u32 s%d, s%d, 0x%x" % (gHL0, gHL0, WS_H))
        g("s_mul_i32 s%d, s%d, 0x%x" % (gWD0, sW, 28 * 16384))
        g("s_add_u32 s%d, s%d, 0x%x" % (gWD1, gWD0, 28 * 16384), "s_add_u32 s%d, s%d, 0x%x" % (gHL1, gHL0, 28 * 1024))
        g("s_mul_i32 s%d, s%d, 0x%x" % (gWD, gROT2, 7 * 16384), "s_add_u32 s%d, s%d, s%d" % (gWD, gWD, gWD0),
          "s_mul_i32 s%d, s%d, 0x%x" % (gHL, gROT2, 7 * 1024), "s_add_u32 s%d, s%d, s%d" % (gHL, gHL, gHL0))
        g("v_lshl_add_u32 v3, v1, 2, v104", "v_lshl_add_u32 v3, v3, 7, v107", "v_add_u32 v3, s%d, v3" % gRING, "v_xor_b32 v15, s%d, v105" % sA)
        g("v_lshl_add_u32 v122, v15, 6, v3", "v_xor_b32 v15, 1, v15", "v_lshl_add_u32 v123, v15, 6, v3")
        g("v_lshlrev_b32 v3, 10, v2", "v_lshl_add_u32 v3, v12, 4, v3", "s_lshl_b32 s%d, s%d, 7" % (sD, sCB2), "v_add_u32 v124, s%d, v3" % sD,
          "v_add_u32 v125, 0x1c00, v124")
        g("v_and_b32 v3, 31, v0", "v_lshlrev_b32 v3, 10, v3", "v_lshl_add_u32 v126, v1, 3, v3", "v_lshl_add_u32 v127, v1, 4, v3")
        if g.o["xtrip"] == 99:
            g.shladd(sD, sB, 6, sA)
            g.shladd(sD, sD, 6, "0x%x" % L_RING)
            g("v_lshrrev_b32 v3, 3, v3", "v_lshl_add_u32 v3, v1, 3, v3", "v_add_u32 v126, s%d, v3" % sD)
        g.shladd(sD, sRB2, 1, sB)
        g.shladd(sE, sCB2, 1, sA)
        g("s_lshl_b32 s%d, s%d, 15" % (sD, sD), "s_lshl_b32 s%d, s%d, 6" % (sE, sE), "s_add_u32 s%d, s%d, s%d" % (sOUT, sD, sE))
        g("s_mul_i32 s%d, s%d, 7" % (sD, sW))
        g.shladd(gP2, sRB2, 5, sD)
        g.shladd(gP2, gP2, fs, "0x%x" % F2)
        g.shladd(gP3, sRB2, 2, sW)
        g.shladd(gP3, gP3, 3 + fs, "0x%x" % F3)
        g("s_mov_b32 s%d, 0x%x" % (sF, f2u(0.25 * math.log2(math.e))))
        if not g.o["dma_first"]:
            first_dma()
        g("s_setprio 1")

        def reads(n):
            if n >= 32:
                return []
            st, ks = n >> 2, n & 3
            b = n % 3
            slot = st & 3
            L = ["ds_read_b128 %s, v%d offset:%d" % (vr(XB[b], 4), vXr + ks, st * 4096)]
            for seg in range(3):
                for p in range(2):
                    L.append("ds_read_b64_tr_b16 %s, v%d offset:%d" % (vr(WB[b] + 4 * seg + 2 * p, 2), vT[slot >> 1],
                                                                      (slot & 1) * 24576 + ks * 6144 + seg * 2048 + p * 512))
            return L

        def mm(n):
            b = n % 3
            c = 0 if n == 0 else None
            return [(AK, WB[b] + 4, XB[b], c), (AV, XB[b], WB[b] + 8, c), (AQ, WB[b], XB[b], c)]
        lnd = g.o["lndma"]
        g("s_waitcnt vmcnt(%d) lgkmcnt(0)" % (0 if lnd else 6))
        g.stamp(2)
        if lnd:
            for st in (2, 3):
                for seg in range(3):
                    g(*dma(st, seg))
        g.epoch_make()
        g.flag_regs(vEP, vZ)
        g.stamp(3, "ln")
        g("s_barrier")
        g.stamp(3)
        g(*reads(0))
        g(*reads(1))
        refill = {}
        if not lnd:
            for st, n0 in ((2, 0), (3, 3), (4, 6), (5, 10), (6, 14), (7, 18)):
                for seg in range(3):
                    refill[n0 + seg] = (st, seg)
        for n in range(32):
            st, ks = n >> 2, n & 3
            M = mm(n)
            R = reads(n + 2)
            D = dma(*refill[n]) if n in refill else []
            if ks == 2 and st < 7 and not (lnd and st == 0):
                vm = {0: 4, 6: 0}.get(st, 6) if not lnd else {1: 6}.get(st, 0)
                g("s_waitcnt vmcnt(%d) lgkmcnt(7)" % vm)
                if st in (1, 3, 4):
                    g.stamp({1: 2, 3: 5, 4: 8}[st], "qkv")
                g("s_barrier")
                if st in (1, 3, 4):
                    g.stamp({1: 3, 3: 6, 4: 9}[st], "qkv")
            elif n == 31:
                g("s_waitcnt lgkmcnt(0)", "s_barrier")
            else:
                g("s_waitcnt lgkmcnt(7)")
            g.mfma(*M[0])
            g(*R[:4])
            g.mfma(*M[1])
            g(*R[4:])
            g(*D[:-1])
            g.mfma(*M[2])
            g(*D[-1:])
        g.stamp(4)
        g.stamp(10, "qkv")
        g.stamp(1, "f1")
        P = 64
        for q in range(4):
            g("v_subrev_u32 v%d, s%d, v%d" % (vXr + q, gTT, vXr + q))
        g("s_mul_i32 s%d, s%d, 0x%x" % (sD, sROT, 64 * 3584), "s_nop 4")
        for k in range(8):
            g("v_cvt_pk_bf16_f32 v%d, v%d, v%d" % (P + 8 + k, AK + 2 * k, AK + 2 * k + 1))
            if k == 3:
                g("buffer_store_dwordx4 %s, v10, %s, s%d offen%s" % (vr(P + 8, 4), sr(S_WS, 4), gK0, g.cc))
        g("buffer_store_dwordx4 %s, v10, %s, s%d offen%s" % (vr(P + 12, 4), sr(S_WS, 4), gK1, g.cc))
        for k in range(8):
            g("v_cvt_pk_bf16_f32 v%d, v%d, v%d" % (P + 16 + k, AV + 2 * k, AV + 2 * k + 1))
            if k == 3:
                g("buffer_store_dwordx4 %s, v11, %s, s%d offen offset:1024%s" % (vr(P + 16, 4), sr(S_WS, 4), gK0, g.cc))
        g("buffer_store_dwordx4 %s, v11, %s, s%d offen offset:1536%s" % (vr(P + 20, 4), sr(S_WS, 4), gK0, g.cc))
        for k in range(8):
            g("v_mul_f32 v%d, s%d, v%d" % (AQ + 2 * k, sF, AQ + 2 * k), "v_mul_f32 v%d, s%d, v%d" % (AQ + 2 * k + 1, sF, AQ + 2 * k + 1))
            g("v_cvt_pk_bf16_f32 v%d, v%d, v%d" % (P + k, AQ + 2 * k, AQ + 2 * k + 1))
            if k == 3:
                g("buffer_store_dwordx4 %s, v10, %s, s%d offen%s" % (vr(P, 4), sr(S_WS, 4), gQ0, g.cc))
        g("buffer_store_dwordx4 %s, v10, %s, s%d offen%s" % (vr(P + 4, 4), sr(S_WS, 4), gQ1, g.cc))
        g.stamp(2, "f1")

    def f1_signal(self, tag):
        g = self
        g.stamp(4, "f1")
        if g.o["f1wg"]:
            g("s_barrier", "s_cmp_lg_u32 s%d, 0" % sW, "s_cbranch_scc1 L_f1_%s" % tag)
            g.flag_store(gF1)
            g.label("L_f1_%s" % tag)
        else:
            g.flag_store(gF1)
        g.stamp(5)
        g.stamp(5, "f1")
        if g.o.get("diag") == "f1":
            g("s_waitcnt vmcnt(0)")
            g.stamp(6, "f1")

    def role_gu(self, done):
        g = self
        ACC = lambda tt, j: 128 + 16 * (4 * tt + j)
        AB = (16, 32)
        BB = (48, 56)
        vXr, vTg, vG = 4, 112, 116
        lc = g.o["lognc"]
        sOFF = 4
        fine = g.o["fine"] and lc < 2
        if g.o["xtrip"] == 99:
            for i in range(4):
                g("ds_read_b64 %s, v126 offset:%d" % (vr(96 + 2 * i, 2), 16 * i))
        g("s_waitcnt vmcnt(0) lgkmcnt(0)")
        g.f1_signal("a")
        if fine:
            g("s_lshr_b32 s%d, s10, %d" % (sA, lc + 3))
            if lc == 1:
                g("s_lshl_b32 s%d, s%d, 1" % (sA, sA))
            g("s_mul_i32 s%d, s%d, 0x420" % (sB, sA))
            for u in range(4):
                g("v_xor_b32 v%d, s%d, v%d" % (vXr + u, sB, vXr + u), "s_xor_b32 s%d, s%d, %d" % (sOFF + u, sA, u), "s_mul_i32 s%d, s%d, 0x%x" % (sOFF + u, sOFF + u, 16 * 3584))
        else:
            for u in range(4):
                g("s_mov_b32 s%d, 0x%x" % (sOFF + u, u * 16 * 3584))
        if g.o["gu_wait"]:
            g("s_barrier")
        g("s_cmp_lg_u32 s%d, 7" % sCB, "s_cbranch_scc1 L_gu_go")
        if g.o["mallwarm"]:
            g.shladd(sA, sRB, 2, sW)
            g("v_lshlrev_b32 v2, 7, v0", "s_mul_i32 s%d, s%d, 0x3800" % (sB, sA), "s_add_u32 s%d, s%d, 0x1800" % (sE, sB), "s_lshl_b32 s%d, s%d, 12" % (sA, sA),
              "v_and_b32 v3, 0xf80, v2", "s_sleep %d" % g.o["mallwarm"])
            g("buffer_load_dword v12, v2, %s, s%d offen" % (sr(S_WD, 4), sB), "s_waitcnt vmcnt(0)", "buffer_load_dword v12, v2, %s, s%d offen" % (sr(S_WD, 4), sE),
              "s_waitcnt vmcnt(0)", "buffer_load_dword v12, v3, %s, s%d offen" % (sr(S_WO, 4), sA), "s_waitcnt vmcnt(0)")
        g("s_branch %s" % done)
        g.label("L_gu_go")

        def dma(slot):
            L = []
            for gg in range(2):
                L.append(["s_add_u32 m0, s%d, 0x%x" % (gRING, slot * 4096 + gg * 2048),
                          "s_add_u32 s%d, s%d, s%d" % (sE, sD, sOFF + slot) if gg == 0 else "s_nop 0",
                          "buffer_load_dwordx4 v%d, %s, s%d offen lds" % (vG + 2 * gg, sr(S_WG + 4 * gg, 4), sE),
                          "buffer_load_dwordx4 v%d, %s, s%d offen offset:1024 lds" % (vG + 2 * gg + 1, sr(S_WG + 4 * gg, 4), sE)])
            return L
        nfirst = (1 << lc) if fine else 4
        for s in range(4):
            if s == nfirst:
                g("s_waitcnt vmcnt(0)")
            elif s:
                g("s_waitcnt vmcnt(%d)" % g.o["thr_gu0"])
            for x in dma(s):
                g(*x)

        def reads(u):
            b = u & 1
            L = []
            L.append("ds_read_b128 %s, v%d offset:%d" % (vr(BB[b], 4), vXr + u, 0))
            for p in range(2):
                L.append("ds_read_b64_tr_b16 %s, v%d offset:%d" % (vr(AB[b] + 2 * p, 2), vTg, u * 4096 + p * 512))
            L.append("ds_read_b128 %s, v%d offset:%d" % (vr(BB[b] + 4, 4), vXr + u, 32768))
            for j in range(1, 4):
                for p in range(2):
                    L.append("ds_read_b64_tr_b16 %s, v%d offset:%d" % (vr(AB[b] + 4 * j + 2 * p, 2), vTg + j, u * 4096 + p * 512))
            return L
        kb = g.o["gboost"]
        th = g.o["thr_gu"]

        def step(u, first=False):
            b = u & 1
            c = 0 if first else None
            M = [(ACC(tt, j), AB[b] + 4 * j, BB[b] + 4 * tt, c) for j in range(4) for tt in range(2)]
            R = reads((u + 1) & 3)
            D = dma(u)

            def mf(i):
                if kb and i == 8 - kb:
                    g("s_setprio 3")
                g.mfma(*M[i])
                if kb and i == 7:
                    g("s_setprio 0")
            g("s_waitcnt lgkmcnt(0)")
            mf(0)
            if u == 0:
                g("s_xor_b32 s%d, s%d, s%d" % (sD, sCNT, sROT), "s_mul_i32 s%d, s%d, 0x%x" % (sD, sD, 64 * 3584))
            if u == 3:
                g("s_setprio 3")
                for q in range(4):
                    g("v_add_u32 v%d, 0x1000, v%d" % (vXr + q, vXr + q))
                g("s_setprio 0")
            g("s_waitcnt vmcnt(%d)" % th)
            g(*D[0])
            g(*R[0:3])
            mf(1)
            g(*R[3:6])
            mf(2)
            g(*R[6:8])
            mf(3)
            g(*R[8:10])
            mf(4)
            g("s_waitcnt vmcnt(%d)" % th)
            g(*D[1])
            mf(5)
            mf(6)
            mf(7)
        if g.o["xtrip"] == 0:
            g.xres_load()
            g("s_waitcnt vmcnt(16)")
        else:
            g("s_waitcnt vmcnt(12)")
        g.stamp(6)
        g.stamp(6, "att")
        g(*reads(0))
        g("s_mov_b32 s%d, 1" % sCNT, "s_setprio 0")
        step(0, first=True)
        g("s_branch L_gu_1")
        g.label("L_gu_0")
        step(0)
        g.label("L_gu_1")
        step(1)
        step(2)
        step(3)
        if 0 < g.o["xtrip"] < 99:
            g("s_cmp_lg_u32 s%d, %d" % (sCNT, g.o["xtrip"]), "s_cbranch_scc1 L_gu_nx")
            g.xres_load()
            g.label("L_gu_nx")
        g("s_add_u32 s%d, s%d, 1" % (sCNT, sCNT), "s_cmp_lg_u32 s%d, 9" % sCNT, "s_cbranch_scc1 L_gu_0")
        g("s_waitcnt vmcnt(0) lgkmcnt(0)", "s_setprio 3")
        g.stamp(7)
        g.stamp(7, "att")
        g.stamp(1, "f2")
        g.down_first(g.o["dn_pre"])
        g("s_nop 5")
        order = [(tt, j) for j in range(4) for tt in range(2)]
        for n, (tt, j) in enumerate(order):
            a = ACC(tt, j)
            P = 16 + 4 * n
            for k in range(8):
                g("v_max_f32 v%d, 0, v%d" % (a + k, a + k))
            for k in range(8):
                g("v_mul_f32 v%d, v%d, v%d" % (a + k, a + k, a + 8 + k))
            for k in range(4):
                g("v_cvt_pk_bf16_f32 v%d, v%d, v%d" % (P + k, a + 2 * k, a + 2 * k + 1))
            if n > g.o["thr_st"]:
                g("s_waitcnt vmcnt(%d)" % g.o["thr_st"])
            g("buffer_store_dwordx4 %s, v10, %s, s%d offen offset:%d%s" % (vr(P, 4), sr(S_WS, 4), gH0 + tt, j * 1024, g.cc))
        g.stamp(2, "f2")
        g("s_waitcnt vmcnt(0)")
        g.stamp(3, "f2")
        g.flag_store(gF2)
        if g.o["xtrip"] < 0:
            g.xres_load()
        g("s_branch L_down2")
        g.label(done)
        if g.o["xtrip"] != 99:
            g.xres_load()
        g.down_first(g.o["dn_pre"])
        g.label("L_down2")

    def xres_load(self):
        for i in range(4):
            self("buffer_load_dwordx2 %s, v126, %s, s%d offen offset:%d" % (vr(96 + 2 * i, 2), sr(S_X, 4), sOUT, 16 * i))

    def wdma(self, slot):
        return ["s_add_u32 m0, s%d, 0x%x" % (gRING, slot * 2048), "s_nop 0",
                "buffer_load_dwordx4 v124, %s, s%d offen lds" % (sr(S_WD, 4), gWD),
                "buffer_load_dwordx4 v125, %s, s%d offen offset:1024 lds" % (sr(S_WD, 4), gWD),
                "s_add_u32 s%d, s%d, 0x4000" % (gWD, gWD), "s_cmp_eq_u32 s%d, s%d" % (gWD, gWD1), "s_cselect_b32 s%d, s%d, s%d" % (gWD, gWD0, gWD)]

    def down_first(self, n):
        g = self
        g("s_setprio 3")
        g.shladd(sA, sW, 2, "0x%x" % L_FLAG)
        g("v_mov_b32 v2, s%d" % sA, "v_mov_b32 v3, 1", "ds_write_b32 v2, v3 offset:16")
        for s in range(n):
            g(*g.wdma(s))

    def role_down(self):
        g = self
        ACC = lambda ln, lt: 128 + 16 * (ln + 2 * lt)
        HB = lambda slot, lt: 32 + 8 * slot + 4 * lt
        AB = (16, 24)
        vT, vT2 = (122, 123), (14, 15)
        fs = g.fs

        def hload(slot):
            return ["buffer_load_dwordx4 %s, v120, %s, s%d offen%s" % (vr(HB(slot, 0), 4), sr(S_WS, 4), gHL, g.lc),
                    "buffer_load_dwordx4 %s, v121, %s, s%d offen%s" % (vr(HB(slot, 1), 4), sr(S_WS, 4), gHL, g.lc),
                    "s_add_u32 s%d, s%d, 0x400" % (gHL, gHL), "s_cmp_eq_u32 s%d, s%d" % (gHL, gHL1), "s_cselect_b32 s%d, s%d, s%d" % (gHL, gHL0, gHL)]

        R = g.o["dring"]
        if R == 4:
            npre = 7
            wo_at = lambda t: ((gRING, 8192 + 2048 * t, vT) if t < 4 else (sE, 2048 * (t - 4), vT2)) if t < 7 else (gRING, 0, vT)
        else:
            npre = 4
            wo_at = lambda t: (gRING, 14336, vT) if t == 0 else ((sE, 2048 * (t - 1), vT2) if t < 4 else (gRING, 2048 * (t - 4), vT))

        def wo_dma(t):
            base, off, _ = wo_at(t)
            return ["s_add_u32 m0, s%d, 0x%x" % (base, off), "s_nop 0",
                    "buffer_load_dwordx4 v124, %s, s%d offen lds" % (sr(S_WO, 4), sF),
                    "buffer_load_dwordx4 v125, %s, s%d offen offset:1024 lds" % (sr(S_WO, 4), sF), "s_add_u32 s%d, s%d, 0x4000" % (sF, sF)]
        for s in range(g.o["dn_pre"], R):
            g("s_waitcnt vmcnt(%d)" % g.o["thr_d0"])
            g(*g.wdma(s))
        g("s_lshl_b32 s%d, s%d, 17" % (sF, sW), "s_mul_i32 s%d, s%d, 0x1800" % (sE, sW), "s_add_u32 s%d, s%d, 0x%x" % (sE, sE, L_WO2))
        for t in range(npre):
            g("s_waitcnt vmcnt(%d)" % g.o["thr_d0"])
            g(*wo_dma(t))
        g("s_sub_u32 s%d, s%d, s%d" % (sA, sE, gRING), "v_add_u32 v14, s%d, v122" % sA, "v_add_u32 v15, s%d, v123" % sA)
        g("s_lshl_b32 s%d, s%d, 16" % (sC, sRB2), "s_lshl_b32 s%d, s%d, 13" % (sB, sW), "s_add_u32 s%d, s%d, s%d" % (sC, sC, sB),
          "s_add_u32 s%d, s%d, 0x%x" % (sC, sC, WS_O), "s_add_u32 s%d, s%d, 0x1000" % (sB, sC))
        g("s_lshr_b32 s%d, s%d, 1" % (sA, sW), "s_lshl_b32 s%d, s%d, 15" % (sA, sA), "v_add_u32 v12, s%d, v10" % sA,
          "s_xor_b32 s%d, s%d, 0x8000" % (sA, sA), "v_add_u32 v13, s%d, v10" % sA)
        g("v_add_u32 v4, s%d, v10" % gRING)
        for k in range(1, 4):
            g("s_xor_b32 s%d, s%d, %d" % (sA, sW, k))
            g.shladd(sA, sA, 14, "0x%x" % L_RING)
            g("v_add_u32 v%d, s%d, v10" % (4 + k, sA))
        g("v_lshlrev_b32 v8, %d, v0" % fs)
        g.stamp(4, "f2")
        g("s_waitcnt vmcnt(%d)" % min(2 * npre, g.o["thr_d0"] + 2), "s_mov_b32 s%d, 0xffff0000" % sA)
        for k in range(8):
            g("v_lshlrev_b32 v%d, 16, v%d" % (ACC(0, 0) + 2 * k, 96 + k), "v_and_b32 v%d, s%d, v%d" % (ACC(0, 0) + 2 * k + 1, sA, 96 + k))
        g.poll("h", 8, gP2, 3, g.o["sleep2"], 0x7f)
        g.stamp(8)
        g.stamp(8, "att")
        g.stamp(5, "f2")
        for s in range(R):
            if s > 3:
                g("s_waitcnt vmcnt(%d)" % g.o["thr_h0"])
            g(*hload(s))

        def treads(vt, off, b):
            return ["ds_read_b64_tr_b16 %s, v%d offset:%d" % (vr(AB[b] + 4 * ln + 2 * p, 2), vt[ln], off + p * 1024) for ln in range(2) for p in range(2)]

        def wo_reads(t, b):
            return treads(wo_at(t)[2], wo_at(t)[1], b)
        g(*treads(vT, 0, 0))
        g("s_mov_b32 s%d, 6" % sCNT, "s_setprio %d" % g.o["dprio"])
        g.stamp(6, "f2")

        def step(hs, par, vmwait, Rd, Wr=(), Hr=(), first=False, thr=None):
            M = [(ACC(ln, lt), AB[par] + 4 * ln, HB(hs, lt), (0 if first and (ln or lt) else None)) for ln in range(2) for lt in range(2)]
            g("s_waitcnt vmcnt(%d) lgkmcnt(0)" % vmwait)
            g.mfma(*M[0])
            g(*Rd)
            g.mfma(*M[1])
            if Wr and thr is not None:
                g("s_waitcnt vmcnt(%d)" % thr)
            g(*Wr)
            g.mfma(*M[2])
            g.mfma(*M[3])
            if Hr and thr is not None:
                g("s_waitcnt vmcnt(%d)" % thr)
            g(*Hr)
        TH = g.o["thr_d"]
        if R == 4:
            def lstep(u, vm=10, first=False):
                step(u, u & 1, vm, treads(vT, ((u + 1) & 3) * 2048, (u + 1) & 1), g.wdma(u), hload(u), first, TH[1])
            lstep(0, 4, True)
            g("s_branch L_dn_1")
            g.label("L_dn_0")
            lstep(0)
            g.label("L_dn_1")
            lstep(1)
            lstep(2)
            lstep(3)
            g("s_sub_u32 s%d, s%d, 1" % (sCNT, sCNT), "s_cmp_lg_u32 s%d, 0" % sCNT, "s_cbranch_scc1 L_dn_0")
            step(0, 0, 10, treads(vT, 2048, 1), wo_dma(7))
            step(1, 1, 8, treads(vT, 4096, 0))
            step(2, 0, 4, treads(vT, 6144, 1))
            step(3, 1, 2, wo_reads(0, 0))
        else:
            for gs in range(28):
                s, rnd = gs % 7, gs // 7
                Rd = treads(vT, ((s + 1) % 7) * 2048, (gs + 1) & 1) if gs < 27 else wo_reads(0, 0)
                if rnd == 0:
                    vm = min(2 * (6 - s) + 4 * s, 22)
                elif rnd < 3:
                    vm = 22
                else:
                    vm = (2 + 4 * (5 - s) if s < 6 else 0) + 2 * min(s, 4)
                if s == 0:
                    g.stamp(7 + rnd, "f2")
                if rnd < 3:
                    step(s, gs & 1, vm, Rd, g.wdma(s), hload(s), gs == 0, TH[rnd])
                else:
                    step(s, gs & 1, vm, Rd, wo_dma(4 + s) if s < 4 else ())
        g.stamp(9)
        g.stamp(9, "att")
        g("s_setprio 3")
        g.poll("o", 8, gP3, 3, g.o["sleep3"], 0xff)
        g.stamp(10)
        for s in range(8):
            for lt in range(2):
                g("buffer_load_dwordx4 %s, v%d, %s, s%d offen offset:%d%s" % (vr(HB(s, lt), 4), 12 + lt, sr(S_WS, 4), sC if s < 4 else sB, (s & 3) * 1024, g.lc))
        for s in range(8):
            step(s, s & 1, 14 - 2 * s, wo_reads(s + 1, (s + 1) & 1) if s < 7 else [])
        g.stamp(1, "fin")
        g("s_nop 9")
        for k in (2, 1, 3):
            a = ACC(k & 1, k >> 1)
            for i in range(4):
                g("ds_write_b128 v4, %s offset:%d" % (vr(a + 4 * i, 4), (k - 1) * 4096 + i * 1024))
        g("s_waitcnt lgkmcnt(0)")
        g.stamp(2, "fin")
        g("s_barrier")
        g.stamp(3, "fin")
        for k in range(1, 4):
            for i in range(4):
                g("ds_read_b128 %s, v%d offset:%d" % (vr(32 + 16 * (k - 1) + 4 * i, 4), 4 + k, (k - 1) * 4096 + i * 1024))
        a = ACC(0, 0)
        for k in range(1, 4):
            g("s_waitcnt lgkmcnt(%d)" % (4 * (3 - k)))
            for i in range(16):
                g("v_add_f32 v%d, v%d, v%d" % (a + i, a + i, 32 + 16 * (k - 1) + i))
        for k in range(8):
            g("v_cvt_pk_bf16_f32 v%d, v%d, v%d" % (16 + k, a + 2 * k, a + 2 * k + 1))
        g("s_lshl2_add_u32 s3, s2, s%d" % sW)
        g("v_permlane32_swap_b32 v16, v18", "v_permlane32_swap_b32 v17, v19", "v_permlane32_swap_b32 v20, v22", "v_permlane32_swap_b32 v21, v23")
        g("buffer_store_dwordx4 v[16:19], v127, %s, s%d offen" % (sr(S_OUT, 4), sOUT), "buffer_store_dwordx4 v[20:23], v127, %s, s%d offen offset:32" % (sr(S_OUT, 4), sOUT))
        g.stamp(4, "fin")
        g("s_cmp_lg_u32 s3, 0", "s_cbranch_scc1 L_dn_end", "s_mov_b32 s%d, 0x%x" % (sA, F_EPOCH))
        g.flag_store(sA)
        g.label("L_dn_end")


def probe_kernel(g, a, b, mult):
    kernel_head(g, "kp_kernel")
    g("s_cmp_ge_u32 s2, 1", "s_cbranch_scc1 L_kp_end")
    g("s_load_dwordx2 s[22:23], s[0:1], 72", "s_memrealtime s[30:31]", "s_waitcnt lgkmcnt(0)")
    g.srd(S_WS, 22, WS_SIZE)
    g("v_lshlrev_b32 v1, 9, v0")
    for n, (w, sl, op) in enumerate((a, b)):
        for q in range(4):
            g("s_mov_b32 s3, 0x%x" % (WS_STAMP + w * 64 + sl * 4 + q * 32768))
            g("buffer_load_dword v%d, v1, %s, s3 offen" % (4 + q, sr(S_WS, 4)))
        g("s_waitcnt vmcnt(0)")
        if op == "min":
            for q in range(4):
                g("v_subrev_u32 v%d, 1, v%d" % (4 + q, 4 + q))
        g("v_%s_u32 v4, v4, v5" % op, "v_%s_u32 v6, v6, v7" % op, "v_%s_u32 v4, v4, v6" % op, "s_nop 1")
        g("v_readlane_b32 s%d, v4, 0" % (40 + n))
        for l in range(1, 64):
            g("v_readlane_b32 s35, v4, %d" % l, "s_nop 0", "s_%s_u32 s%d, s%d, s35" % (op, 40 + n, 40 + n))
    g("s_sub_u32 s42, s41, s40", "s_mul_i32 s42, s42, %d" % mult, "s_min_u32 s42, s42, 100000")
    g.label("L_kp_spin")
    g("s_memrealtime s[32:33]", "s_waitcnt lgkmcnt(0)", "s_sub_u32 s34, s32, s30", "s_cmp_lt_u32 s34, s42", "s_cbranch_scc1 L_kp_spin")
    g.label("L_kp_end")
    g("s_endpgm")


HEADER = """; Kernarg layout (80 bytes, pointers only):
"""


def kd(name, vgpr=256, sgpr=102):
    return """.amdhsa_kernel %s
  .amdhsa_next_free_vgpr %d
  .amdhsa_next_free_sgpr %d
  .amdhsa_accum_offset %d
  .amdhsa_group_segment_fixed_size 0
  .amdhsa_kernarg_size 80
  .amdhsa_user_sgpr_count 2
  .amdhsa_user_sgpr_kernarg_segment_ptr 1
  .amdhsa_system_sgpr_workgroup_id_x 1
.end_amdhsa_kernel
""" % (name, vgpr, sgpr, (vgpr + 3) // 4 * 4)


def kernel_head(g, name):
    g(".globl %s" % name, ".p2align 8", ".type %s,@function" % name)
    g.label(name)


DEFAULT = dict(lognc=2, stamps=0, logfs=7, f1wg=1, rot=1, lnsched=(8, 0, 0, 0, 0, 0, 0, 0), lnpk=1, gu_wait=1, warm_gu=0, barP=1, dma_first=1,
               codepf=1, kvbuf=8, kvrot=0, kvpre=2, kvskip=1, fine=1, lndma=1, wsbase=0, mallwarm=64, warmA=0, warmAt=6, dn_pre=3, thr_gu=6, thr_gu0=4, thr_st=8, thr_d0=6, thr_h0=6,
               thr_d=(6, 8, None, None), xtrip=99, dring=7, gboost=0, dprio=0, presleep=0, sleep1=1, sleep2=4, sleep3=2,
               order="A e0 e1 e2 B e3 e4 e5 | S c0 c1 e6 x0 e7 e8 x1 c2 c3 x2 e9 e10 e11 c4 x3 e12 e13 c5 e14 e15 c6 c7")


def build(opts, probe=None):
    o = dict(DEFAULT)
    o.update(opts)
    K = NAME + "_kernel"
    out = HEADER + "; workspace base offset MB = %d\n" % o["wsbase"]
    if probe:
        out += "; @launch kernel=%s grid=(256,1,1) block=(512,1,1) lds=163840\n; @launch kernel=kp_kernel grid=(256,1,1) block=(64,1,1) lds=0\n" % K
    else:
        out += "; @launch grid=(256,1,1) block=(512,1,1) lds=163840\n"
    out += '.amdgcn_target "amdgcn-amd-amdhsa--gfx950"\n.text\n'
    g = G(o)
    kernel_head(g, K)
    g.prologue("L_end", "L_gemm")
    g.role_ln()
    g.role_attn()
    g.stamp_dump()
    g.label("L_end")
    g("s_endpgm")
    for lab, ins, back in g.cold:
        g.label(lab)
        g(ins, "s_branch " + back)
    g(".p2align 6")
    g.label("L_gemm")
    g.role_qkv()
    g.role_gu("L_down")
    g.role_down()
    g.stamp_dump()
    g("s_endpgm")
    g.label("L_code_end")
    g.role_attn_slow()
    names = [K]
    if probe:
        probe_kernel(g, *probe)
        names.append("kp_kernel")
    body = "\n".join(("" if l.endswith(":") or l.startswith(".") else "  ") + l for l in g.L)
    out += body + "\n" + '.section .rodata,"a"\n'
    for n in names:
        out += ".p2align 6\n" + kd(n)
    return out, names


if __name__ == "__main__":
    dst = sys.argv[1]
    opts = eval("dict(%s)" % sys.argv[2]) if len(sys.argv) > 2 else {}
    probe = opts.pop("probe", None)
    asm, names = build(opts, probe)
    errs = check.check(asm, names)
    for e in errs[:6]:
        print(e)
    print("%s: %d checker problems, %d lines" % (dst, len(errs), asm.count("\n")))
    open(dst, "w").write(asm)
```
